```python
import torch

def _softmax(x, axis=-1):
    return torch.softmax(x, dim=axis)
def _gelu(x):
    return torch.nn.functional.gelu(x, approximate="tanh")
def _silu(x):
    return torch.nn.functional.silu(x)
def _sigmoid(x):
    return torch.sigmoid(x)
def _layernorm(x, axis=-1, eps=1e-5):
    m = x.mean(dim=axis, keepdim=True)
    v = x.var(dim=axis, keepdim=True, unbiased=False)
    return (x - m) / torch.sqrt(v + eps)
def _scatter_add(tgt, idx, src, axis=0):
    return tgt.clone().index_add_(axis, idx, src)
def _segment_sum(src, seg, n):
    out = torch.zeros((n,) + src.shape[1:], dtype=src.dtype)
    return out.index_add_(0, seg, src)
def _pad(x, pw):
    flat = tuple(v for pair in reversed(pw) for v in pair)
    return torch.nn.functional.pad(x, flat)

kernel_name = 'sequential_preLN__ssm_conv_s4d__geglu_ffn__prompt'

def setup_inputs():

    _w = (lambda a: (lambda t: t.to(torch.bfloat16) if t.is_floating_point() else t)(torch.as_tensor(a)))
    def _A_setup():
        Bsz, L, D, N = 1, 2048, 512, 128
        return {
            "u": _w((lambda *s: torch.randn(*s, dtype=torch.bfloat16) * 0.05)(Bsz, L, D)),
            "log_A_real": _w((lambda *s: torch.randn(*s, dtype=torch.bfloat16) * 6.4)(D, N) * 0.5),
            "A_imag": _w((lambda *s: torch.randn(*s, dtype=torch.bfloat16) * 0.05)(D, N) * 3.14),
            "C_real": _w((lambda *s: torch.randn(*s, dtype=torch.bfloat16) * 0.05)(D, N) / N ** 0.5),
            "C_imag": _w((lambda *s: torch.randn(*s, dtype=torch.bfloat16) * 0.05)(D, N) / N ** 0.5),
            "log_dt": _w((lambda *s: torch.randn(*s, dtype=torch.bfloat16) * 0.05)(D) * 0.5 - 4.0),
            "D_skip": _w((lambda *s: torch.randn(*s, dtype=torch.bfloat16) * 0.05)(D)),
        }
    _A_in = _A_setup()

    def _B_setup():
        B, S, D, F = 1, 2048, 512, 1792
        return {
            "x": _w((lambda *s: torch.randn(*s, dtype=torch.bfloat16) * 0.05)(B, S, D)),
            "w_gate": _w((lambda *s: torch.randn(*s, dtype=torch.bfloat16) * 0.05)(D, F)),
            "w_up": _w((lambda *s: torch.randn(*s, dtype=torch.bfloat16) * 0.05)(D, F)),
            "w_down": _w((lambda *s: torch.randn(*s, dtype=torch.bfloat16) * 0.05)(F, D)),
        }
    _B_in = _B_setup()

    return {
        "A_u": _A_in["u"],
        "A_log_A_real": _A_in["log_A_real"],
        "A_A_imag": _A_in["A_imag"],
        "A_C_real": _A_in["C_real"],
        "A_C_imag": _A_in["C_imag"],
        "A_log_dt": _A_in["log_dt"],
        "A_D_skip": _A_in["D_skip"],
        "B_x": _B_in["x"],
        "B_w_gate": _B_in["w_gate"],
        "B_w_up": _B_in["w_up"],
        "B_w_down": _B_in["w_down"],
    }

def reference(A_u, A_log_A_real, A_A_imag, A_C_real, A_C_imag, A_log_dt, A_D_skip, B_x, B_w_gate, B_w_up, B_w_down):
    def _A_ref(u, log_A_real, A_imag, C_real, C_imag, log_dt, D_skip):
        L = u.shape[1]
        dt = torch.exp(log_dt)
        A = -torch.exp(log_A_real) + 1j * A_imag
        C = (C_real + 1j * C_imag) * dt[:, None]
        pos = (lambda x, dt: x.to(dt))(torch.arange(L), log_dt.dtype)
        P = torch.exp((A * dt[:, None])[:, :, None] * pos[None, None, :])
        K = 2.0 * torch.einsum("dn,dnl->dl", C, P).real
        L2 = 2 * L
        u_t = (lambda x, *d: x.permute(*d))(u, 0, 2, 1)
        Kf = (lambda x, *a, **k: torch.fft.rfft(x.float(), *a, **k))(K, L2)
        Uf = (lambda x, *a, **k: torch.fft.rfft(x.float(), *a, **k))(u_t, L2)
        y = (lambda x, *a, **k: torch.fft.irfft(x, *a, **k).to(torch.bfloat16))(Uf * Kf[None, :, :], L2)[:, :, :L]
        y = (lambda x, *d: x.permute(*d))(y, 0, 2, 1)
        return y + u * D_skip[None, None, :]

    def _B_ref(x, w_gate, w_up, w_down):
        return (_gelu(x @ w_gate) * (x @ w_up)) @ w_down

    x = A_u
    h = x + _A_ref(_layernorm(x, axis=-1), A_log_A_real, A_A_imag, A_C_real, A_C_imag, A_log_dt, A_D_skip)
    h2 = h + _B_ref(_layernorm(h, axis=-1), B_w_gate, B_w_up, B_w_down)
    return h2
```

```python
import re

REG_RE = re.compile(r'^(-?)(?:abs\()?([vsa])(?:(\d+)|\[(\d+):(\d+)\])\)?$')


def parse_reg(tok):
    tok = tok.strip()
    if tok in ('vcc', 'exec', 'm0', 'scc'):
        return {(tok, 0)}
    if tok in ('vcc_lo', 'vcc_hi'):
        return {('vcc', 0)}
    if tok in ('exec_lo', 'exec_hi'):
        return {('exec', 0)}
    m = REG_RE.match(tok)
    if not m:
        return set()
    k = m.group(2)
    if m.group(3) is not None:
        return {(k, int(m.group(3)))}
    return {(k, i) for i in range(int(m.group(4)), int(m.group(5)) + 1)}


TRANS = ('v_exp_f32', 'v_log_f32', 'v_rcp_f32', 'v_rsq_f32', 'v_sqrt_f32', 'v_sin_f32', 'v_cos_f32',
         'v_rcp_iflag_f32')


class Ins:
    __slots__ = ('text', 'op', 'ops', 'mods', 'defs', 'uses', 'kind', 'label', 'target', 'passes',
                 'srcC', 'srcAB', 'nopn', 'auto')

    def __init__(self, text):
        self.text = text
        self.label = None
        self.target = None
        self.defs = set()
        self.uses = set()
        self.kind = 'other'
        self.passes = 0
        self.srcC = set()
        self.srcAB = set()
        self.nopn = 0
        self.auto = False
        t = text.split(';')[0].strip()
        if not t:
            self.kind = 'empty'
            self.op = ''
            return
        if t.endswith(':'):
            self.label = t[:-1]
            self.kind = 'label'
            self.op = ''
            return
        if t.startswith('.'):
            self.kind = 'directive'
            self.op = ''
            return
        parts = t.split(None, 1)
        op = parts[0]
        self.op = op
        rest = parts[1] if len(parts) > 1 else ''
        toks = []
        depth = 0
        cur = ''
        for ch in rest:
            if ch in '[(':
                depth += 1
            if ch in '])':
                depth -= 1
            if ch == ',' and depth == 0:
                toks.append(cur.strip())
                cur = ''
            else:
                cur += ch
        if cur.strip():
            toks.append(cur.strip())
        mods = ''
        if toks:
            last = toks[-1].split(None, 1)
            toks[-1] = last[0]
            mods = last[1] if len(last) > 1 else ''
        self.ops = toks
        self.mods = mods
        R = [parse_reg(x) for x in toks]

        def U(lst):
            s = set()
            for x in lst:
                s |= x
            return s
        if op.startswith('v_mfma'):
            self.kind = 'mfma'
            self.passes = 8 if '32x32' in op else 4
            if '4x4x4' in op:
                self.passes = 2
            self.defs = R[0]
            self.srcAB = R[1] | R[2]
            self.srcC = R[3] if len(R) > 3 else set()
            self.uses = self.srcAB | self.srcC
        elif op.startswith('v_cmp'):
            self.kind = 'valu'
            self.defs = R[0]
            self.uses = U(R[1:])
        elif op.startswith('v_permlane') and 'swap' in op:
            self.kind = 'valu'
            self.defs = R[0] | R[1]
            self.uses = R[0] | R[1]
        elif op.startswith('v_readlane') or op.startswith('v_readfirstlane'):
            self.kind = 'valu'
            self.defs = R[0]
            self.uses = U(R[1:])
        elif op.startswith('v_'):
            self.kind = 'valu'
            self.defs = R[0]
            self.uses = U(R[1:])
            if op.startswith('v_fmac') or op.startswith('v_dot2c') or op.startswith('v_writelane') \
                    or 'dpp' in op or 'row_' in mods or 'quad_perm' in mods or 'sdwa' in op:
                self.uses |= R[0]
            if op.startswith('v_cndmask') and len(toks) == 3:
                self.uses |= {('vcc', 0)}
            if op.startswith('v_add_co') or op.startswith('v_sub_co') or op.startswith('v_addc_co'):
                self.defs = R[0] | R[1]
                self.uses = U(R[2:])
        elif op.startswith('ds_'):
            self.kind = 'ds'
            if op.startswith('ds_read') or 'rtn' in op or op.startswith('ds_bpermute') or op.startswith('ds_swizzle'):
                self.defs = R[0]
                self.uses = U(R[1:])
            else:
                self.uses = U(R)
        elif op.startswith('buffer_') or op.startswith('global_'):
            self.kind = 'vmem'
            lds = (' lds' in (' ' + mods)) or ('_lds_' in op)
            if op in ('buffer_inv', 'buffer_wbl2'):
                pass
            elif lds:
                self.uses = U(R) | {('m0', 0)}
                self.kind = 'vmem_lds'
            elif 'load' in op:
                self.defs = R[0]
                self.uses = U(R[1:])
            elif 'atomic' in op:
                self.uses = U(R)
                if 'sc0' in mods:
                    self.defs = R[0]
            else:
                self.uses = U(R)
        elif op.startswith('s_'):
            self.kind = 'salu'
            if op == 's_nop':
                self.nopn = int(toks[0], 0)
                self.kind = 'nop'
            elif op in ('s_branch',) or op.startswith('s_cbranch'):
                self.target = toks[0]
                self.kind = 'branch'
                if 'vcc' in op:
                    self.uses = {('vcc', 0)}
                if 'exec' in op:
                    self.uses = {('exec', 0)}
            elif op in ('s_endpgm', 's_barrier', 's_waitcnt', 's_sleep', 's_setprio'):
                self.kind = 'misc'
            elif op.startswith('s_cmp') or op.startswith('s_bitcmp'):
                self.uses = U(R)
            elif op.startswith('s_load') or op.startswith('s_buffer_load') or op.startswith('s_memtime') \
                    or op.startswith('s_memrealtime'):
                self.kind = 'smem'
                self.defs = R[0]
                self.uses = U(R[1:])
            elif 'saveexec' in op:
                self.defs = R[0] | {('exec', 0)}
                self.uses = U(R[1:]) | {('exec', 0)}
            else:
                self.defs = R[0]
                self.uses = U(R[1:])
                if op in ('s_addk_i32', 's_mulk_i32'):
                    self.uses |= R[0]

    def states(self):
        if self.kind in ('label', 'empty', 'directive'):
            return 0
        if self.kind == 'nop':
            return self.nopn + 1
        return 1


def is_trans(i):
    return i.kind == 'valu' and any(i.op.startswith(t) for t in TRANS)


def is_dpp(i):
    return i.kind == 'valu' and ('dpp' in i.op or 'row_' in i.mods or 'quad_perm' in i.mods or 'wave_' in i.mods)


def vset(s):
    return {x for x in s if x[0] in 'va'}


def sset(s):
    return {x for x in s if x[0] == 's' or x[0] == 'vcc'}


def need(p, c):
    n = 0
    if p.kind == 'valu':
        pv = vset(p.defs)
        ps = sset(p.defs)
        if c.kind == 'mfma' and pv & c.uses:
            n = max(n, 2)
        if c.kind == 'valu':
            if (c.op.startswith('v_readlane') or c.op.startswith('v_readfirstlane')) and pv & c.uses:
                n = max(n, 1)
            if is_dpp(c) and pv & c.uses:
                n = max(n, 2)
            if c.op.startswith('v_permlane') and pv & c.uses:
                n = max(n, 2)
            if is_trans(p) and not is_trans(c) and pv & c.uses:
                n = max(n, 1)
            if is_trans(p) and is_trans(c) and pv & c.uses:
                n = max(n, 1)
            if ('sdwa' in p.op or ('op_sel' in p.mods and not p.op.startswith('v_pk_'))) and pv & (c.uses | c.defs):
                n = max(n, 1)
            if ps & c.uses:
                n = max(n, 4 if (c.op.startswith('v_readlane') or c.op.startswith('v_writelane')) else 2)
        if p.op.startswith('v_dot2') and pv & (c.uses | c.defs):
            same_c = False
            if c.op == p.op and c.kind == 'valu':
                ab = set()
                srcs = c.ops[1:3]
                for t in srcs:
                    ab |= parse_reg(t)
                same_c = not (pv & ab)
            if not same_c:
                n = max(n, 3)
        if c.kind in ('vmem', 'vmem_lds') and ps & c.uses:
            n = max(n, 5)
        if c.kind in ('salu', 'branch', 'smem') and ps & c.uses:
            n = max(n, 2)
        if is_trans(p) and c.kind in ('ds', 'vmem', 'vmem_lds', 'mfma') and pv & c.uses:
            n = max(n, 2 if c.kind == 'mfma' else 1)
    if p.kind == 'mfma':
        rd = {2: 5, 4: 8, 8: 12}[p.passes]
        ov = {2: 4, 4: 6, 8: 10}[p.passes]
        war = {2: 1, 4: 3, 8: 7}[p.passes]
        if c.kind == 'mfma':
            if p.defs & c.srcAB:
                n = max(n, rd)
            if p.defs & c.srcC:
                if not (p.defs == c.srcC and p.passes == c.passes):
                    n = max(n, ov)
                elif p.passes == 2:
                    n = max(n, 2)
            if p.defs & c.defs and not (p.defs & c.srcC):
                n = max(n, ov)
        elif c.kind == 'valu':
            if p.defs & (c.uses | c.defs):
                n = max(n, rd)
            if p.srcC & vset(c.defs):
                n = max(n, war)
        elif c.kind in ('ds', 'vmem', 'vmem_lds'):
            if p.defs & (c.uses | c.defs):
                n = max(n, rd)
    if p.kind == 'salu' and ('m0', 0) in p.defs:
        if c.kind == 'vmem_lds' or 'addtid' in c.op:
            n = max(n, 1)
    if p.kind == 'salu' and ('exec', 0) in p.defs:
        if is_dpp(c):
            n = max(n, 1)
    if p.kind == 'vmem' and 'store' in p.op and ('x4' in p.op or 'x3' in p.op):
        data = parse_reg(p.ops[0])
        if c.kind == 'valu' and data & c.defs:
            n = max(n, 2)
        elif c.kind in ('ds', 'vmem', 'mfma') and data & c.defs:
            n = max(n, 1)
    if p.kind == 'ds' and (p.op.startswith('ds_write_b128') or p.op.startswith('ds_write_b96')):
        data = parse_reg(p.ops[1])
        if c.kind == 'valu' and data & c.defs:
            n = max(n, 1)
    return n


class Asm:
    def __init__(self):
        self.lines = []
        self.uid = 0

    def __call__(self, s):
        for ln in s.split('\n'):
            ln = ln.rstrip()
            if ln.strip():
                self.lines.append(ln.strip())

    def label(self, name):
        self.lines.append(name + ':')

    def newlabel(self, base):
        self.uid += 1
        return f'{base}_{self.uid}'

    def comment(self, s):
        self.lines.append('; ' + s)

    def fix_hazards(self, verbose=False):
        ins = [Ins(l) for l in self.lines]
        MAXD = 13
        inserted = 0
        while True:
            labels = {i.label: k for k, i in enumerate(ins) if i.label}
            preds = [[] for _ in ins]
            for k, i in enumerate(ins):
                fall = True
                if i.kind == 'branch':
                    if i.target in labels:
                        preds[labels[i.target]].append(k)
                    if i.op == 's_branch':
                        fall = False
                if i.op == 's_endpgm':
                    fall = False
                if fall and k + 1 < len(ins):
                    preds[k + 1].append(k)
            changed = False
            for k, c in enumerate(ins):
                if c.kind in ('label', 'empty', 'directive', 'nop', 'misc'):
                    continue
                worst = 0
                stack = [(p, 0, ) for p in preds[k]]
                seen = {}
                while stack:
                    p, d = stack.pop()
                    if p in seen and seen[p] <= d:
                        continue
                    seen[p] = d
                    pi = ins[p]
                    if pi.states() > 0 and pi.kind != 'nop':
                        nd = need(pi, c)
                        if nd > d:
                            worst = max(worst, nd - d)
                    d2 = d + pi.states()
                    if d2 < MAXD:
                        for q in preds[p]:
                            stack.append((q, d2))
                if worst > 0:
                    nop = Ins(f's_nop {worst - 1}')
                    nop.auto = True
                    ins.insert(k, nop)
                    inserted += 1
                    if verbose:
                        print(f'nop {worst} before: {c.text}')
                    changed = True
                    break
            if not changed:
                break
        self.lines = [i.text for i in ins]
        return inserted

    def text(self):
        out = []
        for l in self.lines:
            if l.endswith(':') or l.startswith('.') or l.startswith(';'):
                out.append(l)
            else:
                out.append('    ' + l)
        return '\n'.join(out) + '\n'
```

```python
import sys
from asmlib import Asm

KNAME = 'sequential_preLN__ssm_conv_s4d__geglu_ffn__prompt_kernel'

CNT2, CNT3 = 0x2000, 0x3000
EPOCH = 0x0000
PREPF = 0x1000
STATS = 0x4000
CSP = 0x8000
HT = 0x100000
WP = 0x300000
GG = 0x700000
XT = 0xE00000
XF = 0x40000
DBGK = 0x1000000
WS_SIZE = 0x1200000

LDS_SIZE = 163840
TROW = 544
TAB_E = 19264
TAB_G = TAB_E
TAB_CH = TAB_E + 64 * TROW
KC = 115712
KCS = 4160
STG_G = 149248
STG_U = STG_G + 7168 + 128
UB = 0
UBS = 4608
PART = 9216
XB = 41984
MISC = 163712
XST = KC + KCS

HRING = 0
NRING = 6
WSLOT = [50176, 82944, 115712, 0]
CSL = 148992
SXCH = 151552
WDSLOT = 16384
NWD = 9
RESID = 155648
RED = 0


def eoff(r):
    return 576 * r + 32 * (r >> 2) + 32 * (r >> 4)


assert eoff(32) + 512 == TAB_E and 2 * TAB_CH <= KC and STG_U + 7168 <= MISC

sW, sWave = 's2', 's3'
SWS = 's[4:7]'
SA, SB, SC = 's[8:11]', 's[12:15]', 's[16:19]'
P_X, P_LA, P_AI, P_CR, P_CI, P_LDT, P_D, P_BX, P_WG, P_WU, P_WD, P_OUT, P_DBG, P_WS = [20 + 2 * i for i in range(14)]
sX, sY, sCP, sTB, sFB, sT64, sDB = 's48', 's49', 's50', 's51', 's52', 's53', 's54'
T = [f's{n}' for n in range(55, 80)]
sEX = 's[90:91]'
sLDT, sDSK = 's80', 's81'
sIt = 's82'
sSpin = 's83'
sTAG = 's84'

LOG2E = 0x3fb8aa3b
INV2PI = 0x3e22f983


def v(n):
    return f'v{n}'


def vr(n, c):
    return f'v[{n}:{n + c - 1}]'


def srd(a, dst, ptr, size):
    n = int(dst[2:dst.index(':')])
    a(f's_mov_b32 s{n}, s{ptr}')
    a(f's_mov_b32 s{n + 1}, s{ptr + 1}')
    a(f's_mov_b32 s{n + 2}, {size}')
    a(f's_mov_b32 s{n + 3}, 0x20000')


SPIN_MAX = 30000
STAMPS = {'on': False, 'names': []}
STAMP_REGS = [85, 86, 87, 88, 89, 92, 93, 94, 95, 96, 97, 98, 99]


def stamp(a, name):
    if not STAMPS['on']:
        return
    if STAMPS.get('only') and name.lstrip('@') not in STAMPS['only']:
        return
    i = len(STAMPS['names'])
    STAMPS['names'].append(name)
    a('s_memtime s[100:101]' if name.startswith('@') else 's_memrealtime s[100:101]')
    a('s_waitcnt lgkmcnt(0)')
    a(f's_mov_b32 s{STAMP_REGS[i]}, s100')


def dump_stamps(a):
    if not STAMPS['on']:
        return
    n = len(STAMPS['names'])
    a('v_mov_b32 v2, 0')
    for i in range(n):
        a(f'v_mov_b32 v3, s{STAMP_REGS[i]}')
        a(f'v_cmp_eq_u32 vcc, {i}, v0')
        a('s_nop 1')
        a('v_cndmask_b32 v2, v2, v3, vcc')
    a(f's_lshl_b32 {T[0]}, {sW}, 3')
    a(f's_add_u32 {T[0]}, {T[0]}, {sWave}')
    a(f's_lshl_b32 {T[0]}, {T[0]}, 6')
    a(f's_add_u32 {T[0]}, {T[0]}, {DBGK}')
    a('v_lshlrev_b32 v3, 2, v0')
    a(f's_mov_b64 {sEX}, exec')
    a('s_mov_b64 exec, 0xffff')
    a(f'buffer_store_dword v2, v3, {SWS}, {T[0]} offen')
    a(f's_mov_b64 exec, {sEX}')


def poll_ge(a, off, nlanes, stride, target, vtmp, vtmp2, name):
    L = a.newlabel('L_poll_' + name)
    Ld = a.newlabel('L_polld_' + name)
    a(f'v_min_u32 {vtmp2}, {nlanes - 1}, v0')
    a(f's_mov_b32 {T[0]}, {stride}')
    a(f'v_mul_lo_u32 {vtmp2}, {vtmp2}, {T[0]}')
    if isinstance(off, int):
        a(f's_mov_b32 {T[1]}, {off}')
    else:
        a(f's_mov_b32 {T[1]}, {off}')
    a(f's_mov_b32 {sSpin}, 0')
    a.label(L)
    a(f'buffer_load_dword {vtmp}, {vtmp2}, {SWS}, {T[1]} offen sc1')
    a(f's_add_u32 {sSpin}, {sSpin}, 1')
    a(f's_waitcnt vmcnt(0)')
    a(f'v_cmp_gt_u32 vcc, {target}, {vtmp}')
    a(f's_cmp_ge_u32 {sSpin}, {SPIN_MAX}')
    a(f's_cbranch_scc1 {Ld}')
    a(f's_cbranch_vccz {Ld}')
    a(f's_sleep 1')
    a(f's_branch {L}')
    a.label(Ld)


def arrive(a, off_sgpr_or_int, vtmp, vtmp2):
    a(f'v_mov_b32 {vtmp}, 1')
    a(f'v_mov_b32 {vtmp2}, 0')
    a(f's_mov_b64 {sEX}, exec')
    a(f's_mov_b64 exec, 1')
    a(f'buffer_atomic_add {vtmp}, {vtmp2}, {SWS}, {off_sgpr_or_int} offen')
    a(f's_mov_b64 exec, {sEX}')


def entry(a):
    a(f's_cmp_ge_u32 s2, 256')
    a(f's_cbranch_scc1 L_end')
    a('s_load_dwordx16 s[20:35], s[0:1], 0')
    a('s_load_dwordx8 s[36:43], s[0:1], 64')
    a('s_load_dwordx4 s[44:47], s[0:1], 96')
    a('v_lshrrev_b32 v2, 6, v0')
    a('v_mov_b32 v1, v0')
    a('v_and_b32 v0, 63, v0')
    a(f'v_readfirstlane_b32 {sWave}, v2')
    a(f's_and_b32 {sX}, s2, 7')
    a(f's_lshr_b32 {sY}, s2, 3')
    a(f's_lshl_b32 {sCP}, {sX}, 5')
    a(f's_add_u32 {sCP}, {sCP}, {sY}')
    a(f's_and_b32 {T[0]}, {sX}, 3')
    a(f's_lshl_b32 {T[0]}, {T[0]}, 2')
    a(f's_and_b32 {T[1]}, {sY}, 3')
    a(f's_add_u32 {sTB}, {T[0]}, {T[1]}')
    a(f's_lshr_b32 {T[0]}, {sX}, 2')
    a(f's_lshl_b32 {T[0]}, {T[0]}, 3')
    a(f's_lshr_b32 {sDB}, {sY}, 2')
    a(f's_add_u32 {sFB}, {T[0]}, {sDB}')
    a(f's_lshl_b32 {T[0]}, {sX}, 2')
    a(f's_add_u32 {sT64}, {T[0]}, {T[1]}')
    a('s_waitcnt lgkmcnt(0)')
    srd(a, SWS, P_WS, WS_SIZE)
    stamp(a, 'entry')
    stamp(a, '@c0')


PAIRC = MISC + 64


def p12(a, dbg):
    LU = a.newlabel('L_Upath')
    LS2 = a.newlabel('L_S2')
    a(f's_lshl_b32 {T[0]}, {sCP}, 2')
    a(f's_load_dword {sLDT}, s[{P_LDT}:{P_LDT + 1}], {T[0]}')
    a(f's_load_dword {sDSK}, s[{P_D}:{P_D + 1}], {T[0]}')
    a(f's_load_dword {sTAG}, s[{P_WS}:{P_WS + 1}], {EPOCH}')
    a(f's_cmp_ge_u32 {sWave}, 4')
    a(f's_cbranch_scc1 {LU}')
    kpath(a, dbg)
    a(f's_branch {LS2}')
    a.label(LU)
    upath(a, dbg)
    a.label(LS2)
    a('s_waitcnt lgkmcnt(0)')
    a('s_barrier')
    stamp(a, 'S2')
    p12_rest(a, dbg)


def kpath(a, dbg):
    XR = [4, 8]
    PR = 12
    t0, t1, t2, t3, t4 = 16, 17, 18, 19, 20
    Lnz = a.newlabel('L_nozero')
    a(f's_or_b32 {T[1]}, {sW}, {sWave}')
    a(f's_cmp_eq_u32 {T[1]}, 0')
    a(f's_cbranch_scc0 {Lnz}')
    a(f'v_and_b32 v{t0}, 31, v0')
    a(f'v_lshlrev_b32 v{t0}, 8, v{t0}')
    a(f'v_mov_b32 v{t1}, 0')
    a(f's_mov_b32 {T[1]}, {CNT2}')
    a(f'buffer_store_dword v{t1}, v{t0}, {SWS}, {T[1]} offen sc1')
    a.label(Lnz)
    srd(a, SA, P_X, 2048 * 1024)
    a(f's_lshl_b32 {T[1]}, {sW}, 2')
    a(f's_add_u32 {T[1]}, {T[1]}, {sWave}')
    a(f's_lshl_b32 {T[1]}, {T[1]}, 11')
    a(f'v_lshlrev_b32 v{t0}, 4, v0')
    a(f'buffer_load_dwordx4 {vr(XR[0], 4)}, v{t0}, {SA}, {T[1]} offen')
    a(f'buffer_load_dwordx4 {vr(XR[1], 4)}, v{t0}, {SA}, {T[1]} offen offset:1024')
    a(f's_lshr_b32 {T[2]}, {sWave}, 1')
    a(f's_lshl_b32 {T[3]}, {sCP}, 1')
    a(f's_add_u32 {T[3]}, {T[3]}, {T[2]}')
    a(f's_lshl_b32 {T[3]}, {T[3]}, 8')
    a(f's_and_b32 {T[4]}, {sWave}, 1')
    a(f's_lshl_b32 {T[4]}, {T[4]}, 7')
    a(f's_add_u32 {T[3]}, {T[3]}, {T[4]}')
    a(f'v_lshlrev_b32 v{t1}, 1, v0')
    for i, p in enumerate((P_LA, P_AI, P_CR, P_CI)):
        srd(a, SB, p, 512 * 128 * 2)
        a(f'buffer_load_ushort v{PR + i}, v{t1}, {SB}, {T[3]} offen')
    a(f'v_mov_b32 v{t2}, {PAIRC}')
    a(f'v_mov_b32 v{t3}, 0')
    a(f'v_mov_b32 v{t4}, 0')
    for o in (0, 4, 8, 12, 16, 20, 24):
        a(f'ds_write_b32 v{t2}, v{t3} offset:{o}')
    a('s_waitcnt lgkmcnt(0)')
    a('s_barrier')
    a(f's_and_b32 {T[19]}, {sW}, 15')
    a(f's_mul_i32 {T[19]}, {T[19]}, {32 * 3584}')
    a(f's_lshr_b32 {T[17]}, {sW}, 4')
    a(f's_mul_i32 {T[17]}, {T[17]}, 224')
    a(f's_add_u32 {T[19]}, {T[19]}, {T[17]}')
    Lq2 = a.newlabel('L_q2')
    for qq in range(2):
        if qq == 1:
            a(f's_cmp_eq_u32 {sWave}, 3')
            a(f's_cbranch_scc1 {Lq2}')
        a(f's_lshl_b32 {T[16]}, {sWave}, 6')
        if qq:
            a(f's_add_u32 {T[16]}, {T[16]}, 256')
        a(f'v_add_u32 v30, {T[16]}, v0')
        a(f's_mov_b32 {T[18]}, 4682')
        a(f'v_mul_lo_u32 v31, v30, {T[18]}')
        a(f'v_lshrrev_b32 v31, 16, v31')
        a(f'v_mul_u32_u24 v32, 14, v31')
        a(f'v_sub_u32 v32, v30, v32')
        a(f's_mov_b32 {T[18]}, 3584')
        a(f'v_mul_lo_u32 v31, v31, {T[18]}')
        a(f'v_lshl_add_u32 v31, v32, 4, v31')
        a(f's_lshl_b32 {T[17]}, {T[16]}, 4')
        srd(a, SB, P_WG, 512 * 3584)
        a(f's_add_u32 m0, {T[17]}, {STG_G}')
        a('s_nop 0')
        a(f'buffer_load_dwordx4 v31, {SB}, {T[19]} offen lds')
        srd(a, SB, P_WU, 512 * 3584)
        a(f's_add_u32 m0, {T[17]}, {STG_U}')
        a('s_nop 0')
        a(f'buffer_load_dwordx4 v31, {SB}, {T[19]} offen lds')
    a.label(Lq2)

    a(f's_mul_i32 {sTAG}, {sTAG}, 1664525')
    a(f's_add_u32 {sTAG}, {sTAG}, 1013904223')
    Lw_ = a.newlabel('L_w3')
    Lwd_ = a.newlabel('L_w3d')
    a(f's_cmp_eq_u32 {sWave}, 3')
    a(f's_cbranch_scc1 {Lw_}')
    a('s_waitcnt vmcnt(8)')
    a(f's_branch {Lwd_}')
    a.label(Lw_)
    a('s_waitcnt vmcnt(6)')
    a.label(Lwd_)
    stamp(a, 'xrow')
    S, Q, ONE = [16, 18], [17, 19], 20
    a(f'v_mov_b32 v{ONE}, 0x3f803f80')
    for r in range(2):
        a(f'v_mov_b32 v{S[r]}, 0')
        a(f'v_mov_b32 v{Q[r]}, 0')
    for i in range(4):
        for r in range(2):
            a(f'v_dot2_f32_bf16 v{S[r]}, v{XR[r] + i}, v{ONE}, v{S[r]}')
            a(f'v_dot2_f32_bf16 v{Q[r]}, v{XR[r] + i}, v{XR[r] + i}, v{Q[r]}')
    for m in ('row_shr:1 row_mask:0xf', 'row_shr:2 row_mask:0xf', 'row_shr:4 row_mask:0xf', 'row_shr:8 row_mask:0xf',
              'row_bcast:15 row_mask:0xa', 'row_bcast:31 row_mask:0xc'):
        for r in range(2):
            a(f'v_add_f32_dpp v{S[r]}, v{S[r]}, v{S[r]} {m} bank_mask:0xf')
            a(f'v_add_f32_dpp v{Q[r]}, v{Q[r]}, v{Q[r]} {m} bank_mask:0xf')
    ln_finish2(a, S, Q, [21, 22])
    GRN = 24
    a(f'v_cvt_pk_bf16_f32 v{GRN}, v{S[0]}, v{Q[0]}')
    a(f'v_cvt_pk_bf16_f32 v{GRN + 2}, v{S[1]}, v{Q[1]}')
    a(f'v_mov_b32 v{GRN + 1}, {sTAG}')
    a(f'v_mov_b32 v{GRN + 3}, {sTAG}')
    a(f's_lshl_b32 {T[1]}, {sW}, 2')
    a(f's_add_u32 {T[1]}, {T[1]}, {sWave}')
    a(f's_lshl_b32 {T[1]}, {T[1]}, 4')
    a(f's_add_u32 {T[1]}, {T[1]}, {STATS}')
    a(f'v_mov_b32 v21, 0')
    a(f's_mov_b64 {sEX}, exec')
    a(f's_mov_b32 exec_lo, 0')
    a(f's_mov_b32 exec_hi, 0x80000000')
    a(f'buffer_store_dwordx4 {vr(GRN, 4)}, v21, {SWS}, {T[1]} offen sc1')
    a(f's_mov_b64 exec, {sEX}')
    stamp(a, 'pub')
    Lw_ = a.newlabel('L_w3')
    Lwd_ = a.newlabel('L_w3d')
    a(f's_cmp_eq_u32 {sWave}, 3')
    a(f's_cbranch_scc1 {Lw_}')
    a('s_waitcnt vmcnt(5)')
    a(f's_branch {Lwd_}')
    a.label(Lw_)
    a('s_waitcnt vmcnt(3)')
    a.label(Lwd_)
    stamp(a, 'par')

    a('s_setprio 2')
    LAR, AIM, CR, CI = PR, PR + 1, PR + 2, PR + 3
    DT, AL, TH = 16, 17, 18
    for i in range(4):
        a(f'v_lshlrev_b32 v{PR + i}, 16, v{PR + i}')
    a(f's_lshl_b32 {T[3]}, {sLDT}, 16')
    a(f's_and_b32 {T[4]}, {sLDT}, 0xffff0000')
    a(f's_cmp_eq_u32 {T[2]}, 0')
    a(f's_cselect_b32 {T[3]}, {T[3]}, {T[4]}')
    a(f'v_mov_b32 v{DT}, {LOG2E}')
    a(f'v_mul_f32 v{LAR}, v{LAR}, v{DT}')
    a(f'v_mul_f32 v{DT}, {T[3]}, v{DT}')
    a(f'v_exp_f32 v{LAR}, v{LAR}')
    a(f'v_exp_f32 v{DT}, v{DT}')
    a(f'v_cvt_pk_bf16_f32 v{19}, v{LAR}, v{DT}')
    a(f'v_lshlrev_b32 v{LAR}, 16, v19')
    a(f'v_and_b32 v{DT}, 0xffff0000, v19')
    a(f'v_mul_f32 v{AL}, v{LAR}, v{DT}')
    a(f'v_mul_f32 v{TH}, v{AIM}, v{DT}')
    a(f'v_mul_f32 v{AL}, {hex(LOG2E | 0x80000000)}, v{AL}')
    a(f'v_mul_f32 v{TH}, {hex(INV2PI)}, v{TH}')
    a(f'v_add_f32 v{DT}, v{DT}, v{DT}')
    a(f'v_mul_f32 v{CR}, v{CR}, v{DT}')
    a(f'v_mul_f32 v{CI}, v{CI}, v{DT}')
    WG, WGN, WE, WEN = 20, 22, 24, 26
    ZG0, ZG1 = [28, 30], [32, 34]
    ZE0, ZE1 = [36, 38], [40, 42]
    MM = [44, 45, 46, 47]
    AA = [48, 49, 50, 51]
    spec = [(WG, '0x42000000', True), (WE, '1.0', False), (ZE1[0], '0x41800000', False), (ZG1[1], '0x44800000', True)]
    for k, (d, p, neg) in enumerate(spec):
        a(f'v_mul_f32 v{MM[k]}, {p}, v{AL}')
        a(f'v_mul_f32 v{AA[k]}, {p}, v{TH}')
    for k, (d, p, neg) in enumerate(spec):
        a(f'v_exp_f32 v{MM[k]}, v{MM[k]}')
        a(f'v_fract_f32 v{AA[k]}, v{AA[k]}')
    for k, (d, p, neg) in enumerate(spec):
        a(f'v_cos_f32 v{d}, v{AA[k]}')
        a(f'v_sin_f32 v{d + 1}, v{AA[k]}')
    for k, (d, p, neg) in enumerate(spec):
        a(f'v_mul_f32 v{d}, v{d}, v{MM[k]}')
        if neg:
            a(f'v_mul_f32_e64 v{d + 1}, -v{d + 1}, v{MM[k]}')
        else:
            a(f'v_mul_f32 v{d + 1}, v{d + 1}, v{MM[k]}')
    for (w, wn) in ((WG, WGN), (WE, WEN)):
        a(f'v_sub_f32 v{wn}, 0, v{w + 1}')
        a(f'v_mov_b32 v{wn + 1}, v{w}')
    a(f'v_mul_f32 v{ZG1[0]}, v{CR}, v{ZG1[1]}')
    a(f'v_mul_f32 v{ZG1[0] + 1}, v{CR}, v{ZG1[1] + 1}')
    a(f'v_fmac_f32 v{ZG1[0]}, v{CI}, v{ZG1[1] + 1}')
    a(f'v_fma_f32 v{ZG1[0] + 1}, -v{CI}, v{ZG1[1]}, v{ZG1[0] + 1}')
    a(f'v_mov_b32 v{ZG0[0]}, v{CR}')
    a(f'v_sub_f32 v{ZG0[0] + 1}, 0, v{CI}')
    a(f'v_mov_b32 v{ZE0[0]}, 1.0')
    a(f'v_mov_b32 v{ZE0[0] + 1}, 0')
    AE, AG = 52, 53
    a(f's_mul_i32 {T[8]}, {T[2]}, {TAB_CH}')
    a(f's_and_b32 {T[9]}, {sWave}, 1')
    a(f's_lshl_b32 {T[9]}, {T[9]}, 8')
    a(f's_add_u32 {T[9]}, {T[8]}, {T[9]}')
    a(f'v_lshl_add_u32 v{AE}, v0, 2, {T[9]}')
    a(f'v_add_u32 v{AG}, {TAB_G}, v{AE}')
    PK = [54, 55, 56, 57]
    TM = [58, 60, 62, 64]

    def cs_a(z, wn, k):
        return [f'v_pk_mul_f32 {vr(TM[k], 2)}, {vr(z, 2)}, {vr(wn, 2)} op_sel:[1,0] op_sel_hi:[1,1]',
                f'v_cvt_pk_bf16_f32 v{PK[k]}, v{z}, v{z + 1}']

    def cs_b(z, zn, w, addr, off, k):
        return [f'v_pk_fma_f32 {vr(zn, 2)}, {vr(z, 2)}, {vr(w, 2)}, {vr(TM[k], 2)} op_sel:[0,0,0] op_sel_hi:[0,1,1]',
                f'ds_write_b32 v{addr}, v{PK[k]} offset:{off}']
    Lt = a.newlabel('L_tab')
    a(f's_mov_b32 {sIt}, 0')
    a.label(Lt)
    for i in range(8):
        chains = [(ZG0[i & 1], ZG0[(i + 1) & 1], WG, WGN, AG, i * TROW),
                  (ZG1[i & 1], ZG1[(i + 1) & 1], WG, WGN, AG, (32 + i) * TROW)]
        e = i >> 1
        if i & 1 == 0:
            chains.append((ZE0[e & 1], ZE0[(e + 1) & 1], WE, WEN, AE, eoff(e)))
        else:
            chains.append((ZE1[e & 1], ZE1[(e + 1) & 1], WE, WEN, AE, eoff(16) + eoff(e)))
        pa = [cs_a(z, wn, k) for k, (z, zn, w, wn, ad, off) in enumerate(chains)]
        pb = [cs_b(z, zn, w, ad, off, k) for k, (z, zn, w, wn, ad, off) in enumerate(chains)]
        for grp in (pa, pb):
            for n_ in range(2):
                for c_ in grp:
                    a(c_[n_])
    a(f'v_add_u32 v{AG}, {8 * TROW}, v{AG}')
    a(f'v_add_u32 v{AE}, {eoff(4)}, v{AE}')
    a(f's_add_u32 {sIt}, {sIt}, 1')
    a(f's_cmp_lt_u32 {sIt}, 4')
    a(f's_cbranch_scc1 {Lt}')
    a(f'v_cvt_pk_bf16_f32 v{PK[0]}, v{ZE1[0]}, v{ZE1[0] + 1}')
    a(f'ds_write_b32 v{AE}, v{PK[0]} offset:{eoff(32) - 4 * eoff(4)}')
    stamp(a, 'tabdone')
    a('s_waitcnt vmcnt(1)')
    a(f'v_mov_b32 v66, {PAIRC + 24}')
    a('v_mov_b32 v67, 1')
    a(f's_mov_b64 {sEX}, exec')
    a('s_mov_b64 exec, 1')
    a('ds_add_u32 v66, v67')
    a(f's_mov_b64 exec, {sEX}')
    a(f's_lshl_b32 {T[9]}, {T[2]}, 2')
    a(f's_add_u32 {T[9]}, {T[9]}, {PAIRC}')
    a(f'v_mov_b32 v16, {T[9]}')
    a(f'v_mov_b32 v17, 1')
    a('s_waitcnt lgkmcnt(0)')
    a(f's_mov_b64 {sEX}, exec')
    a('s_mov_b64 exec, 1')
    a('ds_add_u32 v16, v17')
    a(f's_mov_b64 exec, {sEX}')
    Lsp = a.newlabel('L_pair')
    Lspd = a.newlabel('L_paird')
    a(f's_mov_b32 {sSpin}, 0')
    a.label(Lsp)
    a('ds_read_b32 v17, v16')
    a(f's_add_u32 {sSpin}, {sSpin}, 1')
    a('s_waitcnt lgkmcnt(0)')
    a('v_cmp_gt_u32 vcc, 2, v17')
    a(f's_cmp_ge_u32 {sSpin}, {SPIN_MAX * 8}')
    a(f's_cbranch_scc1 {Lspd}')
    a(f's_cbranch_vccnz {Lsp}')
    a.label(Lspd)
    stamp(a, 'S1')

    AL15, GG_ = 16, 17
    a(f'v_and_b32 v{AL15}, 15, v0')
    a(f'v_lshrrev_b32 v{GG_}, 4, v0')
    BG = 18
    a(f'v_mul_u32_u24 v{BG}, {TROW}, v{AL15}')
    a(f'v_lshl_add_u32 v{BG}, v{GG_}, 4, v{BG}')
    a(f's_add_u32 {T[9]}, {T[8]}, {TAB_G}')
    a(f'v_add_u32 v{BG}, {T[9]}, v{BG}')
    KA = 19
    a(f's_mul_i32 {T[9]}, {T[2]}, {4 * KCS}')
    a(f's_add_u32 {T[9]}, {T[9]}, {KC + 4088 - 32}')
    a(f'v_lshlrev_b32 v{KA}, 6, v{AL15}')
    a(f'v_lshl_add_u32 v{KA}, v{GG_}, 3, v{KA}')
    a(f'v_sub_u32 v{KA}, {T[9]}, v{KA}')
    GF = [32, 64]
    EF0, EF1 = 96, 128
    ACC = 160
    EA0, EA1 = 20, 21

    def rho_addr(j):
        base = 128 << j
        seq = []
        for rt, dst in enumerate((EA0, EA1)):
            tmp = 22 + rt
            seq.append([
                f'v_add_u32 v{dst}, {base + 16 * rt}, v{AL15}',
                f'v_cvt_f32_u32 v{dst}, v{dst}',
                f'v_cvt_pk_bf16_f32 v{dst}, v{dst}, v{dst}',
                f'v_lshlrev_b32 v{dst}, 16, v{dst}',
                f'v_cvt_u32_f32 v{dst}, v{dst}',
                f'v_subrev_u32 v{dst}, {base}, v{dst}',
                f'v_lshrrev_b32 v{tmp}, 2, v{dst}',
                f'v_lshrrev_b32 v{tmp + 2}, 4, v{dst}',
                f'v_mul_u32_u24 v{dst}, 576, v{dst}',
                f'v_add_u32 v{tmp}, v{tmp}, v{tmp + 2}',
                f'v_lshl_add_u32 v{dst}, v{tmp}, 5, v{dst}',
                f'v_lshl_add_u32 v{dst}, v{GG_}, 4, v{dst}',
                f'v_add_u32 v{dst}, {T[8]}, v{dst}'])
        for x, y in zip(*seq):
            a(x)
            a(y)

    def load_g(slot, vv):
        for s in range(8):
            a(f'ds_read_b128 {vr(GF[slot] + 4 * s, 4)}, v{BG} offset:{vv * 16 * TROW + 64 * s}')

    def kchain(tiles):
        def mm(k):
            for (gs, acc) in tiles:
                c0 = '0' if k == 0 else vr(acc, 4)
                c1 = '0' if k == 0 else vr(acc + 4, 4)
                a(f'v_mfma_f32_16x16x32_bf16 {vr(acc, 4)}, {vr(EF0 + 4 * k, 4)}, {vr(GF[gs] + 4 * k, 4)}, {c0}')
                a(f'v_mfma_f32_16x16x32_bf16 {vr(acc + 4, 4)}, {vr(EF1 + 4 * k, 4)}, {vr(GF[gs] + 4 * k, 4)}, {c1}')
        for s in range(8):
            a(f'ds_read_b128 {vr(EF0 + 4 * s, 4)}, v{EA0} offset:{64 * s}')
            a(f'ds_read_b128 {vr(EF1 + 4 * s, 4)}, v{EA1} offset:{64 * s}')
            if s >= 3:
                a(f's_waitcnt lgkmcnt(6)')
                mm(s - 3)
        for k in (5, 6, 7):
            a(f's_waitcnt lgkmcnt({2 * (7 - k)})')
            mm(k)

    def kr_write(acc, vv):
        for rt in range(2):
            b = acc + 4 * rt
            a(f'v_cvt_pk_bf16_f32 v{24 + 2 * rt}, v{b + 3}, v{b + 2}')
            a(f'v_cvt_pk_bf16_f32 v{25 + 2 * rt}, v{b + 1}, v{b}')
        if vv:
            a(f'v_subrev_u32 v28, {1024 * vv}, v{KA}')
            ka = 28
        else:
            ka = KA
        a(f'ds_write_b64 v{ka}, v[24:25] offset:32')
        a(f'ds_write_b64 v{ka}, v[26:27]')
    Lp1 = a.newlabel('L_kpart1')
    Lpe = a.newlabel('L_kparte')
    a(f's_and_b32 {T[5]}, {sWave}, 1')
    a(f's_cmp_eq_u32 {T[5]}, 0')
    a(f's_cbranch_scc0 {Lp1}')
    load_g(0, 0)
    rho_addr(0)
    kchain([(0, ACC)])
    rho_addr(1)
    kchain([(0, ACC + 8)])
    a(f'v_cmp_gt_u32 vcc, 8, v{AL15}')
    for i in range(8):
        a(f'v_cndmask_b32 v{ACC + i}, v{ACC + 8 + i}, v{ACC + i}, vcc')
    kr_write(ACC, 0)
    a(f's_branch {Lpe}')
    a.label(Lp1)
    load_g(0, 1)
    rho_addr(2)
    kchain([(0, ACC)])
    load_g(0, 2)
    load_g(1, 3)
    rho_addr(3)
    kr_write(ACC, 1)
    kchain([(0, ACC + 8), (1, ACC + 16)])
    kr_write(ACC + 8, 2)
    kr_write(ACC + 16, 3)
    a.label(Lpe)
    a(f's_mul_i32 {T[9]}, {T[2]}, {4 * KCS}')
    a(f's_mul_i32 {T[11]}, {T[5]}, {2 * KCS}')
    a(f's_add_u32 {T[9]}, {T[9]}, {T[11]}')
    a(f's_add_u32 {T[9]}, {T[9]}, {KC + 4096}')
    a(f'v_lshl_add_u32 v28, v{AL15}, 2, {T[9]}')
    a(f'v_mov_b32 v29, 0')
    a(f'ds_write_b32 v28, v29')
    a(f'ds_write_b32 v28, v29 offset:{KCS}')
    a('s_setprio 0')
    stamp(a, 'C2')


UP = 68


def lds_spin(a, vaddr, vtmp, cmp_, label, sleep=True):
    L = a.newlabel(label)
    Ld = a.newlabel(label + 'd')
    a(f's_mov_b32 {sSpin}, 0')
    a.label(L)
    a(f'ds_read_b32 {vtmp}, {vaddr}')
    a(f's_add_u32 {sSpin}, {sSpin}, 1')
    a('s_waitcnt lgkmcnt(0)')
    a(f'{cmp_}, {vtmp}')
    a(f's_cmp_ge_u32 {sSpin}, {SPIN_MAX * 64}')
    a(f's_cbranch_scc1 {Ld}')
    a(f's_cbranch_vccz {Ld}')
    if sleep:
        a('s_sleep 1')
    a(f's_branch {L}')
    a.label(Ld)


def upath(a, dbg):
    t0, t1, t2, t3, t4 = 4, 5, 6, 7, 8
    sUV = T[15]
    a(f's_sub_u32 {sUV}, {sWave}, 4')
    srd(a, SA, P_X, 2048 * 1024)
    a(f'v_lshrrev_b32 v{t0}, 1, v0')
    a(f'v_and_b32 v{t1}, 1, v0')
    a(f'v_lshlrev_b32 v{t1}, 4, v{t1}')
    a(f'v_lshl_add_u32 v{t0}, v{t0}, 10, v{t1}')
    a(f's_lshl_b32 {T[7]}, {sY}, 16')
    a(f's_lshl_b32 {T[8]}, {sX}, 7')
    a(f's_add_u32 {T[7]}, {T[7]}, {T[8]}')
    a(f's_lshl_b32 {T[8]}, {sUV}, 5')
    a(f's_add_u32 {T[7]}, {T[7]}, {T[8]}')
    a(f's_lshl_b32 {T[8]}, {sUV}, 11')
    a(f's_add_u32 m0, {T[8]}, {XST}')
    a('s_nop 0')
    a(f'buffer_load_dwordx4 v{t0}, {SA}, {T[7]} offen lds')
    a(f's_add_u32 m0, m0, 1024')
    a(f's_add_u32 {T[7]}, {T[7]}, {32 * 1024}')
    a(f'buffer_load_dwordx4 v{t0}, {SA}, {T[7]} offen lds')
    Lnto = a.newlabel('L_notouch0')
    a(f's_cmp_eq_u32 {sUV}, 3')
    a(f's_cbranch_scc0 {Lnto}')
    a('v_mov_b32 v30, 0')
    a(f's_lshl_b32 {T[8]}, {sW}, 6')
    a(f's_add_u32 {T[8]}, {T[8]}, {STATS}')
    a(f'buffer_load_dword v31, v30, {SWS}, {T[8]} offen sc1')
    a(f's_lshl_b32 {T[8]}, {sX}, 9')
    a(f's_lshr_b32 {T[9]}, {sY}, 4')
    a(f's_lshl_b32 {T[9]}, {T[9]}, 8')
    a(f's_add_u32 {T[8]}, {T[8]}, {T[9]}')
    a(f's_add_u32 {T[8]}, {T[8]}, {XF}')
    a(f'buffer_load_dword v31, v30, {SWS}, {T[8]} offen sc1')
    a(f's_lshl_b32 {T[8]}, {sW}, 2')
    a(f's_add_u32 {T[8]}, {T[8]}, {PREPF}')
    a(f'buffer_load_dword v31, v30, {SWS}, {T[8]} offen sc1')
    a.label(Lnto)
    a('s_barrier')
    a(f'v_and_b32 v{t1}, 15, v0')
    a(f'v_lshrrev_b32 v{t2}, 2, v{t1}')
    a(f'v_lshrrev_b32 v{t3}, 4, v0')
    a(f'v_lshl_add_u32 v{t2}, v{t3}, 3, v{t2}')
    a(f'v_lshlrev_b32 v{t2}, 5, v{t2}')
    a(f'v_and_b32 v9, 3, v0')
    a(f'v_lshl_add_u32 v{t2}, v9, 3, v{t2}')
    a(f's_lshl_b32 {T[8]}, {sUV}, 11')
    a(f's_add_u32 {T[8]}, {T[8]}, {XST}')
    a(f'v_add_u32 v{t2}, {T[8]}, v{t2}')
    a(f'v_lshlrev_b32 v{t1}, 6, v{t1}')
    a(f'v_lshl_add_u32 v{t1}, v{t3}, 4, v{t1}')
    a(f's_lshl_b32 {T[10]}, {sY}, 16')
    a(f's_lshl_b32 {T[11]}, {sX}, 13')
    a(f's_add_u32 {T[10]}, {T[10]}, {T[11]}')
    a(f's_lshl_b32 {T[11]}, {sUV}, 10')
    a(f's_add_u32 {T[10]}, {T[10]}, {T[11]}')
    a(f's_add_u32 {T[10]}, {T[10]}, {XT}')
    a('s_waitcnt vmcnt(0) lgkmcnt(0)')
    stamp(a, 'xtile')
    XD = 12
    for h in range(2):
        for rd in range(2):
            a(f'ds_read_b64_tr_b16 {vr(XD + 4 * h + 2 * rd, 2)}, v{t2} offset:{1024 * h + 128 * rd}')
    a(f's_mul_i32 {sTAG}, {sTAG}, 1664525')
    a(f's_add_u32 {sTAG}, {sTAG}, 1013904223')
    a(f's_add_u32 {T[11]}, {T[10]}, 4096')
    a('s_waitcnt lgkmcnt(0)')
    a(f'buffer_store_dwordx4 {vr(XD, 4)}, v{t1}, {SWS}, {T[10]} offen sc1')
    a(f'buffer_store_dwordx4 {vr(XD + 4, 4)}, v{t1}, {SWS}, {T[11]} offen sc1')
    a(f'v_mov_b32 v22, {PAIRC + 12}')
    a(f'v_mov_b32 v23, 1')
    a('s_waitcnt vmcnt(0)')
    a(f's_mov_b64 {sEX}, exec')
    a('s_mov_b64 exec, 1')
    a('ds_add_rtn_u32 v24, v22, v23')
    a('s_waitcnt lgkmcnt(0)')
    a(f'v_readfirstlane_b32 {T[8]}, v24')
    Lnl = a.newlabel('L_xnotlast')
    a(f's_cmp_eq_u32 {T[8]}, 3')
    a(f's_cbranch_scc0 {Lnl}')
    a(f's_lshl_b32 {T[8]}, {sX}, 9')
    a(f's_lshr_b32 {T[11]}, {sY}, 4')
    a(f's_lshl_b32 {T[11]}, {T[11]}, 8')
    a(f's_add_u32 {T[8]}, {T[8]}, {T[11]}')
    a(f's_and_b32 {T[11]}, {sY}, 15')
    a(f's_lshl_b32 {T[11]}, {T[11]}, 2')
    a(f's_add_u32 {T[8]}, {T[8]}, {T[11]}')
    a(f's_add_u32 {T[8]}, {T[8]}, {XF}')
    a(f'v_mov_b32 v23, {sTAG}')
    a(f'v_mov_b32 v24, 0')
    a(f'buffer_store_dword v23, v24, {SWS}, {T[8]} offen sc1')
    a.label(Lnl)
    a(f's_mov_b64 exec, {sEX}')
    stamp(a, 'xflag')
    a(f'v_mov_b32 v40, {PAIRC + 24}')
    lds_spin(a, 'v40', 'v41', 'v_cmp_gt_u32 vcc, 4', 'L_stg')
    wprep(a)
    stamp(a, 'prepd')
    a(f'v_lshrrev_b32 v10, 3, v0')
    a(f'v_lshlrev_b32 v10, 16, v10')
    a(f'v_bfe_u32 v11, v0, 2, 1')
    a(f'v_lshl_add_u32 v10, v11, 12, v10')
    a(f'v_and_b32 v11, 3, v0')
    a(f'v_lshl_add_u32 v10, v11, 4, v10')
    a(f's_lshl_b32 {T[10]}, {sUV}, 19')
    a(f's_lshl_b32 {T[11]}, {sX}, 13')
    a(f's_add_u32 {T[10]}, {T[10]}, {T[11]}')
    a(f's_lshl_b32 {T[11]}, {sY}, 7')
    a(f's_add_u32 {T[10]}, {T[10]}, {T[11]}')
    a(f's_add_u32 {T[10]}, {T[10]}, {XT}')
    sGA = T[12]
    a(f's_lshl_b32 {sGA}, {sUV}, 12')
    a(f's_add_u32 {sGA}, {sGA}, {STATS}')
    XC = [12, 16]
    GR = 20

    def gran_loads():
        for k in range(4):
            a(f'buffer_load_dwordx4 {vr(GR + 4 * k, 4)}, v9, {SWS}, {sGA} offen offset:{16 * k} sc1')
    a(f'v_lshlrev_b32 v9, 6, v0')
    gran_loads()
    Lx = a.newlabel('L_xpoll')
    Lxd = a.newlabel('L_xok')
    Lxo = a.newlabel('L_xother')
    Lxe = a.newlabel('L_xend')
    a(f'v_mov_b32 v38, {PAIRC + 16}')
    a(f's_mov_b32 {sSpin}, 0')
    a(f's_cmp_eq_u32 {sWave}, 7')
    a(f's_cbranch_scc0 {Lxo}')
    a(f's_lshl_b32 {T[8]}, {sX}, 9')
    a(f's_add_u32 {T[8]}, {T[8]}, {XF}')
    a(f'v_bfe_u32 v36, v0, 4, 1')
    a(f'v_lshlrev_b32 v36, 8, v36')
    a(f'v_and_b32 v37, 15, v0')
    a(f'v_lshl_add_u32 v36, v37, 2, v36')
    a.label(Lx)
    a(f'buffer_load_dword v37, v36, {SWS}, {T[8]} offen sc1')
    a(f's_add_u32 {sSpin}, {sSpin}, 1')
    a('s_waitcnt vmcnt(0)')
    a(f'v_cmp_ne_u32 vcc, {sTAG}, v37')
    a(f's_cmp_ge_u32 {sSpin}, {SPIN_MAX}')
    a(f's_cbranch_scc1 {Lxd}')
    a(f's_cbranch_vccz {Lxd}')
    a('s_sleep 2')
    a(f's_branch {Lx}')
    a.label(Lxd)
    a(f'v_mov_b32 v39, 1')
    a('ds_write_b32 v38, v39')
    a(f's_branch {Lxe}')
    a.label(Lxo)
    lds_spin(a, 'v38', 'v39', 'v_cmp_eq_u32 vcc, 0', 'L_xsp')
    a.label(Lxe)
    stamp(a, 'xok')
    a(f'buffer_load_dwordx4 {vr(XC[0], 4)}, v10, {SWS}, {T[10]} offen')
    a(f'buffer_load_dwordx4 {vr(XC[1], 4)}, v10, {SWS}, {T[10]} offen offset:64')
    a(f'v_mov_b32 v40, {PAIRC + 8}')
    a(f'v_mov_b32 v41, 1')
    a('s_waitcnt vmcnt(2)')
    a(f's_mov_b64 {sEX}, exec')
    a('s_mov_b64 exec, 1')
    a('ds_add_rtn_u32 v42, v40, v41')
    a('s_waitcnt lgkmcnt(0)')
    a(f'v_readfirstlane_b32 {T[1]}, v42')
    a(f's_cmp_eq_u32 {T[1]}, 3')
    Lnl2 = a.newlabel('L_notlast')
    a(f's_cbranch_scc0 {Lnl2}')
    a(f's_lshl_b32 {T[1]}, {sW}, 2')
    a(f's_add_u32 {T[1]}, {T[1]}, {PREPF}')
    a(f'v_mov_b32 v40, {sTAG}')
    a(f'v_mov_b32 v41, 0')
    a(f'buffer_store_dword v40, v41, {SWS}, {T[1]} offen sc1')
    a.label(Lnl2)
    a(f's_mov_b64 exec, {sEX}')
    Lchk = a.newlabel('L_gchk')
    Lok = a.newlabel('L_gok')
    a(f's_mov_b32 {sSpin}, 0')
    a.label(Lchk)
    for r in range(8):
        a(f'v_xor_b32 v{36 + r}, {sTAG}, v{GR + 2 * r + 1}')
    a('v_or3_b32 v36, v36, v37, v38')
    a('v_or3_b32 v39, v39, v40, v41')
    a('v_or3_b32 v42, v42, v43, v36')
    a('v_or_b32 v36, v39, v42')
    a('v_cmp_ne_u32 vcc, 0, v36')
    a(f's_add_u32 {sSpin}, {sSpin}, 1')
    a(f's_cmp_ge_u32 {sSpin}, {SPIN_MAX}')
    a(f's_cbranch_scc1 {Lok}')
    a(f's_cbranch_vccz {Lok}')
    gran_loads()
    a('s_waitcnt vmcnt(0)')
    a(f's_branch {Lchk}')
    a.label(Lok)
    Mv, Rv = 36, 44
    for r in range(8):
        a(f'v_and_b32 v{Rv + r}, 0xffff0000, v{GR + 2 * r}')
        a(f'v_lshlrev_b32 v{Mv + r}, 16, v{GR + 2 * r}')
        a(f'v_rcp_f32 v{Rv + r}, v{Rv + r}')
    a('s_waitcnt vmcnt(0)')
    stamp(a, 'gran')
    E = [52, 60]
    for ch in range(2):
        for k in range(4):
            a(f'v_lshlrev_b32 v{E[ch] + 2 * k}, 16, v{XC[ch] + k}')
            a(f'v_and_b32 v{E[ch] + 2 * k + 1}, 0xffff0000, v{XC[ch] + k}')
            a(f'v_mov_b32 v{UP + 8 + 4 * ch + k}, v{XC[ch] + k}')
    for r in range(8):
        for ch in range(2):
            a(f'v_sub_f32 v{E[ch] + r}, v{E[ch] + r}, v{Mv + r}')
    for ch in range(2):
        for k in range(4):
            a(f'v_cvt_pk_bf16_f32 v{UP + 4 * ch + k}, v{E[ch] + 2 * k}, v{E[ch] + 2 * k + 1}')
    for ch in range(2):
        for k in range(4):
            a(f'v_lshlrev_b32 v{E[ch] + 2 * k}, 16, v{UP + 4 * ch + k}')
            a(f'v_and_b32 v{E[ch] + 2 * k + 1}, 0xffff0000, v{UP + 4 * ch + k}')
    for r in range(8):
        for ch in range(2):
            a(f'v_mul_f32 v{E[ch] + r}, v{E[ch] + r}, v{Rv + r}')
    for ch in range(2):
        for k in range(4):
            a(f'v_cvt_pk_bf16_f32 v{UP + 4 * ch + k}, v{E[ch] + 2 * k}, v{E[ch] + 2 * k + 1}')
    stamp(a, 'udone')


def p12_rest(a, dbg):
    a.comment('---- U waves: u and x into LDS (tables are dead now)')
    Lnu = a.newlabel('L_nouw')
    a(f's_cmp_ge_u32 {sWave}, 4')
    a(f's_cbranch_scc0 {Lnu}')
    a(f's_lshl_b32 {T[6]}, {T[15]}, 10')
    a(f'v_lshl_add_u32 v9, v0, 4, {T[6]}')
    a(f'ds_write_b128 v9, {vr(UP, 4)} offset:{UB + 512}')
    a(f'ds_write_b128 v9, {vr(UP + 4, 4)} offset:{UB + UBS + 512}')
    a(f'ds_write_b128 v9, {vr(UP + 8, 4)} offset:{XB}')
    a(f'ds_write_b128 v9, {vr(UP + 12, 4)} offset:{XB + 4096}')
    a(f's_and_b32 {T[7]}, {sWave}, 1')
    a(f's_mul_i32 {T[7]}, {T[7]}, {UBS}')
    a(f'v_lshl_add_u32 v10, v0, 3, {T[7]}')
    a(f'v_mov_b32 v4, 0')
    a(f'v_mov_b32 v5, 0')
    a(f'ds_write_b64 v10, v[4:5] offset:{UB}')
    a.label(Lnu)
    a(f's_lshr_b32 {T[2]}, {sWave}, 2')

    a(f's_mul_i32 {T[9]}, {T[2]}, {4 * KCS}')
    a(f's_add_u32 {T[9]}, {T[9]}, {KC}')
    a(f'v_and_b32 v16, 255, v1')
    a(f'v_lshl_add_u32 v16, v16, 4, {T[9]}')
    D = 20
    a(f'ds_read_b128 {vr(D, 4)}, v16')
    a(f'ds_read_b64 {vr(D + 4, 2)}, v16 offset:16')
    a('s_waitcnt lgkmcnt(0)')
    C1, C2, C3 = 32, 36, 40
    for k in range(4):
        a(f'v_alignbit_b32 v{C1 + k}, v{D + k + 1}, v{D + k}, 16')
        a(f'v_mov_b32 v{C2 + k}, v{D + k + 1}')
        a(f'v_alignbit_b32 v{C3 + k}, v{D + k + 2}, v{D + k + 1}, 16')
    a(f'ds_write_b128 v16, {vr(C1, 4)} offset:{KCS}')
    a(f'ds_write_b128 v16, {vr(C2, 4)} offset:{2 * KCS}')
    a(f'ds_write_b128 v16, {vr(C3, 4)} offset:{3 * KCS}')
    if dbg == 'K':
        a('s_waitcnt lgkmcnt(0)')
        a(f's_lshl_b32 {T[9]}, {sCP}, 13')
        a(f's_lshl_b32 {T[11]}, {T[2]}, 12')
        a(f's_add_u32 {T[9]}, {T[9]}, {T[11]}')
        a(f's_add_u32 {T[9]}, {T[9]}, {DBGK}')
        a(f'v_and_b32 v17, 255, v1')
        a(f'v_lshlrev_b32 v17, 4, v17')
        a(f'buffer_store_dwordx4 {vr(D, 4)}, v17, {SWS}, {T[9]} offen')
    stamp(a, 'C3')

    a('s_waitcnt lgkmcnt(0)')
    a('s_barrier')
    stamp(a, 'S3')

    Lnc = a.newlabel('L_noconv')
    Lce = a.newlabel('L_convend')
    a(f's_cmp_ge_u32 {sWave}, 4')
    a(f's_cbranch_scc1 {Lnc}')
    VA, VB = 2, 3
    ACC = 4
    AF = [36, 100]
    BF = [68, 132]
    a(f's_lshr_b32 {T[2]}, {sWave}, 1')
    a(f's_and_b32 {T[3]}, {sWave}, 1')
    a(f'v_and_b32 v164, 15, v0')
    a(f'v_lshrrev_b32 v165, 4, v0')
    a(f's_lshl_b32 {T[5]}, {T[3]}, 8')
    a(f'v_lshlrev_b32 v166, 5, v164')
    a(f'v_lshl_add_u32 v166, v165, 4, v166')
    a(f's_mul_i32 {T[4]}, {T[2]}, {UBS}')
    a(f's_sub_u32 {T[4]}, {T[4]}, {T[5]}')
    a(f's_add_u32 {T[4]}, {T[4]}, {UB + 480 - 192}')
    a(f'v_add_u32 v{VB}, {T[4]}, v166')
    a(f'v_and_b32 v166, 3, v164')
    a(f'v_sub_u32 v166, 3, v166')
    a(f'v_mul_u32_u24 v166, {KCS}, v166')
    a(f'v_lshrrev_b32 v167, 2, v164')
    a(f'v_lshlrev_b32 v167, 3, v167')
    a(f'v_sub_u32 v166, v166, v167')
    a(f'v_lshl_add_u32 v166, v165, 4, v166')
    a(f's_mul_i32 {T[4]}, {T[2]}, {4 * KCS}')
    a(f's_sub_u32 {T[4]}, {T[4]}, {T[5]}')
    a(f's_add_u32 {T[4]}, {T[4]}, {KC + 280}')
    a(f'v_add_u32 v{VA}, {T[4]}, v166')

    def conv_loads(q0i):
        s = q0i & 1
        out = []
        for k in range(8):
            offa = 512 * (7 - k) + 64 * (3 - q0i)
            offb = 512 * k + 64 * (3 - q0i)
            out.append(f'ds_read_b128 {vr(BF[s] + 4 * k, 4)}, v{VB} offset:{offb}')
            out.append(f'ds_read_b64 {vr(AF[s] + 4 * k, 2)}, v{VA} offset:{offa}')
            out.append(f'ds_read_b64 {vr(AF[s] + 4 * k + 2, 2)}, v{VA} offset:{offa + 8}')
        return out
    mf = []
    for ct in range(8):
        for q1 in range(ct + 1):
            mf.append((max(q1, ct - q1), ct, q1))
    mf.sort()
    loads = [(q, x) for q in range(4) for x in conv_loads(q)]
    issued = 0
    known = 0
    for q in range(4):
        s = q & 1
        for idx, (lvl, ct, q1) in enumerate(mf):
            need = 24 * q + 3 * (lvl + 1)
            if q == 0 and idx == 0:
                while issued < 15:
                    a(loads[issued][1]); issued += 1
            while issued < need:
                a(loads[issued][1]); issued += 1
            if known < need:
                assert issued - need <= 15
                a(f's_waitcnt lgkmcnt({issued - need})')
                known = need
            first = (q == 0 and (lvl, ct, q1) == min(m for m in mf if m[1] == ct))
            c = '0' if first else vr(ACC + 4 * ct, 4)
            a(f'v_mfma_f32_16x16x32_bf16 {vr(ACC + 4 * ct, 4)}, {vr(AF[s] + 4 * q1, 4)}, {vr(BF[s] + 4 * (ct - q1), 4)}, {c}')
            if issued < len(loads) and issued - known < 15 and loads[issued][0] <= q + 1:
                a(loads[issued][1]); issued += 1
    a(f's_lshl_b32 {T[4]}, {sWave}, 13')
    a(f's_add_u32 {T[4]}, {T[4]}, {PART}')
    a(f'v_lshl_add_u32 v{VA}, v0, 4, {T[4]}')
    for ct in range(8):
        a(f'ds_write_b128 v{VA}, {vr(ACC + 4 * ct, 4)} offset:{1024 * ct}')
    a(f's_branch {Lce}')
    a.label(Lnc)
    wprefetch(a)
    Lnt = a.newlabel('L_notouch')
    a(f's_cmp_eq_u32 {sWave}, 7')
    a(f's_cbranch_scc0 {Lnt}')
    srd(a, SB, P_WD, 1792 * 1024)
    a(f's_mul_i32 {T[5]}, {sW}, 7168')
    a(f'v_lshlrev_b32 v10, 4, v0')
    for i in range(7):
        if i == 4:
            a(f's_add_u32 {T[5]}, {T[5]}, 4096')
        a(f'buffer_load_dwordx4 v[200:203], v10, {SB}, {T[5]} offen offset:{1024 * (i & 3)}')
    a.label(Lnt)
    a.label(Lce)
    a('s_waitcnt lgkmcnt(0)')
    a('s_barrier')
    stamp(a, 'S4')

    a(f's_lshr_b32 {T[2]}, {sWave}, 2')
    a(f's_and_b32 {T[3]}, {sWave}, 3')
    a(f's_lshl_b32 {T[4]}, {T[2]}, 14')
    a(f's_lshl_b32 {T[5]}, {T[3]}, 11')
    a(f's_add_u32 {T[4]}, {T[4]}, {T[5]}')
    a(f's_add_u32 {T[4]}, {T[4]}, {PART}')
    a(f'v_lshl_add_u32 v2, v0, 4, {T[4]}')
    for i in range(2):
        a(f'ds_read_b128 {vr(4 + 8 * i, 4)}, v2 offset:{1024 * i}')
        a(f'ds_read_b128 {vr(8 + 8 * i, 4)}, v2 offset:{1024 * i + 8192}')
    a(f'v_and_b32 v20, 15, v0')
    a(f'v_lshrrev_b32 v21, 4, v0')
    a(f'v_lshlrev_b32 v20, 5, v20')
    a(f'v_lshl_add_u32 v20, v21, 3, v20')
    a(f's_lshl_b32 {T[5]}, {T[3]}, 10')
    a(f'v_add_u32 v20, {T[5]}, v20')
    a(f's_mul_i32 {T[6]}, {T[2]}, {UBS}')
    a(f's_add_u32 {T[6]}, {T[6]}, {UB + 512}')
    a(f'v_add_u32 v21, {T[6]}, v20')
    a(f's_lshl_b32 {T[6]}, {T[2]}, 12')
    a(f's_add_u32 {T[6]}, {T[6]}, {XB}')
    a(f'v_add_u32 v22, {T[6]}, v20')
    for i in range(2):
        a(f'ds_read_b64 {vr(24 + 4 * i, 2)}, v21 offset:{512 * i}')
        a(f'ds_read_b64 {vr(26 + 4 * i, 2)}, v22 offset:{512 * i}')
    a(f's_lshl_b32 {T[7]}, {sDSK}, 16')
    a(f's_and_b32 {T[8]}, {sDSK}, 0xffff0000')
    a(f's_cmp_eq_u32 {T[2]}, 0')
    a(f's_cselect_b32 {T[7]}, {T[7]}, {T[8]}')
    a(f's_lshl_b32 {T[8]}, {sCP}, 1')
    a(f's_add_u32 {T[8]}, {T[8]}, {T[2]}')
    a(f's_lshl_b32 {T[8]}, {T[8]}, 12')
    a(f's_add_u32 {T[8]}, {T[8]}, {HT}')
    a('s_waitcnt lgkmcnt(0)')
    Es = [32, 44]
    for i in range(2):
        Y, Y2 = 4 + 8 * i, 8 + 8 * i
        for k in range(4):
            a(f'v_add_f32 v{Y + k}, v{Y + k}, v{Y2 + k}')
    for i in range(2):
        Uu, Xx, E = 24 + 4 * i, 26 + 4 * i, Es[i]
        for k in range(2):
            a(f'v_lshlrev_b32 v{E + 2 * k}, 16, v{Xx + k}')
            a(f'v_and_b32 v{E + 2 * k + 1}, 0xffff0000, v{Xx + k}')
            a(f'v_lshlrev_b32 v{E + 4 + 2 * k}, 16, v{Uu + k}')
            a(f'v_and_b32 v{E + 4 + 2 * k + 1}, 0xffff0000, v{Uu + k}')
    for i in range(2):
        Y, E = 4 + 8 * i, Es[i]
        for k in range(4):
            a(f'v_fmac_f32 v{Y + k}, {T[7]}, v{E + 4 + k}')
    for i in range(2):
        Y, E = 4 + 8 * i, Es[i]
        for k in range(4):
            a(f'v_add_f32 v{Y + k}, v{Y + k}, v{E + k}')
    for i in range(2):
        Y = 4 + 8 * i
        a(f'v_cvt_pk_bf16_f32 v{56 + 2 * i}, v{Y}, v{Y + 1}')
        a(f'v_cvt_pk_bf16_f32 v{57 + 2 * i}, v{Y + 2}, v{Y + 3}')
    a(f'v_permlane16_swap_b32 v56, v58')
    a(f'v_permlane16_swap_b32 v57, v59')
    a(f'v_and_b32 v20, 15, v0')
    a(f'v_lshlrev_b32 v20, 5, v20')
    a(f'v_lshrrev_b32 v21, 5, v0')
    a(f'v_lshl_add_u32 v20, v21, 4, v20')
    a(f'v_bfe_u32 v21, v0, 4, 1')
    a(f'v_lshl_add_u32 v20, v21, 9, v20')
    a(f'v_add_u32 v20, {T[5]}, v20')
    store_h(a, T[8])
    a('s_waitcnt vmcnt(0)')
    a('s_barrier')
    stamp(a, 'S5')


def wprefetch(a):
    sWBp = T[16]
    PF1 = PAIRC + 20
    a(f's_mul_i32 {sWBp}, {sFB}, {7 * 32768}')
    a(f's_add_u32 {sWBp}, {sWBp}, {WP}')
    a(f'v_mov_b32 v22, {PF1}')
    a(f's_mov_b32 {sSpin}, 0')
    Lo = a.newlabel('L_pfo')
    Lgo = a.newlabel('L_pfgo')
    a(f's_cmp_eq_u32 {sWave}, 4')
    a(f's_cbranch_scc0 {Lo}')
    Lp = a.newlabel('L_prepoll')
    Lpd = a.newlabel('L_prepok')
    a(f'v_lshlrev_b32 v20, 4, v0')
    a(f's_mov_b32 {T[1]}, {PREPF}')
    a.label(Lp)
    a(f'buffer_load_dwordx4 v[16:19], v20, {SWS}, {T[1]} offen sc1')
    a(f's_add_u32 {sSpin}, {sSpin}, 1')
    a('s_waitcnt vmcnt(0)')
    for i_ in range(4):
        a(f'v_xor_b32 v{16 + i_}, {sTAG}, v{16 + i_}')
    a('v_or_b32 v16, v16, v17')
    a('v_or3_b32 v16, v16, v18, v19')
    a('v_cmp_ne_u32 vcc, 0, v16')
    a(f's_cmp_ge_u32 {sSpin}, {SPIN_MAX}')
    a(f's_cbranch_scc1 {Lpd}')
    a(f's_cbranch_vccz {Lpd}')
    a('s_sleep 2')
    a(f's_branch {Lp}')
    a.label(Lpd)
    a.label(Lo)
    stamp(a, 'pfok')


def store_h(a, soff):
    a(f'buffer_store_dwordx4 v[56:59], v20, {SWS}, {soff} offen sc1')


def wprep(a):
    AL15, GG_ = 84, 85
    a(f'v_and_b32 v{AL15}, 15, v0')
    a(f'v_lshrrev_b32 v{GG_}, 4, v0')
    a(f'v_lshrrev_b32 v99, 2, v{AL15}')
    a(f'v_lshrrev_b32 v100, 1, v{GG_}')
    a(f'v_lshl_add_u32 v99, v100, 3, v99')
    a(f'v_mul_u32_u24 v99, 224, v99')
    a(f'v_and_b32 v100, 3, v0')
    a(f'v_lshl_add_u32 v99, v100, 3, v99')
    a(f'v_and_b32 v100, 1, v{GG_}')
    a(f'v_mul_u32_u24 v100, {STG_U - STG_G}, v100')
    a(f'v_add_u32 v99, v99, v100')
    sJ0 = T[16]
    a(f's_sub_u32 {sJ0}, {sWave}, 4')
    a(f's_lshl_b32 {sJ0}, {sJ0}, 1')
    a(f's_lshl_b32 {T[17]}, {sJ0}, 5')
    a(f's_add_u32 {T[17]}, {T[17]}, {STG_G}')
    a(f'v_add_u32 v98, {T[17]}, v99')
    a(f'v_lshlrev_b32 v108, 4, v0')
    a(f'v_lshlrev_b32 v112, 2, v0')
    a(f'v_mov_b32 v136, 0x3f803f80')
    a(f'v_mov_b32 v137, 0x3f803f80')
    a(f's_lshr_b32 {T[17]}, {sW}, 4')
    a(f's_mul_i32 {T[17]}, {T[17]}, 7')
    a(f's_add_u32 {T[17]}, {T[17]}, {sJ0}')
    a(f's_lshl_b32 {T[17]}, {T[17]}, 5')
    a(f's_and_b32 {T[18]}, {sW}, 15')
    a(f's_lshl_b32 {T[18]}, {T[18]}, 1')
    a(f's_add_u32 {T[17]}, {T[17]}, {T[18]}')
    a(f's_lshl_b32 {T[17]}, {T[17]}, 10')
    a(f's_add_u32 {T[17]}, {T[17]}, {WP}')
    a(f's_mul_i32 {T[19]}, {sW}, 896')
    a(f's_lshl_b32 {T[18]}, {sJ0}, 7')
    a(f's_add_u32 {T[19]}, {T[19]}, {T[18]}')
    a(f's_add_u32 {T[19]}, {T[19]}, {CSP}')
    Ld = a.newlabel('L_prepdone')
    for jj in range(2):
        PF = 116 + 8 * jj
        if jj == 1:
            a(f's_cmp_eq_u32 {sWave}, 7')
            a(f's_cbranch_scc1 {Ld}')
            a(f's_add_u32 {T[17]}, {T[17]}, {32 * 1024}')
            a(f's_add_u32 {T[19]}, {T[19]}, 128')
        for kk in range(2):
            for rd in range(2):
                a(f'ds_read_b64_tr_b16 {vr(PF + 4 * kk + 2 * rd, 2)}, v98 offset:{(16 * kk + 4 * rd) * 224 + 32 * jj}')
        a('s_waitcnt lgkmcnt(0)')
        a(f'buffer_store_dwordx4 {vr(PF, 4)}, v108, {SWS}, {T[17]} offen sc1')
        a(f'buffer_store_dwordx4 {vr(PF + 4, 4)}, v108, {SWS}, {T[17]} offen offset:1024 sc1')
        for i in range(4):
            a(f'v_mfma_f32_4x4x4_16b_bf16 v[132:135], v[136:137], {vr(PF + 2 * i, 2)}, {"0" if i == 0 else "v[132:135]"}')
        a(f'v_mov_b32 v110, v132')
        a(f'v_mov_b32 v111, v110')
        a(f'v_permlane32_swap_b32 v110, v111')
        a(f'v_add_f32 v110, v110, v111')
        a(f's_mov_b64 {sEX}, exec')
        a('s_mov_b32 exec_hi, 0')
        a(f'buffer_store_dword v110, v112, {SWS}, {T[19]} offen sc1')
        a(f's_mov_b64 exec, {sEX}')
    a.label(Ld)


def ln_finish2(a, S, Q, t):
    def each(fmt):
        for r in range(2):
            a(fmt.format(S=S[r], Q=Q[r], t=t[r]))
    each('v_mul_f32 v{S}, 0x3b000000, v{S}')
    each('v_mul_f32 v{Q}, 0x3b000000, v{Q}')
    each('v_fma_f32 v{Q}, -v{S}, v{S}, v{Q}')
    each('v_max_f32 v{Q}, 0, v{Q}')
    each('v_cvt_pk_bf16_f32 v{t}, v{Q}, v{Q}')
    each('v_lshlrev_b32 v{t}, 16, v{t}')
    each('v_add_f32 v{t}, 0x3727c5ac, v{t}')
    each('v_cvt_pk_bf16_f32 v{t}, v{t}, v{t}')
    each('v_lshlrev_b32 v{t}, 16, v{t}')
    each('v_sqrt_f32 v{t}, v{t}')
    each('v_cvt_pk_bf16_f32 v{t}, v{t}, v{t}')
    each('v_lshlrev_b32 v{Q}, 16, v{t}')


def ln_finish(a, S, Q, t3, t4):
    a(f'v_mul_f32 v{S}, 0x3b000000, v{S}')
    a(f'v_mul_f32 v{Q}, 0x3b000000, v{Q}')
    a(f'v_fma_f32 v{Q}, -v{S}, v{S}, v{Q}')
    a(f'v_max_f32 v{Q}, 0, v{Q}')
    a(f'v_cvt_pk_bf16_f32 v{t3}, v{Q}, v{Q}')
    a(f'v_lshlrev_b32 v{t3}, 16, v{t3}')
    a(f'v_add_f32 v{t3}, 0x3727c5ac, v{t3}')
    a(f'v_cvt_pk_bf16_f32 v{t3}, v{t3}, v{t3}')
    a(f'v_lshlrev_b32 v{t3}, 16, v{t3}')
    a(f'v_sqrt_f32 v{t3}, v{t3}')
    a(f'v_cvt_pk_bf16_f32 v{t4}, v{t3}, v{t3}')
    a(f'v_lshlrev_b32 v{Q}, 16, v{t4}')


HEADER = """; Fused pre-LN S4D convolution + pre-LN GEGLU FFN, one persistent launch (256 workgroups x 512 threads).
; d_in order: A_u, log_A_real, A_imag, C_real, C_imag, log_dt, D_skip, B_x, w_gate, w_up, w_down ; d_out, d_debug, d_ws
; @launch grid=(256,1,1) block=(512,1,1) lds=%d
.amdgcn_target "amdgcn-amd-amdhsa--gfx950"
.text
.globl %s
.p2align 8
.type %s,@function
""" % (LDS_SIZE, KNAME, KNAME)

FOOTER = """.section .rodata,"a"
.p2align 6
.amdhsa_kernel %s
  .amdhsa_next_free_vgpr 256
  .amdhsa_next_free_sgpr 102
  .amdhsa_accum_offset 256
  .amdhsa_group_segment_fixed_size 0
  .amdhsa_kernarg_size 112
  .amdhsa_user_sgpr_count 2
  .amdhsa_user_sgpr_kernarg_segment_ptr 1
  .amdhsa_system_sgpr_workgroup_id_x 1
.end_amdhsa_kernel
""" % KNAME


def build(upto='all', dbg=None):
    a = Asm()
    STAMPS['on'] = (dbg is not None and dbg.startswith('T'))
    STAMPS['only'] = set(dbg[2:].split(',')) if (dbg and len(dbg) > 2) else None
    STAMPS['names'] = []
    a.label(KNAME)
    entry(a)
    p12(a, dbg)
    if upto in ('p3', 'all'):
        import gen34
        gen34.p3(a, dbg)
        if upto == 'all':
            gen34.p4(a, dbg)
    dump_stamps(a)
    a.label('L_end')
    a('s_endpgm')
    n = a.fix_hazards()
    return HEADER + a.text() + FOOTER, n


if __name__ == '__main__':
    upto = sys.argv[1] if len(sys.argv) > 1 else 'all'
    dbg = sys.argv[2] if len(sys.argv) > 2 and sys.argv[2] != '-' else None
    out = sys.argv[3] if len(sys.argv) > 3 else 'out.s'
    txt, n = build(upto, dbg)
    open(out, 'w').write(txt)
    if dbg and dbg.startswith('T'):
        open(out + '.stamps', 'w').write(' '.join(STAMPS['names']))
    print(f'wrote {out}: {len(txt)} bytes, {txt.count(chr(10))} lines, {n} nops inserted')
```

```python
from gen import *
import gen as G
import math
import struct


def f2h(x):
    return hex(struct.unpack('<I', struct.pack('<f', x))[0])


K1 = f2h(-2.0 * math.sqrt(2.0 / math.pi) * math.log2(math.e))
K2 = f2h(-2.0 * math.sqrt(2.0 / math.pi) * math.log2(math.e) * 0.044715)

H = 128
ACC0 = 16
ACC1 = 32
WF = 48
WF0 = 48
CS = 64
TMP = 80
CSLD = 96
vWD = 112
vHA = 2
vWA = 3
vM, vR = 4, 5
vC1, vC2, vS2S = 6, 113, 114
vL16 = 7
vS1, vS2, vQ1, vQ2 = 8, 9, 10, 11
vCSA = 12
vHD = 13
vT0, vT1 = 14, 15

sGrp, sTq = T[20], T[21]
sWB = T[22]
sGB = T[23]
SWD = SA


class Q:
    def __init__(self, a):
        self.a = a
        self.q = []

    def add(self, tag, n=1):
        self.q += [tag] * n

    def has(self, tag):
        return tag in self.q

    def wait(self, tag):
        last = max(i for i, t in enumerate(self.q) if t == tag)
        n = len(self.q) - 1 - last
        self.a(f's_waitcnt vmcnt({n})')
        del self.q[:last + 1]


def dma_w8(a, j, slot):
    a(f's_lshl_b32 {T[1]}, {sWave}, 12')
    a(f's_add_u32 {T[0]}, {sWB}, {T[1]}')
    a(f's_add_u32 {T[0]}, {T[0]}, {j * 32768}')
    a(f's_add_u32 m0, {T[1]}, {G.WSLOT[slot]}')
    a('s_nop 0')
    for i in range(4):
        a(f'buffer_load_dwordx4 v{vL16}, {SWS}, {T[0]} offen offset:{1024 * i} lds')


def dma_w4(a, j, slot):
    a(f's_lshl_b32 {T[1]}, {sTq}, 13')
    a(f's_add_u32 {T[0]}, {sWB}, {T[1]}')
    a(f's_add_u32 {T[0]}, {T[0]}, {j * 32768}')
    a(f's_add_u32 m0, {T[1]}, {G.WSLOT[slot]}')
    a('s_nop 0')
    for i in range(4):
        a(f'buffer_load_dwordx4 v{vL16}, {SWS}, {T[0]} offen offset:{1024 * i} lds')
    a(f's_add_u32 m0, m0, 4096')
    a(f's_add_u32 {T[0]}, {T[0]}, 4096')
    for i in range(4):
        a(f'buffer_load_dwordx4 v{vL16}, {SWS}, {T[0]} offen offset:{1024 * i} lds')


def dma_h(a, s):
    a(f's_lshl_b32 {T[1]}, {sWave}, 10')
    a(f's_add_u32 m0, {T[1]}, {HRING + (s % NRING) * 8192}')
    a(f's_mov_b32 {T[0]}, {HT + s * 32 * 4096}')
    a(f'buffer_load_dwordx4 v{vHD}, {SWS}, {T[0]} offen lds')


def dma_wd4(a, c):
    a(f's_lshl_b32 {T[1]}, {sTq}, 12')
    a(f's_add_u32 m0, {T[1]}, {(c % NWD) * WDSLOT}')
    a(f's_lshl_b32 {T[0]}, {sTq}, 15')
    a(f's_add_u32 {T[0]}, {T[0]}, {c * 128 * 1024}')
    for i in range(4):
        if i:
            a(f's_add_u32 m0, m0, 1024')
            a(f's_add_u32 {T[0]}, {T[0]}, 8192')
        a(f'buffer_load_dwordx4 v{vWD}, {SWD}, {T[0]} offen lds')


def dma_wd8(a, c):
    a(f's_lshl_b32 {T[1]}, {sWave}, 11')
    a(f's_add_u32 m0, {T[1]}, {(c % NWD) * WDSLOT}')
    a(f's_lshl_b32 {T[0]}, {sWave}, 14')
    a(f's_add_u32 {T[0]}, {T[0]}, {c * 128 * 1024}')
    a(f'buffer_load_dwordx4 v{vWD}, {SWD}, {T[0]} offen lds')
    a(f's_add_u32 m0, m0, 1024')
    a(f's_add_u32 {T[0]}, {T[0]}, 8192')
    a(f'buffer_load_dwordx4 v{vWD}, {SWD}, {T[0]} offen lds')


sWq, sMq, sDq, sM4q = T[16], T[17], T[18], T[19]


def w_pieces(j, slot):
    return [[f's_add_u32 m0, {sMq}, {G.WSLOT[slot] + 1024 * i}',
             f's_add_u32 {T[0]}, {sWq}, {j * 32768 + 1024 * i}',
             f'buffer_load_dwordx4 v{vL16}, {SWS}, {T[0]} offen lds'] for i in range(8)]


def wd_pieces(c):
    return [[f's_add_u32 m0, {sM4q}, {(c % NWD) * WDSLOT + 1024 * i}',
             f's_add_u32 {T[0]}, {sDq}, {c * 131072 + 8192 * i}',
             f'buffer_load_dwordx4 v{vWD}, {SWD}, {T[0]} offen lds'] for i in range(4)]


def mfma_phase(a, acc, slot, pieces=(), first=1, last=30):
    n = 32
    depth = 6
    at = {}
    if pieces:
        m = len(pieces)
        for idx, p in enumerate(pieces):
            k = first + (idx * (last - first)) // max(m - 1, 1) if m > 1 else first
            at.setdefault(k, []).append(p)
    a(f'v_add_u32 v{vWA}, {G.WSLOT[slot]}, v{vL16}')
    a('s_setprio 1')
    for k in range(depth):
        a(f'ds_read_b128 {vr(WF + 4 * (k % 8), 4)}, v{vWA} offset:{1024 * k}')
    for k in range(n):
        if k + depth < n:
            a(f'ds_read_b128 {vr(WF + 4 * ((k + depth) % 8), 4)}, v{vWA} offset:{1024 * (k + depth)}')
            a(f's_waitcnt lgkmcnt({depth})')
        else:
            a(f's_waitcnt lgkmcnt({n - 1 - k})')
        c = '0' if k == 0 else vr(acc, 16)
        a(f'v_mfma_f32_32x32x16_bf16 {vr(acc, 16)}, {vr(WF + 4 * (k % 8), 4)}, {vr(H + 4 * k, 4)}, {c}')
        for p in at.get(k, []):
            for x in p:
                a(x)
    a('s_setprio 0')


def epilogue(a, acc, j):
    for i in range(4):
        a(f'ds_read_b128 {vr(CS + 4 * i, 4)}, v{vCSA} offset:{128 * j + 32 * i}')
    a(f's_add_u32 {T[3]}, {sGB}, {1024 * j}')
    Z = TMP
    for i in range(4):
        a(f's_waitcnt lgkmcnt({3 - i})')
        for k in range(4):
            a(f'v_fmac_f32 v{acc + 4 * i + k}, v{vM}, v{CS + 4 * i + k}')
        if i < 2:
            for k in range(4):
                a(f'v_mul_f32 v{Z + 4 * i + k}, v{acc + 4 * i + k}, v{acc + 4 * i + k}')
    for i in range(8):
        a(f'v_fma_f32 v{Z + i}, v{Z + i}, v{vC2}, v{vC1}')
    for i in range(8):
        a(f'v_mul_f32 v{Z + i}, v{Z + i}, v{acc + i}')
    for i in range(8):
        a(f'v_exp_f32 v{Z + i}, v{Z + i}')
        a(f'v_mul_f32 v{acc + i}, v{acc + i}, v{acc + 8 + i}')
    for i in range(8):
        a(f'v_fma_f32 v{Z + i}, v{Z + i}, v{vS2S}, v{vS2S}')
    for i in range(8):
        a(f'v_rcp_f32 v{Z + i}, v{Z + i}')
    P = TMP + 8
    for i in range(4):
        a(f'v_mul_f32 v{acc + 2 * i}, v{acc + 2 * i}, v{Z + 2 * i}')
        a(f'v_mul_f32 v{acc + 2 * i + 1}, v{acc + 2 * i + 1}, v{Z + 2 * i + 1}')
        a(f'v_cvt_pk_bf16_f32 v{P + i}, v{acc + 2 * i}, v{acc + 2 * i + 1}')
    a(f'v_permlane32_swap_b32 v{P}, v{P + 2}')
    a(f'v_permlane32_swap_b32 v{P + 1}, v{P + 3}')
    a(f'buffer_store_dwordx4 {vr(P, 4)}, v{vL16}, {SWS}, {T[3]} offen sc1')


def stats_final(a):
    ln_finish(a, vS1, vQ1, vT0, vT1)
    a(f'v_cvt_pk_bf16_f32 v{vT0}, v{vS1}, v{vS1}')
    a(f'v_rcp_f32 v{vR}, v{vQ1}')
    a(f'v_lshlrev_b32 v{vT0}, 16, v{vT0}')
    a(f'v_sub_f32 v{vM}, 0, v{vT0}')
    a(f'v_mul_f32 v{vS2S}, v{vQ1}, v{vQ1}')
    a(f'v_mul_f32 v{vC1}, {K1}, v{vR}')
    a(f'v_mul_f32 v{vC2}, v{vR}, v{vR}')
    a(f'v_mul_f32 v{vC2}, v{vC2}, v{vR}')
    a(f'v_mul_f32 v{vC2}, {K2}, v{vC2}')


def p3(a, dbg):
    a.comment('================ P3: LN2 + gate/up GEMM + GEGLU')
    Lb2 = a.newlabel('L_arr2')
    a(f's_cmp_eq_u32 {sWave}, 7')
    a(f's_cbranch_scc0 {Lb2}')
    a(f's_and_b32 {T[1]}, {sW}, 15')
    a(f's_lshl_b32 {T[1]}, {T[1]}, 8')
    a(f's_add_u32 {T[1]}, {T[1]}, {CNT2}')
    arrive(a, T[1], 'v16', 'v17')
    a.label(Lb2)
    a(f's_lshr_b32 {sGrp}, {sWave}, 2')
    a(f's_and_b32 {sTq}, {sWave}, 3')
    a(f's_mul_i32 {sWB}, {sFB}, {7 * 32768}')
    a(f's_add_u32 {sWB}, {sWB}, {WP}')
    a(f's_lshl_b32 {T[0]}, {sTB}, 2')
    a(f's_add_u32 {T[0]}, {T[0]}, {sTq}')
    a(f's_mul_i32 {T[0]}, {T[0]}, 112')
    a(f's_mul_i32 {T[1]}, {sFB}, 7')
    a(f's_add_u32 {T[0]}, {T[0]}, {T[1]}')
    a(f's_lshl_b32 {T[0]}, {T[0]}, 10')
    a(f's_add_u32 {sGB}, {T[0]}, {GG}')
    a(f'v_lshlrev_b32 v{vL16}, 4, v0')
    a(f'v_lshrrev_b32 v{vT0}, 4, v0')
    a(f'v_and_b32 v{vT1}, 15, v0')
    a(f'v_lshlrev_b32 v{vHD}, 2, v{vT0}')
    a(f'v_xor_b32 v{vHD}, v{vHD}, v{vT1}')
    a(f'v_lshlrev_b32 v{vHD}, 4, v{vHD}')
    a(f's_lshl_b32 {T[0]}, {sWave}, 2')
    a(f'v_add_u32 v{vT0}, {T[0]}, v{vT0}')
    a(f'v_lshl_add_u32 v{vHD}, v{vT0}, 12, v{vHD}')
    a(f's_lshl_b32 {T[0]}, {sTB}, 8')
    a(f'v_add_u32 v{vHD}, {T[0]}, v{vHD}')
    a(f'v_lshrrev_b32 v{TMP}, 2, v{vT1}')
    a(f'v_lshrrev_b32 v{TMP + 1}, 5, v0')
    a(f'v_lshl_add_u32 v{TMP + 1}, v{TMP + 1}, 3, v{TMP}')
    a(f'v_lshlrev_b32 v{vHA}, 8, v{TMP + 1}')
    a(f'v_xor_b32 v{TMP}, {sTq}, v{TMP}')
    a(f'v_lshlrev_b32 v{TMP}, 2, v{TMP}')
    a(f'v_bfe_u32 v{TMP + 1}, v0, 4, 1')
    a(f'v_lshl_add_u32 v{TMP}, v{TMP + 1}, 1, v{TMP}')
    a(f'v_bfe_u32 v{TMP + 1}, v0, 1, 1')
    a(f'v_add_u32 v{TMP}, v{TMP}, v{TMP + 1}')
    a(f'v_lshl_add_u32 v{vHA}, v{TMP}, 4, v{vHA}')
    a(f'v_and_b32 v{TMP}, 1, v0')
    a(f'v_lshl_add_u32 v{vHA}, v{TMP}, 3, v{vHA}')
    a(f's_mul_i32 {T[0]}, {sGrp}, {G.WSLOT[1] - G.WSLOT[0]}')
    a(f's_add_u32 {T[0]}, {T[0]}, {G.WSLOT[0]}')
    a(f'v_add_u32 v{vWA}, {T[0]}, v{vL16}')
    a(f'v_lshrrev_b32 v{vT0}, 5, v0')
    a(f'v_lshlrev_b32 v{vT0}, 4, v{vT0}')
    a(f'v_add_u32 v{vCSA}, {CSL}, v{vT0}')
    for r_ in (vS1, vS2, vQ1, vQ2):
        a(f'v_mov_b32 v{r_}, 0')
    srd(a, SWD, P_WD, 1792 * 1024)
    a(f'v_lshrrev_b32 v{vT0}, 3, v0')
    a(f'v_bfe_u32 v{vT1}, v0, 4, 1')
    a(f'v_lshlrev_b32 v{vT1}, 2, v{vT1}')
    a(f'v_and_b32 v{vWD}, 7, v0')
    a(f'v_xor_b32 v{vWD}, v{vWD}, v{vT1}')
    a(f'v_lshlrev_b32 v{vWD}, 4, v{vWD}')
    a(f'v_lshl_add_u32 v{vWD}, v{vT0}, 10, v{vWD}')
    a(f's_lshl_b32 {T[1]}, {sDB}, 7')
    a(f'v_add_u32 v{vWD}, {T[1]}, v{vWD}')
    a(f's_lshl_b32 {sMq}, {sTq}, 13')
    a(f's_add_u32 {sWq}, {sWB}, {sMq}')
    a(f's_lshl_b32 {sM4q}, {sTq}, 12')
    a(f's_lshl_b32 {sDq}, {sTq}, 15')
    L6 = a.newlabel('L_p3w6')
    L7 = a.newlabel('L_p3w7')
    LS6 = a.newlabel('L_S6')
    a('s_barrier')
    a(f's_cmp_eq_u32 {sWave}, 7')
    a(f's_cbranch_scc1 {L7}')
    a(f's_cmp_eq_u32 {sWave}, 6')
    a(f's_cbranch_scc1 {L6}')
    a(f's_lshl_b32 {T[1]}, {sWave}, 14')
    a(f's_add_u32 {T[0]}, {sWB}, {T[1]}')
    a(f's_add_u32 m0, {T[1]}, {G.WSLOT[0]}')
    for g4 in range(4):
        if g4:
            a('s_add_u32 m0, m0, 4096')
            a(f's_add_u32 {T[0]}, {T[0]}, 4096')
        else:
            a('s_nop 0')
        for i_ in range(4):
            a(f'buffer_load_dwordx4 v{vL16}, {SWS}, {T[0]} offen offset:{1024 * i_} lds')
    a(f's_cmp_ge_u32 {sWave}, 4')
    a(f's_cbranch_scc1 {LS6}')
    a(f's_mul_i32 {T[0]}, {sFB}, {16 * 896}')
    a(f's_add_u32 {T[0]}, {T[0]}, {CSP}')
    a(f'v_lshlrev_b32 v{vT0}, 2, v1')
    a(f'v_min_u32 v{vT0}, {223 * 4}, v{vT0}')
    for q in range(16):
        if q:
            a(f's_add_u32 {T[0]}, {T[0]}, 896')
        a(f'buffer_load_dword v{CSLD + q}, v{vT0}, {SWS}, {T[0]} offen')
    a(f's_branch {LS6}')
    a.label(L6)
    a(f's_and_b32 {T[1]}, {sY}, 3')
    a(f's_lshl_b32 {T[1]}, {T[1]}, 15')
    a(f's_add_u32 {T[0]}, {sWB}, {T[1]}')
    a(f's_add_u32 {T[0]}, {T[0]}, {3 * 32768}')
    a(f'v_lshlrev_b32 v20, 7, v0')
    for i_ in range(4):
        if i_:
            a(f's_add_u32 {T[0]}, {T[0]}, 8192')
        a(f'buffer_load_dword v21, v20, {SWS}, {T[0]} offen')
    a(f's_branch {LS6}')
    a.label(L7)
    poll_ge(a, CNT2, 16, 256, 16, 'v16', 'v17', 'b2')
    a(f's_and_b32 {T[1]}, {sFB}, 7')
    a(f's_lshl_b32 {T[1]}, {T[1]}, 18')
    a(f's_lshl_b32 {T[0]}, {sTB}, 8')
    a(f's_add_u32 {T[0]}, {T[0]}, {T[1]}')
    a(f's_add_u32 {T[0]}, {T[0]}, {HT}')
    a(f'v_lshlrev_b32 v20, 12, v0')
    a(f'buffer_load_dword v21, v20, {SWS}, {T[0]} offen')
    a(f'buffer_load_dword v21, v20, {SWS}, {T[0]} offen offset:128')
    Lne = a.newlabel('L_noep')
    a(f's_cmp_eq_u32 {sW}, 0')
    a(f's_cbranch_scc0 {Lne}')
    a(f'v_mov_b32 v16, {sTAG}')
    a(f'v_mov_b32 v17, 0')
    a(f's_mov_b32 {T[1]}, {EPOCH}')
    a(f's_mov_b64 {sEX}, exec')
    a('s_mov_b64 exec, 1')
    a(f'buffer_store_dword v16, v17, {SWS}, {T[1]} offen sc1')
    a(f's_mov_b64 exec, {sEX}')
    a.label(Lne)
    a.label(LS6)
    a('s_barrier')
    G.stamp(a, 'S6'); G.stamp(a, '@kS6')
    for s in range(NRING - 1):
        dma_h(a, s)
    SUMR, GRM, ONES = 116, 120, 124

    def phase0(g):
        a(f'v_mov_b32 v{ONES}, 0x3f803f80')
        a(f'v_mov_b32 v{ONES + 1}, 0x3f803f80')

        def compute_slice(s, fill=()):
            fill = list(fill)
            for kk in range(2):
                k = 2 * s + kk
                c = '0' if k == 0 else vr(ACC0, 16)
                hs = vr(H + 4 * k + 2 * g, 2)
                a(f'v_mfma_f32_32x32x16_bf16 {vr(ACC0, 16)}, {vr(WF0 + 8 * (s & 1) + 4 * kk, 4)}, {vr(H + 4 * k, 4)}, {c}')
                for _ in range(3):
                    if fill:
                        a(fill.pop(0))
                a(f'v_mfma_f32_4x4x4_16b_bf16 {vr(SUMR, 4)}, {vr(ONES, 2)}, {hs}, {"0" if k == 0 else vr(SUMR, 4)}')
                a(f'v_mfma_f32_4x4x4_16b_bf16 {vr(GRM, 4)}, {hs}, {hs}, {"0" if k == 0 else vr(GRM, 4)}')
            for x in fill:
                a(x)
        for s in range(16):
            issued = min(s + NRING - 1, 16)
            if s in (7, 8) and g == 0:
                G.stamp(a, f'@a{s}')
            a(f's_waitcnt vmcnt({issued - 1 - s}) lgkmcnt(0)')
            if s in (7, 8) and g == 0:
                G.stamp(a, f'@b{s}')
            a('s_barrier')
            if s in (7, 8) and g == 0:
                G.stamp(a, f'@c{s}')
            if g == 0:
                if s == 0:
                    G.stamp(a, 'h0')
                if s in (4, 8, 12):
                    G.stamp(a, f'h{s}')
            base = (s % NRING) * 8192 + HRING
            rds = []
            for kk in range(2):
                k = 2 * s + kk
                rds.append(f'ds_read_b64_tr_b16 {vr(H + 4 * k, 2)}, v{vHA} offset:{base + kk * 4096}')
                rds.append(f'ds_read_b64_tr_b16 {vr(H + 4 * k + 2, 2)}, v{vHA} offset:{base + kk * 4096 + 1024}')
                rds.append(f'ds_read_b128 {vr(WF0 + 8 * (s & 1) + 4 * kk, 4)}, v{vWA} offset:{1024 * k}')
            if s > 0:
                compute_slice(s - 1, rds)
            else:
                for x in rds:
                    a(x)
            if s + NRING - 1 < 16:
                dma_h(a, s + NRING - 1)
            if s == 0 and g == 0:
                for st in (8, 4, 2, 1):
                    for q in range(st):
                        a(f'v_add_f32 v{CSLD + q}, v{CSLD + q}, v{CSLD + q + st}')
                a(f'v_lshlrev_b32 v{vT0}, 2, v1')
                a(f'v_min_u32 v{vT0}, {223 * 4}, v{vT0}')
                a(f'v_add_u32 v{vT0}, {CSL}, v{vT0}')
                a(f'ds_write_b32 v{vT0}, v{CSLD}')
        a('s_waitcnt lgkmcnt(0)')
        compute_slice(15)
        if g == 0:
            G.stamp(a, 'ph0'); G.stamp(a, '@kph0')
        a(f'v_and_b32 v{vT0}, 3, v0')
        a(f'v_cmp_eq_u32 vcc, 1, v{vT0}')
        a(f'v_cndmask_b32 v{vQ1}, v{GRM}, v{GRM + 1}, vcc')
        a(f'v_cmp_eq_u32 vcc, 2, v{vT0}')
        a(f'v_cndmask_b32 v{vQ1}, v{vQ1}, v{GRM + 2}, vcc')
        a(f'v_cmp_eq_u32 vcc, 3, v{vT0}')
        a(f'v_cndmask_b32 v{vQ1}, v{vQ1}, v{GRM + 3}, vcc')
        a(f'v_mov_b32 v{vS1}, v{SUMR}')
        a(f'v_mov_b32 v{vS2}, v{SUMR}')
        a(f'v_mov_b32 v{vQ2}, v{vQ1}')
        a(f'v_permlane32_swap_b32 v{vS1}, v{vS2}')
        a(f'v_permlane32_swap_b32 v{vQ1}, v{vQ2}')
        a(f'v_add_f32 v{vS1}, v{vS1}, v{vS2}')
        a(f'v_add_f32 v{vS2}, v{vQ1}, v{vQ2}')
        a(f's_lshl_b32 {T[0]}, {sWave}, 9')
        a(f's_add_u32 {T[0]}, {T[0]}, {SXCH}')
        a(f'v_lshl_add_u32 v{vT0}, v0, 3, {T[0]}')
        a(f'ds_write_b64 v{vT0}, {vr(vS1, 2)}')
        assert SXCH % 4096 == 0
        a(f'v_xor_b32 v{vT0}, 2048, v{vT0}')
        a('s_waitcnt lgkmcnt(0)')
        a('s_barrier')

    def finish_stats():
        a(f'ds_read_b64 {vr(vQ1, 2)}, v{vT0}')
        a('s_waitcnt lgkmcnt(0)')
        a(f'v_add_f32 v{vS1}, v{vS1}, v{vQ1}')
        a(f'v_add_f32 v{vQ1}, v{vS2}, v{vQ2}')
        stats_final(a)
    LB = a.newlabel('L_grpB')
    LJ = a.newlabel('L_join')
    a(f's_cmp_eq_u32 {sGrp}, 0')
    a(f's_cbranch_scc0 {LB}')
    phase0(0)
    q = Q(a)
    a(f'ds_read_b64 {vr(vQ1, 2)}, v{vT0}')
    mfma_phase(a, ACC1, 2, w_pieces(4, 0), first=8); q.add('W4', 8)
    a(f'v_add_f32 v{vS1}, v{vS1}, v{vQ1}')
    a(f'v_add_f32 v{vQ1}, v{vS2}, v{vQ2}')
    stats_final(a)
    a('s_barrier')
    G.stamp(a, 'p1')
    epilogue(a, ACC0, 0); q.add('st')
    epilogue(a, ACC1, 2); q.add('st')
    q.wait('W4')
    a('s_barrier')
    G.stamp(a, 'p2'); G.stamp(a, '@kp2')
    mfma_phase(a, ACC0, 0, wd_pieces(0) + wd_pieces(1) + wd_pieces(2)); q.add('wd', 12)
    a('s_barrier')
    G.stamp(a, 'p3')
    epilogue(a, ACC0, 4); q.add('st')
    a('s_barrier')
    G.stamp(a, 'p4')
    G.stamp(a, '@m6s')
    mfma_phase(a, ACC0, 2, wd_pieces(5) + wd_pieces(6))
    G.stamp(a, '@m6e')
    a('s_barrier')
    G.stamp(a, '@m6b')
    G.stamp(a, 'p5'); G.stamp(a, '@kp5')
    epilogue(a, ACC0, 6)
    a(f's_branch {LJ}')
    a.label(LB)
    phase0(1)
    q = Q(a)
    for p in w_pieces(3, 3):
        for x in p:
            a(x)
    q.add('W3', 8)
    finish_stats()
    epilogue(a, ACC0, 1); q.add('st')
    q.wait('W3')
    a('s_barrier')
    mfma_phase(a, ACC0, 3, w_pieces(5, 1) + w_pieces(6, 2)); q.add('W5', 8); q.add('W6', 8)
    a('s_barrier')
    epilogue(a, ACC0, 3); q.add('st')
    q.wait('W5')
    a('s_barrier')
    mfma_phase(a, ACC0, 1, wd_pieces(3) + wd_pieces(4)); q.add('wd', 8)
    q.wait('W6')
    a('s_barrier')
    G.stamp(a, '@e5s')
    epilogue(a, ACC0, 5)
    G.stamp(a, '@e5e')
    a('s_barrier')
    G.stamp(a, '@e5b')
    a.label(LJ)
    G.stamp(a, 'P3end'); G.stamp(a, '@kP3end')
    a('s_waitcnt vmcnt(0)')
    a('s_barrier')
    G.stamp(a, 'drain3')
    Lb3 = a.newlabel('L_b3')
    a(f's_cmp_eq_u32 {sWave}, 7')
    a(f's_cbranch_scc0 {Lb3}')
    a(f's_lshl_b32 {T[1]}, {sTB}, 8')
    a(f's_add_u32 {T[1]}, {T[1]}, {CNT3}')
    arrive(a, T[1], 'v16', 'v17')
    a(f's_lshr_b32 {T[5]}, {sT64}, 1')
    a(f's_lshl_b32 {T[5]}, {T[5]}, 8')
    a(f's_add_u32 {T[5]}, {T[5]}, {CNT3}')
    poll_ge(a, T[5], 1, 256, 16, 'v16', 'v17', 'b3')
    a.label(Lb3)
    p4_setup(a)
    a('s_barrier')
    G.stamp(a, 'B3'); G.stamp(a, '@kB3')


sTT, sKQ, sG = T[20], T[21], T[22]
vL, vAA, vAA1 = 7, 2, 11


def p4_setup(a):
    vT, vT2 = 14, 15
    a(f's_and_b32 {sTT}, {sWave}, 1')
    a(f's_lshr_b32 {sKQ}, {sWave}, 1')
    a(f's_lshl_b32 {sG}, {sT64}, 1')
    a(f's_add_u32 {sG}, {sG}, {sTT}')
    a(f's_mul_i32 {sG}, {sG}, 112')
    a(f's_lshl_b32 {T[0]}, {sKQ}, 1')
    a(f's_add_u32 {sG}, {sG}, {T[0]}')
    a(f's_lshl_b32 {sG}, {sG}, 10')
    a(f's_add_u32 {sG}, {sG}, {GG}')
    a(f'v_and_b32 v{vT}, 15, v0')
    a(f'v_lshrrev_b32 v{vT}, 2, v{vT}')
    a(f'v_lshrrev_b32 v{vT2}, 5, v0')
    a(f'v_lshl_add_u32 v{vT2}, v{vT2}, 3, v{vT}')
    a(f's_lshl_b32 {T[0]}, {sKQ}, 5')
    a(f'v_add_u32 v{vT2}, {T[0]}, v{vT2}')
    a(f'v_lshlrev_b32 v{vAA}, 7, v{vT2}')
    a(f'v_bfe_u32 v{vT}, v{vT}, 1, 1')
    a(f'v_lshlrev_b32 v{vT}, 2, v{vT}')
    a(f'v_bfe_u32 v{vT2}, v0, 4, 1')
    a(f'v_lshlrev_b32 v{vT2}, 1, v{vT2}')
    a(f'v_bfe_u32 v8, v0, 1, 1')
    a(f'v_add_u32 v{vT2}, v{vT2}, v8')
    a(f'v_xor_b32 v9, v{vT2}, v{vT}')
    a(f'v_or_b32 v{vT2}, 4, v{vT2}')
    a(f'v_xor_b32 v10, v{vT2}, v{vT}')
    a(f'v_and_b32 v8, 1, v0')
    a(f'v_lshlrev_b32 v8, 3, v8')
    a(f'v_add_u32 v{vAA}, v{vAA}, v8')
    a(f'v_lshl_add_u32 v{vAA1}, v10, 4, v{vAA}')
    a(f'v_lshl_add_u32 v{vAA}, v9, 4, v{vAA}')
    a(f'v_lshrrev_b32 v{vT}, 3, v0')
    a(f'v_and_b32 v{vT2}, 7, v0')
    a(f'v_lshlrev_b32 v{vT2}, 4, v{vT2}')
    a(f'v_lshl_add_u32 v13, v{vT}, 12, v{vT2}')


def p4(a, dbg):
    a.comment('================ P4: down GEMM + residual')
    vT, vT2 = 14, 15
    ACCa, ACCb = 16, 32
    AF = 48
    BF = 64
    NB = 6
    NC = 14
    q = Q(a)

    def load_g(c):
        b = BF + 8 * (c % NB)
        a(f's_add_u32 {T[0]}, {sG}, {c * 8192}')
        a(f'buffer_load_dwordx4 {vr(b, 4)}, v{vL}, {SWS}, {T[0]} offen')
        a(f'buffer_load_dwordx4 {vr(b + 4, 4)}, v{vL}, {SWS}, {T[0]} offen offset:1024')
        q.add(('g', c), 2)
    for c in range(NB):
        load_g(c)
    dma_wd8(a, 7); dma_wd8(a, 8); q.add('wd78', 4)
    a(f's_lshl_b32 {T[0]}, {sDB}, 6')
    a(f's_lshl_b32 {T[1]}, {sWave}, 3')
    a(f's_add_u32 {T[0]}, {T[0]}, {T[1]}')
    a(f's_lshl_b32 {T[0]}, {T[0]}, 12')
    a(f's_lshl_b32 {T[1]}, {sT64}, 7')
    a(f's_add_u32 {T[0]}, {T[0]}, {T[1]}')
    a(f's_add_u32 {T[0]}, {T[0]}, {HT}')
    a(f's_lshl_b32 {T[1]}, {sWave}, 10')
    a(f's_add_u32 m0, {T[1]}, {RESID}')
    a('s_nop 0')
    a(f'buffer_load_dwordx4 v13, {SWS}, {T[0]} offen lds')
    q.add('res')
    G.stamp(a, 'P4start')
    for c in range(NC):
        slot = c % NWD
        if c == 7:
            a('s_barrier')
        if c == NWD:
            q.wait('wdr')
            a('s_barrier')
        if q.has(('g', c)):
            q.wait(('g', c))
        if c == 0:
            G.stamp(a, 'g0')
        b = BF + 8 * (c % NB)
        a(f'v_add_u32 v12, {slot * WDSLOT}, v{vAA}')
        a(f'v_add_u32 v13, {slot * WDSLOT}, v{vAA1}')
        for i in range(2):
            for dt, va in ((0, 12), (1, 13)):
                for rd in range(2):
                    off = i * 16 * 128 + rd * 4 * 128
                    a(f'ds_read_b64_tr_b16 {vr(AF + 8 * i + 4 * dt + 2 * rd, 2)}, v{va} offset:{off}')
        for i in range(2):
            a(f's_waitcnt lgkmcnt({4 if i == 0 else 0})')
            cA = '0' if (c == 0 and i == 0) else vr(ACCa, 16)
            cB = '0' if (c == 0 and i == 0) else vr(ACCb, 16)
            a(f'v_mfma_f32_32x32x16_bf16 {vr(ACCa, 16)}, {vr(AF + 8 * i, 4)}, {vr(b + 4 * i, 4)}, {cA}')
            a(f'v_mfma_f32_32x32x16_bf16 {vr(ACCb, 16)}, {vr(AF + 8 * i + 4, 4)}, {vr(b + 4 * i, 4)}, {cB}')
        if c + NB < NC:
            load_g(c + NB)
        if c == NC - NWD - 1:
            a('s_barrier')
            for c2 in range(NWD, NC):
                dma_wd8(a, c2)
                q.add('wdr', 2)
    G.stamp(a, 'P4loop'); G.stamp(a, '@kP4loop')
    a('s_barrier')
    a(f's_lshl_b32 {T[0]}, {sTT}, 2')
    a(f's_add_u32 {T[0]}, {T[0]}, {sKQ}')
    a(f's_lshl_b32 {T[0]}, {T[0]}, 13')
    a(f's_add_u32 {T[0]}, {T[0]}, {RED}')
    a(f'v_add_u32 v{vT}, {T[0]}, v{vL}')
    for u in range(4):
        for hb in range(2):
            a(f'ds_write_b128 v{vT}, {vr(ACCa + 8 * u + 4 * hb, 4)} offset:{u * 2048 + hb * 1024}')
    a(f'v_and_b32 v{vT2}, 15, v0')
    a(f'v_lshrrev_b32 v8, 2, v{vT2}')
    a(f'v_lshrrev_b32 v9, 5, v0')
    a(f'v_lshl_add_u32 v8, v9, 2, v8')
    a(f's_lshl_b32 {T[0]}, {sKQ}, 4')
    a(f'v_add_u32 v8, {T[0]}, v8')
    a(f'v_lshlrev_b32 v8, 7, v8')
    a(f'v_bfe_u32 v9, v0, 4, 1')
    a(f'v_lshlrev_b32 v9, 5, v9')
    a(f'v_add_u32 v8, v8, v9')
    a(f'v_and_b32 v9, 3, v0')
    a(f'v_lshl_add_u32 v8, v9, 3, v8')
    a(f's_lshl_b32 {T[0]}, {sTT}, 6')
    a(f's_add_u32 {T[0]}, {T[0]}, {RESID}')
    a(f'v_add_u32 v8, {T[0]}, v8')
    srd(a, SB, P_OUT, 2048 * 1024)
    a(f'v_and_b32 v9, 31, v0')
    a(f'v_lshlrev_b32 v9, 10, v9')
    a(f'v_lshrrev_b32 v10, 5, v0')
    a(f'v_lshl_add_u32 v9, v10, 4, v9')
    a(f's_lshl_b32 {T[2]}, {sT64}, 1')
    a(f's_add_u32 {T[2]}, {T[2]}, {sTT}')
    a(f's_lshl_b32 {T[2]}, {T[2]}, 15')
    a(f's_lshl_b32 {T[1]}, {sDB}, 7')
    a(f's_add_u32 {T[2]}, {T[2]}, {T[1]}')
    a(f's_lshl_b32 {T[1]}, {sKQ}, 5')
    a(f's_add_u32 {T[2]}, {T[2]}, {T[1]}')
    a(f's_lshl_b32 {T[0]}, {sTT}, 15')
    a(f's_lshl_b32 {T[1]}, {sKQ}, 11')
    a(f's_add_u32 {T[0]}, {T[0]}, {T[1]}')
    a(f's_add_u32 {T[0]}, {T[0]}, {RED}')
    a(f'v_add_u32 v{vT}, {T[0]}, v{vL}')
    a('s_waitcnt lgkmcnt(0)')
    a('s_barrier')
    R = 64
    for src in range(4):
        for hb in range(2):
            a(f'ds_read_b128 {vr(R + 8 * src + 4 * hb, 4)}, v{vT} offset:{src * 8192 + hb * 1024}')
    RS = 100
    a(f'ds_read_b64_tr_b16 {vr(RS, 2)}, v8')
    a(f'ds_read_b64_tr_b16 {vr(RS + 2, 2)}, v8 offset:1024')
    a('s_waitcnt lgkmcnt(0)')
    for i in range(8):
        a(f'v_add_f32 v{R + i}, v{R + i}, v{R + 8 + i}')
        a(f'v_add_f32 v{R + 16 + i}, v{R + 16 + i}, v{R + 24 + i}')
    for i in range(4):
        a(f'v_lshlrev_b32 v{R + 8 + 2 * i}, 16, v{RS + i}')
        a(f'v_and_b32 v{R + 9 + 2 * i}, 0xffff0000, v{RS + i}')
    for i in range(8):
        a(f'v_add_f32 v{R + i}, v{R + i}, v{R + 16 + i}')
    for i in range(8):
        a(f'v_add_f32 v{R + i}, v{R + i}, v{R + 8 + i}')
    for i in range(4):
        a(f'v_cvt_pk_bf16_f32 v{104 + i}, v{R + 2 * i}, v{R + 2 * i + 1}')
    a(f'v_permlane32_swap_b32 v104, v106')
    a(f'v_permlane32_swap_b32 v105, v107')
    a(f'buffer_store_dwordx4 v[104:107], v9, {SB}, {T[2]} offen')
    G.stamp(a, 'end'); G.stamp(a, '@kend')
```

```python
import sys, gen
upto = sys.argv[1] if len(sys.argv) > 1 else 'all'
dbg = sys.argv[2] if len(sys.argv) > 2 and sys.argv[2] != '-' else None
out = sys.argv[3] if len(sys.argv) > 3 else 'out.s'
txt, n = gen.build(upto, dbg)
open(out, 'w').write(txt)
if dbg and dbg[0] in 'TD':
    open(out + '.stamps', 'w').write(' '.join(gen.STAMPS['names']))
print(f'wrote {out}: {len(txt)} bytes, {txt.count(chr(10))} lines, {n} nops inserted')
```

```python
import sys
from asmlib import Asm

KNAME = 'sequential_preLN__ssm_conv_s4d__geglu_ffn__prompt_kernel'

CNT2, CNT3, CNT3A, CNT3B = 0x41000, 0x42000, 0x43000, 0x44000
EPOCH = 0x0000
PREPF = 0x1000
STATS = 0x4000
CSP = 0x8000
HT = 0x100000
WP = 0x300000
GG = 0x700000
XT = 0xE00000
XF = 0x40000
DBGK = 0x1000000
WS_SIZE = 0x1200000

LDS_SIZE = 163840
TROW = 544
TAB_E = 19264
TAB_G = TAB_E
TAB_CH = TAB_E + 64 * TROW
KC = 115712
KCS = 4160
STG_G = 149248
STG_U = STG_G + 7168 + 128
UB = 0
UBS = 4608
PART = 9216
XB = 41984
MISC = 163712
XST = KC + KCS

HRING = 0
NRING = 6
WSLOT = [50176, 82944, 115712, 0]
CSL = 148992
SXCH = 151552
WDSLOT = 16384
NWD = 9
RESID = 147456
RED = 0


def eoff(r):
    return 576 * r + 32 * (r >> 2) + 32 * (r >> 4)


assert eoff(32) + 512 == TAB_E and 2 * TAB_CH <= KC and STG_U + 7168 <= MISC

sW, sWave = 's2', 's3'
SWS = 's[4:7]'
SA, SB, SC = 's[8:11]', 's[12:15]', 's[16:19]'
P_X, P_LA, P_AI, P_CR, P_CI, P_LDT, P_D, P_BX, P_WG, P_WU, P_WD, P_OUT, P_DBG, P_WS = [20 + 2 * i for i in range(14)]
sX, sY, sCP, sTB, sFB, sT64, sDB = 's48', 's49', 's50', 's51', 's52', 's53', 's54'
T = [f's{n}' for n in range(55, 80)]
sEX = 's[90:91]'
sLDT, sDSK = 's80', 's81'
sIt = 's82'
sSpin = 's83'
sTAG = 's84'

LOG2E = 0x3fb8aa3b
INV2PI = 0x3e22f983


def v(n):
    return f'v{n}'


def vr(n, c):
    return f'v[{n}:{n + c - 1}]'


def srd(a, dst, ptr, size):
    n = int(dst[2:dst.index(':')])
    a(f's_mov_b32 s{n}, s{ptr}')
    a(f's_mov_b32 s{n + 1}, s{ptr + 1}')
    a(f's_mov_b32 s{n + 2}, {size}')
    a(f's_mov_b32 s{n + 3}, 0x20000')


SPIN_MAX = 30000
CODE_QUARTER = 9216
STAMPS = {'on': False, 'names': []}
STAMP_REGS = [85, 86, 87, 88, 89, 92, 93, 94, 95, 96, 97, 98, 99]


def stamp(a, name):
    if not STAMPS['on']:
        return
    if STAMPS.get('only') and name.lstrip('@') not in STAMPS['only']:
        return
    i = len(STAMPS['names'])
    STAMPS['names'].append(name)
    a('s_memtime s[100:101]' if name.startswith('@') else 's_memrealtime s[100:101]')
    a('s_waitcnt lgkmcnt(0)')
    a(f's_mov_b32 s{STAMP_REGS[i]}, s100')


def stampval(a, name, sreg):
    if not STAMPS['on']:
        return
    if STAMPS.get('only') and name.lstrip('#') not in STAMPS['only']:
        return
    i = len(STAMPS['names'])
    STAMPS['names'].append(name)
    a(f's_mov_b32 s{STAMP_REGS[i]}, {sreg}')


def dump_stamps(a):
    if not STAMPS['on']:
        return
    n = len(STAMPS['names'])
    a('v_mov_b32 v2, 0')
    for i in range(n):
        a(f'v_mov_b32 v3, s{STAMP_REGS[i]}')
        a(f'v_cmp_eq_u32 vcc, {i}, v0')
        a('s_nop 1')
        a('v_cndmask_b32 v2, v2, v3, vcc')
    a(f's_lshl_b32 {T[0]}, {sW}, 3')
    a(f's_add_u32 {T[0]}, {T[0]}, {sWave}')
    a(f's_lshl_b32 {T[0]}, {T[0]}, 6')
    a(f's_add_u32 {T[0]}, {T[0]}, {DBGK}')
    a('v_lshlrev_b32 v3, 2, v0')
    a(f's_mov_b64 {sEX}, exec')
    a('s_mov_b64 exec, 0xffff')
    a(f'buffer_store_dword v2, v3, {SWS}, {T[0]} offen')
    a(f's_mov_b64 exec, {sEX}')


def poll_ge(a, off, nlanes, stride, target, vtmp, vtmp2, name):
    L = a.newlabel('L_poll_' + name)
    Ld = a.newlabel('L_polld_' + name)
    a(f'v_min_u32 {vtmp2}, {nlanes - 1}, v0')
    a(f's_mov_b32 {T[0]}, {stride}')
    a(f'v_mul_lo_u32 {vtmp2}, {vtmp2}, {T[0]}')
    if isinstance(off, int):
        a(f's_mov_b32 {T[1]}, {off}')
    else:
        a(f's_mov_b32 {T[1]}, {off}')
    a(f's_mov_b32 {sSpin}, 0')
    a.label(L)
    a(f'buffer_load_dword {vtmp}, {vtmp2}, {SWS}, {T[1]} offen sc1')
    a(f's_add_u32 {sSpin}, {sSpin}, 1')
    a(f's_waitcnt vmcnt(0)')
    a(f'v_cmp_gt_u32 vcc, {target}, {vtmp}')
    a(f's_cmp_ge_u32 {sSpin}, {SPIN_MAX}')
    a(f's_cbranch_scc1 {Ld}')
    a(f's_cbranch_vccz {Ld}')
    a(f's_sleep 1')
    a(f's_branch {L}')
    a.label(Ld)


def arrive(a, off_sgpr_or_int, vtmp, vtmp2):
    a(f'v_mov_b32 {vtmp}, 1')
    a(f'v_mov_b32 {vtmp2}, 0')
    a(f's_mov_b64 {sEX}, exec')
    a(f's_mov_b64 exec, 1')
    a(f'buffer_atomic_add {vtmp}, {vtmp2}, {SWS}, {off_sgpr_or_int} offen')
    a(f's_mov_b64 exec, {sEX}')


def entry(a):
    a(f's_cmp_ge_u32 s2, 256')
    a(f's_cbranch_scc1 L_end')
    a('s_load_dwordx16 s[20:35], s[0:1], 0')
    a('s_load_dwordx8 s[36:43], s[0:1], 64')
    a('s_load_dwordx4 s[44:47], s[0:1], 96')
    a('v_lshrrev_b32 v2, 6, v0')
    a('v_mov_b32 v1, v0')
    a('v_and_b32 v0, 63, v0')
    a(f'v_readfirstlane_b32 {sWave}, v2')
    a(f's_and_b32 {sX}, s2, 7')
    a(f's_lshr_b32 {sY}, s2, 3')
    a(f's_lshl_b32 {sCP}, {sX}, 5')
    a(f's_add_u32 {sCP}, {sCP}, {sY}')
    a(f's_and_b32 {T[0]}, {sX}, 3')
    a(f's_lshl_b32 {T[0]}, {T[0]}, 2')
    a(f's_and_b32 {T[1]}, {sY}, 3')
    a(f's_add_u32 {sTB}, {T[0]}, {T[1]}')
    a(f's_lshr_b32 {T[0]}, {sX}, 2')
    a(f's_lshl_b32 {T[0]}, {T[0]}, 3')
    a(f's_lshr_b32 {sDB}, {sY}, 2')
    a(f's_add_u32 {sFB}, {T[0]}, {sDB}')
    a(f's_lshl_b32 {T[0]}, {sX}, 2')
    a(f's_add_u32 {sT64}, {T[0]}, {T[1]}')
    a('s_waitcnt lgkmcnt(0)')
    srd(a, SWS, P_WS, WS_SIZE)
    stamp(a, 'entry')
    stamp(a, '@c0')


PAIRC = MISC + 64


def p12(a, dbg):
    LU = a.newlabel('L_Upath')
    LS2 = a.newlabel('L_S2')
    a(f's_lshl_b32 {T[0]}, {sCP}, 2')
    a(f's_load_dword {sLDT}, s[{P_LDT}:{P_LDT + 1}], {T[0]}')
    a(f's_load_dword {sDSK}, s[{P_D}:{P_D + 1}], {T[0]}')
    a(f's_load_dword {sTAG}, s[{P_WS}:{P_WS + 1}], {EPOCH}')
    a(f's_cmp_ge_u32 {sWave}, 4')
    a(f's_cbranch_scc1 {LU}')
    kpath(a, dbg)
    a(f's_branch {LS2}')
    a.label(LU)
    upath(a, dbg)
    a.label(LS2)
    a('s_waitcnt lgkmcnt(0)')
    a('s_barrier')
    stamp(a, 'S2')
    p12_rest(a, dbg)


def kpath(a, dbg):
    XR = [4, 8]
    PR = 12
    t0, t1, t2, t3, t4 = 16, 17, 18, 19, 20
    Lnz = a.newlabel('L_nozero')
    a(f's_or_b32 {T[1]}, {sW}, {sWave}')
    a(f's_cmp_eq_u32 {T[1]}, 0')
    a(f's_cbranch_scc0 {Lnz}')
    a(f'v_lshlrev_b32 v{t0}, 8, v0')
    a(f'v_mov_b32 v{t1}, 0')
    a(f's_mov_b32 {T[1]}, {CNT2}')
    a(f'buffer_store_dword v{t1}, v{t0}, {SWS}, {T[1]} offen sc1')
    a.label(Lnz)
    srd(a, SA, P_X, 2048 * 1024)
    a(f's_lshl_b32 {T[1]}, {sW}, 2')
    a(f's_add_u32 {T[1]}, {T[1]}, {sWave}')
    a(f's_lshl_b32 {T[1]}, {T[1]}, 11')
    a(f'v_lshlrev_b32 v{t0}, 4, v0')
    a(f'buffer_load_dwordx4 {vr(XR[0], 4)}, v{t0}, {SA}, {T[1]} offen')
    a(f'buffer_load_dwordx4 {vr(XR[1], 4)}, v{t0}, {SA}, {T[1]} offen offset:1024')
    a(f's_lshr_b32 {T[2]}, {sWave}, 1')
    a(f's_lshl_b32 {T[3]}, {sCP}, 1')
    a(f's_add_u32 {T[3]}, {T[3]}, {T[2]}')
    a(f's_lshl_b32 {T[3]}, {T[3]}, 8')
    a(f's_and_b32 {T[4]}, {sWave}, 1')
    a(f's_lshl_b32 {T[4]}, {T[4]}, 7')
    a(f's_add_u32 {T[3]}, {T[3]}, {T[4]}')
    a(f'v_lshlrev_b32 v{t1}, 1, v0')
    for i, p in enumerate((P_LA, P_AI, P_CR, P_CI)):
        srd(a, SB, p, 512 * 128 * 2)
        a(f'buffer_load_ushort v{PR + i}, v{t1}, {SB}, {T[3]} offen')
    a(f'v_mov_b32 v{t2}, {PAIRC}')
    a(f'v_mov_b32 v{t3}, 0')
    a(f'v_mov_b32 v{t4}, 0')
    for o in (0, 4, 8, 12, 16, 20, 24, 28, 32):
        a(f'ds_write_b32 v{t2}, v{t3} offset:{o}')
    a('s_waitcnt lgkmcnt(0)')
    a('s_barrier')
    a(f's_and_b32 {T[19]}, {sW}, 15')
    a(f's_mul_i32 {T[19]}, {T[19]}, {32 * 3584}')
    a(f's_lshr_b32 {T[17]}, {sW}, 4')
    a(f's_mul_i32 {T[17]}, {T[17]}, 224')
    a(f's_add_u32 {T[19]}, {T[19]}, {T[17]}')
    Lq2 = a.newlabel('L_q2')
    for qq in range(2):
        if qq == 1:
            a(f's_cmp_eq_u32 {sWave}, 3')
            a(f's_cbranch_scc1 {Lq2}')
        a(f's_lshl_b32 {T[16]}, {sWave}, 6')
        if qq:
            a(f's_add_u32 {T[16]}, {T[16]}, 256')
        a(f'v_add_u32 v30, {T[16]}, v0')
        a(f's_mov_b32 {T[18]}, 4682')
        a(f'v_mul_lo_u32 v31, v30, {T[18]}')
        a(f'v_lshrrev_b32 v31, 16, v31')
        a(f'v_mul_u32_u24 v32, 14, v31')
        a(f'v_sub_u32 v32, v30, v32')
        a(f's_mov_b32 {T[18]}, 3584')
        a(f'v_mul_lo_u32 v31, v31, {T[18]}')
        a(f'v_lshl_add_u32 v31, v32, 4, v31')
        a(f's_lshl_b32 {T[17]}, {T[16]}, 4')
        srd(a, SB, P_WG, 512 * 3584)
        a(f's_add_u32 m0, {T[17]}, {STG_G}')
        a('s_nop 0')
        a(f'buffer_load_dwordx4 v31, {SB}, {T[19]} offen lds')
        srd(a, SB, P_WU, 512 * 3584)
        a(f's_add_u32 m0, {T[17]}, {STG_U}')
        a('s_nop 0')
        a(f'buffer_load_dwordx4 v31, {SB}, {T[19]} offen lds')
    a.label(Lq2)

    a(f's_mul_i32 {sTAG}, {sTAG}, 1664525')
    a(f's_add_u32 {sTAG}, {sTAG}, 1013904223')
    Lw_ = a.newlabel('L_w3')
    Lwd_ = a.newlabel('L_w3d')
    a(f's_cmp_eq_u32 {sWave}, 3')
    a(f's_cbranch_scc1 {Lw_}')
    a('s_waitcnt vmcnt(8)')
    a(f's_branch {Lwd_}')
    a.label(Lw_)
    a('s_waitcnt vmcnt(6)')
    a.label(Lwd_)
    stamp(a, 'xrow')
    S, Q, ONE = [16, 18], [17, 19], 20
    a(f'v_mov_b32 v{ONE}, 0x3f803f80')
    for r in range(2):
        a(f'v_mov_b32 v{S[r]}, 0')
        a(f'v_mov_b32 v{Q[r]}, 0')
    for i in range(4):
        for r in range(2):
            a(f'v_dot2_f32_bf16 v{S[r]}, v{XR[r] + i}, v{ONE}, v{S[r]}')
            a(f'v_dot2_f32_bf16 v{Q[r]}, v{XR[r] + i}, v{XR[r] + i}, v{Q[r]}')
    for m in ('row_shr:1 row_mask:0xf', 'row_shr:2 row_mask:0xf', 'row_shr:4 row_mask:0xf', 'row_shr:8 row_mask:0xf',
              'row_bcast:15 row_mask:0xa', 'row_bcast:31 row_mask:0xc'):
        for r in range(2):
            a(f'v_add_f32_dpp v{S[r]}, v{S[r]}, v{S[r]} {m} bank_mask:0xf')
            a(f'v_add_f32_dpp v{Q[r]}, v{Q[r]}, v{Q[r]} {m} bank_mask:0xf')
    ln_finish2(a, S, Q, [21, 22])
    GRN = 24
    a(f'v_cvt_pk_bf16_f32 v{GRN}, v{S[0]}, v{Q[0]}')
    a(f'v_cvt_pk_bf16_f32 v{GRN + 2}, v{S[1]}, v{Q[1]}')
    a(f'v_mov_b32 v{GRN + 1}, {sTAG}')
    a(f'v_mov_b32 v{GRN + 3}, {sTAG}')
    a(f's_lshl_b32 {T[1]}, {sW}, 2')
    a(f's_add_u32 {T[1]}, {T[1]}, {sWave}')
    a(f's_lshl_b32 {T[1]}, {T[1]}, 4')
    a(f's_add_u32 {T[1]}, {T[1]}, {STATS}')
    a(f'v_mov_b32 v21, 0')
    a(f's_mov_b64 {sEX}, exec')
    a(f's_mov_b32 exec_lo, 0')
    a(f's_mov_b32 exec_hi, 0x80000000')
    a(f'buffer_store_dwordx4 {vr(GRN, 4)}, v21, {SWS}, {T[1]} offen sc1')
    a(f's_mov_b64 exec, {sEX}')
    stamp(a, 'pub')
    Lw_ = a.newlabel('L_w3')
    Lwd_ = a.newlabel('L_w3d')
    a(f's_cmp_eq_u32 {sWave}, 3')
    a(f's_cbranch_scc1 {Lw_}')
    a('s_waitcnt vmcnt(5)')
    a(f's_branch {Lwd_}')
    a.label(Lw_)
    a('s_waitcnt vmcnt(3)')
    a.label(Lwd_)
    stamp(a, 'par')

    LAR, AIM, CR, CI = PR, PR + 1, PR + 2, PR + 3
    DT, AL, TH = 16, 17, 18
    for i in range(4):
        a(f'v_lshlrev_b32 v{PR + i}, 16, v{PR + i}')
    a(f's_lshl_b32 {T[3]}, {sLDT}, 16')
    a(f's_and_b32 {T[4]}, {sLDT}, 0xffff0000')
    a(f's_cmp_eq_u32 {T[2]}, 0')
    a(f's_cselect_b32 {T[3]}, {T[3]}, {T[4]}')
    a(f'v_mov_b32 v{DT}, {LOG2E}')
    a(f'v_mul_f32 v{LAR}, v{LAR}, v{DT}')
    a(f'v_mul_f32 v{DT}, {T[3]}, v{DT}')
    a(f'v_exp_f32 v{LAR}, v{LAR}')
    a(f'v_exp_f32 v{DT}, v{DT}')
    a(f'v_cvt_pk_bf16_f32 v{19}, v{LAR}, v{DT}')
    a(f'v_lshlrev_b32 v{LAR}, 16, v19')
    a(f'v_and_b32 v{DT}, 0xffff0000, v19')
    a(f'v_mul_f32 v{AL}, v{LAR}, v{DT}')
    a(f'v_mul_f32 v{TH}, v{AIM}, v{DT}')
    a(f'v_mul_f32 v{AL}, {hex(LOG2E | 0x80000000)}, v{AL}')
    a(f'v_mul_f32 v{TH}, {hex(INV2PI)}, v{TH}')
    a(f'v_add_f32 v{DT}, v{DT}, v{DT}')
    a(f'v_mul_f32 v{CR}, v{CR}, v{DT}')
    a(f'v_mul_f32 v{CI}, v{CI}, v{DT}')
    WG, WGN, WE, WEN = 20, 22, 24, 26
    ZG0, ZG1 = [28, 30], [32, 34]
    ZE0, ZE1 = [36, 38], [40, 42]
    MM = [44, 45, 46, 47]
    AA = [48, 49, 50, 51]
    spec = [(WG, '0x42000000', True), (WE, '1.0', False), (ZE1[0], '0x41800000', False), (ZG1[1], '0x44800000', True)]
    for k, (d, p, neg) in enumerate(spec):
        a(f'v_mul_f32 v{MM[k]}, {p}, v{AL}')
        a(f'v_mul_f32 v{AA[k]}, {p}, v{TH}')
    for k, (d, p, neg) in enumerate(spec):
        a(f'v_exp_f32 v{MM[k]}, v{MM[k]}')
        a(f'v_fract_f32 v{AA[k]}, v{AA[k]}')
    for k, (d, p, neg) in enumerate(spec):
        a(f'v_cos_f32 v{d}, v{AA[k]}')
        a(f'v_sin_f32 v{d + 1}, v{AA[k]}')
    for k, (d, p, neg) in enumerate(spec):
        a(f'v_mul_f32 v{d}, v{d}, v{MM[k]}')
        if neg:
            a(f'v_mul_f32_e64 v{d + 1}, -v{d + 1}, v{MM[k]}')
        else:
            a(f'v_mul_f32 v{d + 1}, v{d + 1}, v{MM[k]}')
    for (w, wn) in ((WG, WGN), (WE, WEN)):
        a(f'v_sub_f32 v{wn}, 0, v{w + 1}')
        a(f'v_mov_b32 v{wn + 1}, v{w}')
    a(f'v_mul_f32 v{ZG1[0]}, v{CR}, v{ZG1[1]}')
    a(f'v_mul_f32 v{ZG1[0] + 1}, v{CR}, v{ZG1[1] + 1}')
    a(f'v_fmac_f32 v{ZG1[0]}, v{CI}, v{ZG1[1] + 1}')
    a(f'v_fma_f32 v{ZG1[0] + 1}, -v{CI}, v{ZG1[1]}, v{ZG1[0] + 1}')
    a(f'v_mov_b32 v{ZG0[0]}, v{CR}')
    a(f'v_sub_f32 v{ZG0[0] + 1}, 0, v{CI}')
    a(f'v_mov_b32 v{ZE0[0]}, 1.0')
    a(f'v_mov_b32 v{ZE0[0] + 1}, 0')
    AE, AG = 52, 53
    a(f's_mul_i32 {T[8]}, {T[2]}, {TAB_CH}')
    a(f's_and_b32 {T[9]}, {sWave}, 1')
    a(f's_lshl_b32 {T[9]}, {T[9]}, 8')
    a(f's_add_u32 {T[9]}, {T[8]}, {T[9]}')
    PK = [54, 55, 56, 57]
    TM = [58, 60, 62, 64]

    def cs_a(z, wn, k):
        return [f'v_pk_mul_f32 {vr(TM[k], 2)}, {vr(z, 2)}, {vr(wn, 2)} op_sel:[1,0] op_sel_hi:[1,1]',
                f'v_cvt_pk_bf16_f32 v{PK[k]}, v{z}, v{z + 1}']

    def cs_b(z, zn, w, off, k):
        return [f'v_pk_fma_f32 {vr(zn, 2)}, {vr(z, 2)}, {vr(w, 2)}, {vr(TM[k], 2)} op_sel:[0,0,0] op_sel_hi:[0,1,1]',
                f'ds_write_addtid_b32 v{PK[k]} offset:{off}']
    a(f's_mov_b32 m0, {T[9]}')
    for it in range(4):
        for i in range(8):
            ga = TAB_G + (8 * it + i) * TROW
            chains = [(ZG0[i & 1], ZG0[(i + 1) & 1], WG, WGN, ga),
                      (ZG1[i & 1], ZG1[(i + 1) & 1], WG, WGN, ga + 32 * TROW)]
            e = i >> 1
            if i & 1 == 0:
                chains.append((ZE0[e & 1], ZE0[(e + 1) & 1], WE, WEN, eoff(4 * it + e)))
            else:
                chains.append((ZE1[e & 1], ZE1[(e + 1) & 1], WE, WEN, eoff(16 + 4 * it + e)))
            pa = [cs_a(z, wn, k) for k, (z, zn, w, wn, off) in enumerate(chains)]
            pb = [cs_b(z, zn, w, off, k) for k, (z, zn, w, wn, off) in enumerate(chains)]
            for grp in (pa, pb):
                for n_ in range(2):
                    for c_ in grp:
                        a(c_[n_])
    a(f'v_cvt_pk_bf16_f32 v{PK[0]}, v{ZE1[0]}, v{ZE1[0] + 1}')
    a(f'ds_write_addtid_b32 v{PK[0]} offset:{eoff(32)}')
    stamp(a, 'tabdone')
    a('s_waitcnt vmcnt(1)')
    a(f'v_mov_b32 v66, {PAIRC + 24}')
    a('v_mov_b32 v67, 1')
    a(f's_mov_b64 {sEX}, exec')
    a('s_mov_b64 exec, 1')
    a('ds_add_u32 v66, v67')
    a(f's_mov_b64 exec, {sEX}')
    a(f's_lshl_b32 {T[9]}, {T[2]}, 2')
    a(f's_add_u32 {T[9]}, {T[9]}, {PAIRC}')
    a(f'v_mov_b32 v16, {T[9]}')
    a(f'v_mov_b32 v17, 1')
    a('s_waitcnt lgkmcnt(0)')
    a(f's_mov_b64 {sEX}, exec')
    a('s_mov_b64 exec, 1')
    a('ds_add_u32 v16, v17')
    a(f's_mov_b64 exec, {sEX}')
    Lsp = a.newlabel('L_pair')
    Lspd = a.newlabel('L_paird')
    a(f's_mov_b32 {sSpin}, 0')
    a.label(Lsp)
    a('ds_read_b32 v17, v16')
    a(f's_add_u32 {sSpin}, {sSpin}, 1')
    a('s_waitcnt lgkmcnt(0)')
    a('v_cmp_gt_u32 vcc, 2, v17')
    a(f's_cmp_ge_u32 {sSpin}, {SPIN_MAX * 8}')
    a(f's_cbranch_scc1 {Lspd}')
    a(f's_cbranch_vccnz {Lsp}')
    a.label(Lspd)
    stamp(a, 'S1')

    AL15, GG_ = 16, 17
    a(f'v_and_b32 v{AL15}, 15, v0')
    a(f'v_lshrrev_b32 v{GG_}, 4, v0')
    BG = 18
    a(f'v_mul_u32_u24 v{BG}, {TROW}, v{AL15}')
    a(f'v_lshl_add_u32 v{BG}, v{GG_}, 4, v{BG}')
    a(f's_add_u32 {T[9]}, {T[8]}, {TAB_G}')
    a(f'v_add_u32 v{BG}, {T[9]}, v{BG}')
    KA = 19
    a(f's_mul_i32 {T[9]}, {T[2]}, {4 * KCS}')
    a(f's_add_u32 {T[9]}, {T[9]}, {KC + 4088 - 32}')
    a(f'v_lshlrev_b32 v{KA}, 6, v{AL15}')
    a(f'v_lshl_add_u32 v{KA}, v{GG_}, 3, v{KA}')
    a(f'v_sub_u32 v{KA}, {T[9]}, v{KA}')
    GF = [32, 64]
    EF0, EF1 = 96, 128
    ACC = 160
    EA0, EA1 = 20, 21

    def rho_addr(j):
        base = 128 << j
        seq = []
        for rt, dst in enumerate((EA0, EA1)):
            tmp = 22 + rt
            seq.append([
                f'v_add_u32 v{dst}, {base + 16 * rt}, v{AL15}',
                f'v_cvt_f32_u32 v{dst}, v{dst}',
                f'v_cvt_pk_bf16_f32 v{dst}, v{dst}, v{dst}',
                f'v_lshlrev_b32 v{dst}, 16, v{dst}',
                f'v_cvt_u32_f32 v{dst}, v{dst}',
                f'v_subrev_u32 v{dst}, {base}, v{dst}',
                f'v_lshrrev_b32 v{tmp}, 2, v{dst}',
                f'v_lshrrev_b32 v{tmp + 2}, 4, v{dst}',
                f'v_mul_u32_u24 v{dst}, 576, v{dst}',
                f'v_add_u32 v{tmp}, v{tmp}, v{tmp + 2}',
                f'v_lshl_add_u32 v{dst}, v{tmp}, 5, v{dst}',
                f'v_lshl_add_u32 v{dst}, v{GG_}, 4, v{dst}',
                f'v_add_u32 v{dst}, {T[8]}, v{dst}'])
        for x, y in zip(*seq):
            a(x)
            a(y)

    def load_g(slot, vv):
        for s in range(8):
            a(f'ds_read_b128 {vr(GF[slot] + 4 * s, 4)}, v{BG} offset:{vv * 16 * TROW + 64 * s}')

    def kchain(tiles):
        def mm(k):
            for (gs, acc) in tiles:
                c0 = '0' if k == 0 else vr(acc, 4)
                c1 = '0' if k == 0 else vr(acc + 4, 4)
                a(f'v_mfma_f32_16x16x32_bf16 {vr(acc, 4)}, {vr(EF0 + 4 * k, 4)}, {vr(GF[gs] + 4 * k, 4)}, {c0}')
                a(f'v_mfma_f32_16x16x32_bf16 {vr(acc + 4, 4)}, {vr(EF1 + 4 * k, 4)}, {vr(GF[gs] + 4 * k, 4)}, {c1}')
        for s in range(8):
            a(f'ds_read_b128 {vr(EF0 + 4 * s, 4)}, v{EA0} offset:{64 * s}')
            a(f'ds_read_b128 {vr(EF1 + 4 * s, 4)}, v{EA1} offset:{64 * s}')
            if s >= 3:
                a(f's_waitcnt lgkmcnt(6)')
                mm(s - 3)
        for k in (5, 6, 7):
            a(f's_waitcnt lgkmcnt({2 * (7 - k)})')
            mm(k)

    def kr_write(acc, vv):
        for rt in range(2):
            b = acc + 4 * rt
            a(f'v_cvt_pk_bf16_f32 v{24 + 2 * rt}, v{b + 3}, v{b + 2}')
            a(f'v_cvt_pk_bf16_f32 v{25 + 2 * rt}, v{b + 1}, v{b}')
        if vv:
            a(f'v_subrev_u32 v28, {1024 * vv}, v{KA}')
            ka = 28
        else:
            ka = KA
        a(f'ds_write_b64 v{ka}, v[24:25] offset:32')
        a(f'ds_write_b64 v{ka}, v[26:27]')
    Lp1 = a.newlabel('L_kpart1')
    Lpe = a.newlabel('L_kparte')
    a(f's_and_b32 {T[5]}, {sWave}, 1')
    a(f's_cmp_eq_u32 {T[5]}, 0')
    a(f's_cbranch_scc0 {Lp1}')
    load_g(0, 0)
    rho_addr(0)
    kchain([(0, ACC)])
    rho_addr(1)
    kchain([(0, ACC + 8)])
    a(f'v_cmp_gt_u32 vcc, 8, v{AL15}')
    for i in range(8):
        a(f'v_cndmask_b32 v{ACC + i}, v{ACC + 8 + i}, v{ACC + i}, vcc')
    kr_write(ACC, 0)
    a(f's_branch {Lpe}')
    a.label(Lp1)
    load_g(0, 1)
    rho_addr(2)
    kchain([(0, ACC)])
    load_g(0, 2)
    load_g(1, 3)
    rho_addr(3)
    kr_write(ACC, 1)
    kchain([(0, ACC + 8), (1, ACC + 16)])
    kr_write(ACC + 8, 2)
    kr_write(ACC + 16, 3)
    a.label(Lpe)
    a(f's_mul_i32 {T[9]}, {T[2]}, {4 * KCS}')
    a(f's_mul_i32 {T[11]}, {T[5]}, {2 * KCS}')
    a(f's_add_u32 {T[9]}, {T[9]}, {T[11]}')
    a(f's_add_u32 {T[9]}, {T[9]}, {KC + 4096}')
    a(f'v_lshl_add_u32 v28, v{AL15}, 2, {T[9]}')
    a(f'v_mov_b32 v29, 0')
    a(f'ds_write_b32 v28, v29')
    a(f'ds_write_b32 v28, v29 offset:{KCS}')
    stamp(a, 'C2')


UP = 68


def lds_spin(a, vaddr, vtmp, cmp_, label, sleep=True):
    L = a.newlabel(label)
    Ld = a.newlabel(label + 'd')
    a(f's_mov_b32 {sSpin}, 0')
    a.label(L)
    a(f'ds_read_b32 {vtmp}, {vaddr}')
    a(f's_add_u32 {sSpin}, {sSpin}, 1')
    a('s_waitcnt lgkmcnt(0)')
    a(f'{cmp_}, {vtmp}')
    a(f's_cmp_ge_u32 {sSpin}, {SPIN_MAX * 64}')
    a(f's_cbranch_scc1 {Ld}')
    a(f's_cbranch_vccz {Ld}')
    if sleep:
        a('s_sleep 1')
    a(f's_branch {L}')
    a.label(Ld)


def upath(a, dbg):
    t0, t1, t2, t3, t4 = 4, 5, 6, 7, 8
    sUV = T[15]
    a('s_setprio 1')
    a(f's_sub_u32 {sUV}, {sWave}, 4')
    srd(a, SA, P_X, 2048 * 1024)
    a(f'v_lshrrev_b32 v{t0}, 1, v0')
    a(f'v_and_b32 v{t1}, 1, v0')
    a(f'v_lshlrev_b32 v{t1}, 4, v{t1}')
    a(f'v_lshl_add_u32 v{t0}, v{t0}, 10, v{t1}')
    a(f's_lshl_b32 {T[7]}, {sY}, 16')
    a(f's_lshl_b32 {T[8]}, {sX}, 7')
    a(f's_add_u32 {T[7]}, {T[7]}, {T[8]}')
    a(f's_lshl_b32 {T[8]}, {sUV}, 5')
    a(f's_add_u32 {T[7]}, {T[7]}, {T[8]}')
    a(f's_lshl_b32 {T[8]}, {sUV}, 11')
    a(f's_add_u32 m0, {T[8]}, {XST}')
    a('s_nop 0')
    a(f'buffer_load_dwordx4 v{t0}, {SA}, {T[7]} offen lds')
    a(f's_add_u32 m0, m0, 1024')
    a(f's_add_u32 {T[7]}, {T[7]}, {32 * 1024}')
    a(f'buffer_load_dwordx4 v{t0}, {SA}, {T[7]} offen lds')
    Lnto = a.newlabel('L_notouch0')
    a(f's_cmp_eq_u32 {sUV}, 3')
    a(f's_cbranch_scc0 {Lnto}')
    a('v_mov_b32 v30, 0')
    a(f's_lshl_b32 {T[8]}, {sW}, 6')
    a(f's_add_u32 {T[8]}, {T[8]}, {STATS}')
    a(f'buffer_load_dword v31, v30, {SWS}, {T[8]} offen sc1')
    a(f's_lshl_b32 {T[8]}, {sX}, 9')
    a(f's_lshr_b32 {T[9]}, {sY}, 4')
    a(f's_lshl_b32 {T[9]}, {T[9]}, 8')
    a(f's_add_u32 {T[8]}, {T[8]}, {T[9]}')
    a(f's_add_u32 {T[8]}, {T[8]}, {XF}')
    a(f'buffer_load_dword v31, v30, {SWS}, {T[8]} offen sc1')
    a(f's_lshl_b32 {T[8]}, {sW}, 2')
    a(f's_add_u32 {T[8]}, {T[8]}, {PREPF}')
    a(f'buffer_load_dword v31, v30, {SWS}, {T[8]} offen sc1')
    a.label(Lnto)
    a('s_barrier')
    Lnc_ = a.newlabel('L_nocode')
    a(f's_cmp_eq_u32 {sUV}, 1')
    a(f's_cbranch_scc0 {Lnc_}')
    a('s_getpc_b64 s[16:17]')
    a.label('L_pcref')
    a(f's_sub_u32 s16, s16, L_pcref-{KNAME}')
    a('s_subb_u32 s17, s17, 0')
    a(f's_mov_b32 s18, L_end-{KNAME}')
    a('s_mov_b32 s19, 0x20000')
    a(f's_and_b32 {T[8]}, {sY}, 3')
    a(f's_mul_i32 {T[8]}, {T[8]}, {CODE_QUARTER}')
    a('v_lshlrev_b32 v30, 7, v0')
    for i_ in range(2):
        a(f'buffer_load_dword v31, v30, {SC}, {T[8]} offen')
        if i_ == 0:
            a(f's_add_u32 {T[8]}, {T[8]}, 8192')
    a.label(Lnc_)
    a(f'v_and_b32 v{t1}, 15, v0')
    a(f'v_lshrrev_b32 v{t2}, 2, v{t1}')
    a(f'v_lshrrev_b32 v{t3}, 4, v0')
    a(f'v_lshl_add_u32 v{t2}, v{t3}, 3, v{t2}')
    a(f'v_lshlrev_b32 v{t2}, 5, v{t2}')
    a(f'v_and_b32 v9, 3, v0')
    a(f'v_lshl_add_u32 v{t2}, v9, 3, v{t2}')
    a(f's_lshl_b32 {T[8]}, {sUV}, 11')
    a(f's_add_u32 {T[8]}, {T[8]}, {XST}')
    a(f'v_add_u32 v{t2}, {T[8]}, v{t2}')
    a(f'v_lshlrev_b32 v{t1}, 6, v{t1}')
    a(f'v_lshl_add_u32 v{t1}, v{t3}, 4, v{t1}')
    a(f's_lshl_b32 {T[10]}, {sY}, 16')
    a(f's_lshl_b32 {T[11]}, {sX}, 13')
    a(f's_add_u32 {T[10]}, {T[10]}, {T[11]}')
    a(f's_lshl_b32 {T[11]}, {sUV}, 10')
    a(f's_add_u32 {T[10]}, {T[10]}, {T[11]}')
    a(f's_add_u32 {T[10]}, {T[10]}, {XT}')
    a('s_waitcnt vmcnt(0) lgkmcnt(0)')
    stamp(a, 'xtile')
    XD = 12
    for h in range(2):
        for rd in range(2):
            a(f'ds_read_b64_tr_b16 {vr(XD + 4 * h + 2 * rd, 2)}, v{t2} offset:{1024 * h + 128 * rd}')
    a(f's_mul_i32 {sTAG}, {sTAG}, 1664525')
    a(f's_add_u32 {sTAG}, {sTAG}, 1013904223')
    a(f's_add_u32 {T[11]}, {T[10]}, 4096')
    a('s_waitcnt lgkmcnt(0)')
    a(f'buffer_store_dwordx4 {vr(XD, 4)}, v{t1}, {SWS}, {T[10]} offen sc1')
    a(f'buffer_store_dwordx4 {vr(XD + 4, 4)}, v{t1}, {SWS}, {T[11]} offen sc1')
    a(f'v_mov_b32 v22, {PAIRC + 12}')
    a(f'v_mov_b32 v23, 1')
    a('s_waitcnt vmcnt(0)')
    a(f's_mov_b64 {sEX}, exec')
    a('s_mov_b64 exec, 1')
    a('ds_add_rtn_u32 v24, v22, v23')
    a('s_waitcnt lgkmcnt(0)')
    a(f'v_readfirstlane_b32 {T[8]}, v24')
    Lnl = a.newlabel('L_xnotlast')
    a(f's_cmp_eq_u32 {T[8]}, 3')
    a(f's_cbranch_scc0 {Lnl}')
    a(f's_lshl_b32 {T[8]}, {sX}, 9')
    a(f's_lshr_b32 {T[11]}, {sY}, 4')
    a(f's_lshl_b32 {T[11]}, {T[11]}, 8')
    a(f's_add_u32 {T[8]}, {T[8]}, {T[11]}')
    a(f's_and_b32 {T[11]}, {sY}, 15')
    a(f's_lshl_b32 {T[11]}, {T[11]}, 2')
    a(f's_add_u32 {T[8]}, {T[8]}, {T[11]}')
    a(f's_add_u32 {T[8]}, {T[8]}, {XF}')
    a(f'v_mov_b32 v23, {sTAG}')
    a(f'v_mov_b32 v24, 0')
    a(f'buffer_store_dword v23, v24, {SWS}, {T[8]} offen sc1')
    a.label(Lnl)
    a(f's_mov_b64 exec, {sEX}')
    stamp(a, 'xflag')
    Lnoprep = a.newlabel('L_noprep')
    a(f's_cmp_eq_u32 {sWave}, 7')
    a(f's_cbranch_scc1 {Lnoprep}')
    a(f'v_mov_b32 v40, {PAIRC + 24}')
    lds_spin(a, 'v40', 'v41', 'v_cmp_gt_u32 vcc, 4', 'L_stg')
    wprep(a)
    a.label(Lnoprep)
    stamp(a, 'prepd')
    a(f'v_lshrrev_b32 v10, 3, v0')
    a(f'v_lshlrev_b32 v10, 16, v10')
    a(f'v_bfe_u32 v11, v0, 2, 1')
    a(f'v_lshl_add_u32 v10, v11, 12, v10')
    a(f'v_and_b32 v11, 3, v0')
    a(f'v_lshl_add_u32 v10, v11, 4, v10')
    a(f's_lshl_b32 {T[10]}, {sUV}, 19')
    a(f's_lshl_b32 {T[11]}, {sX}, 13')
    a(f's_add_u32 {T[10]}, {T[10]}, {T[11]}')
    a(f's_lshl_b32 {T[11]}, {sY}, 7')
    a(f's_add_u32 {T[10]}, {T[10]}, {T[11]}')
    a(f's_add_u32 {T[10]}, {T[10]}, {XT}')
    sGA = T[12]
    a(f's_lshl_b32 {sGA}, {sUV}, 12')
    a(f's_add_u32 {sGA}, {sGA}, {STATS}')
    XC = [12, 16]
    GR = 20

    def gran_loads(pol=' sc1'):
        for k in range(4):
            a(f'buffer_load_dwordx4 {vr(GR + 4 * k, 4)}, v9, {SWS}, {sGA} offen offset:{16 * k}{pol}')
    a(f'v_lshlrev_b32 v9, 6, v0')
    Lx = a.newlabel('L_xpoll')
    Lxd = a.newlabel('L_xok')
    Lxo = a.newlabel('L_xother')
    Lxe = a.newlabel('L_xend')
    a(f'v_mov_b32 v38, {PAIRC + 16}')
    a(f's_mov_b32 {sSpin}, 0')
    a(f's_cmp_eq_u32 {sWave}, 7')
    a(f's_cbranch_scc0 {Lxo}')
    a(f's_lshl_b32 {T[8]}, {sX}, 9')
    a(f's_add_u32 {T[8]}, {T[8]}, {XF}')
    a(f'v_bfe_u32 v36, v0, 4, 1')
    a(f'v_lshlrev_b32 v36, 8, v36')
    a(f'v_and_b32 v37, 15, v0')
    a(f'v_lshl_add_u32 v36, v37, 2, v36')
    a.label(Lx)
    a(f'buffer_load_dword v37, v36, {SWS}, {T[8]} offen sc1')
    a(f's_add_u32 {sSpin}, {sSpin}, 1')
    a('s_waitcnt vmcnt(0)')
    a(f'v_cmp_ne_u32 vcc, {sTAG}, v37')
    a(f's_cmp_ge_u32 {sSpin}, {SPIN_MAX}')
    a(f's_cbranch_scc1 {Lxd}')
    a(f's_cbranch_vccz {Lxd}')
    a('s_sleep 2')
    a(f's_branch {Lx}')
    a.label(Lxd)
    stampval(a, '#xspin', sSpin)
    a(f'v_mov_b32 v39, 1')
    a('ds_write_b32 v38, v39')
    a(f's_branch {Lxe}')
    a.label(Lxo)
    lds_spin(a, 'v38', 'v39', 'v_cmp_eq_u32 vcc, 0', 'L_xsp')
    a.label(Lxe)
    stamp(a, 'xok')
    a(f'buffer_load_dwordx4 {vr(XC[0], 4)}, v10, {SWS}, {T[10]} offen')
    a(f'buffer_load_dwordx4 {vr(XC[1], 4)}, v10, {SWS}, {T[10]} offen offset:64')
    gran_loads('')
    a('s_waitcnt vmcnt(6)')
    Lna = a.newlabel('L_noann')
    a(f's_cmp_eq_u32 {sWave}, 7')
    a(f's_cbranch_scc1 {Lna}')
    a(f'v_mov_b32 v40, {PAIRC + 8}')
    a(f'v_mov_b32 v41, 1')
    a(f's_mov_b64 {sEX}, exec')
    a('s_mov_b64 exec, 1')
    a('ds_add_rtn_u32 v42, v40, v41')
    a('s_waitcnt lgkmcnt(0)')
    a(f'v_readfirstlane_b32 {T[1]}, v42')
    a(f's_cmp_eq_u32 {T[1]}, 2')
    Lnl2 = a.newlabel('L_notlast')
    a(f's_cbranch_scc0 {Lnl2}')
    a(f's_lshl_b32 {T[1]}, {sW}, 2')
    a(f's_add_u32 {T[1]}, {T[1]}, {PREPF}')
    a(f'v_mov_b32 v40, {sTAG}')
    a(f'v_mov_b32 v41, 0')
    a(f'buffer_store_dword v40, v41, {SWS}, {T[1]} offen sc1')
    a('s_waitcnt vmcnt(1)')
    a(f's_mov_b64 exec, {sEX}')
    a(f's_branch {Lna}_d')
    a.label(Lnl2)
    a(f's_mov_b64 exec, {sEX}')
    a.label(Lna)
    a('s_waitcnt vmcnt(0)')
    a.label(Lna + '_d')
    Lchk = a.newlabel('L_gchk')
    Lok = a.newlabel('L_gok')
    a(f's_mov_b32 {sSpin}, 0')
    a.label(Lchk)
    for r in range(8):
        a(f'v_xor_b32 v{36 + r}, {sTAG}, v{GR + 2 * r + 1}')
    a('v_or3_b32 v36, v36, v37, v38')
    a('v_or3_b32 v39, v39, v40, v41')
    a('v_or3_b32 v42, v42, v43, v36')
    a('v_or_b32 v36, v39, v42')
    a('v_cmp_ne_u32 vcc, 0, v36')
    a(f's_add_u32 {sSpin}, {sSpin}, 1')
    a(f's_cmp_ge_u32 {sSpin}, {SPIN_MAX}')
    a(f's_cbranch_scc1 {Lok}')
    a(f's_cbranch_vccz {Lok}')
    gran_loads()
    a('s_waitcnt vmcnt(0)')
    a(f's_branch {Lchk}')
    a.label(Lok)
    Mv, Rv = 36, 44
    for r in range(8):
        a(f'v_and_b32 v{Rv + r}, 0xffff0000, v{GR + 2 * r}')
        a(f'v_lshlrev_b32 v{Mv + r}, 16, v{GR + 2 * r}')
        a(f'v_rcp_f32 v{Rv + r}, v{Rv + r}')
    stamp(a, 'gran')
    E = [52, 60]
    for ch in range(2):
        for k in range(4):
            a(f'v_lshlrev_b32 v{E[ch] + 2 * k}, 16, v{XC[ch] + k}')
            a(f'v_and_b32 v{E[ch] + 2 * k + 1}, 0xffff0000, v{XC[ch] + k}')
            a(f'v_mov_b32 v{UP + 8 + 4 * ch + k}, v{XC[ch] + k}')
    for r in range(8):
        for ch in range(2):
            a(f'v_sub_f32 v{E[ch] + r}, v{E[ch] + r}, v{Mv + r}')
    for ch in range(2):
        for k in range(4):
            a(f'v_cvt_pk_bf16_f32 v{UP + 4 * ch + k}, v{E[ch] + 2 * k}, v{E[ch] + 2 * k + 1}')
    for ch in range(2):
        for k in range(4):
            a(f'v_lshlrev_b32 v{E[ch] + 2 * k}, 16, v{UP + 4 * ch + k}')
            a(f'v_and_b32 v{E[ch] + 2 * k + 1}, 0xffff0000, v{UP + 4 * ch + k}')
    for r in range(8):
        for ch in range(2):
            a(f'v_mul_f32 v{E[ch] + r}, v{E[ch] + r}, v{Rv + r}')
    for ch in range(2):
        for k in range(4):
            a(f'v_cvt_pk_bf16_f32 v{UP + 4 * ch + k}, v{E[ch] + 2 * k}, v{E[ch] + 2 * k + 1}')
    stamp(a, 'udone')
    a('s_setprio 0')


def p12_rest(a, dbg):
    a.comment('---- U waves: u and x into LDS (tables are dead now)')
    Lnu = a.newlabel('L_nouw')
    a(f's_cmp_ge_u32 {sWave}, 4')
    a(f's_cbranch_scc0 {Lnu}')
    a(f's_lshl_b32 {T[6]}, {T[15]}, 10')
    a(f'v_lshl_add_u32 v9, v0, 4, {T[6]}')
    a(f'ds_write_b128 v9, {vr(UP, 4)} offset:{UB + 512}')
    a(f'ds_write_b128 v9, {vr(UP + 4, 4)} offset:{UB + UBS + 512}')
    a(f'ds_write_b128 v9, {vr(UP + 8, 4)} offset:{XB}')
    a(f'ds_write_b128 v9, {vr(UP + 12, 4)} offset:{XB + 4096}')
    a(f's_and_b32 {T[7]}, {sWave}, 1')
    a(f's_mul_i32 {T[7]}, {T[7]}, {UBS}')
    a(f'v_lshl_add_u32 v10, v0, 3, {T[7]}')
    a(f'v_mov_b32 v4, 0')
    a(f'v_mov_b32 v5, 0')
    a(f'ds_write_b64 v10, v[4:5] offset:{UB}')
    a.label(Lnu)
    a(f's_lshr_b32 {T[2]}, {sWave}, 2')

    a(f's_mul_i32 {T[9]}, {T[2]}, {4 * KCS}')
    a(f's_add_u32 {T[9]}, {T[9]}, {KC}')
    a(f'v_and_b32 v16, 255, v1')
    a(f'v_lshl_add_u32 v16, v16, 4, {T[9]}')
    D = 20
    a(f'ds_read_b128 {vr(D, 4)}, v16')
    a(f'ds_read_b64 {vr(D + 4, 2)}, v16 offset:16')
    a('s_waitcnt lgkmcnt(0)')
    C1, C2, C3 = 32, 36, 40
    for k in range(4):
        a(f'v_alignbit_b32 v{C1 + k}, v{D + k + 1}, v{D + k}, 16')
        a(f'v_mov_b32 v{C2 + k}, v{D + k + 1}')
        a(f'v_alignbit_b32 v{C3 + k}, v{D + k + 2}, v{D + k + 1}, 16')
    a(f'ds_write_b128 v16, {vr(C1, 4)} offset:{KCS}')
    a(f'ds_write_b128 v16, {vr(C2, 4)} offset:{2 * KCS}')
    a(f'ds_write_b128 v16, {vr(C3, 4)} offset:{3 * KCS}')
    if dbg == 'K':
        a('s_waitcnt lgkmcnt(0)')
        a(f's_lshl_b32 {T[9]}, {sCP}, 13')
        a(f's_lshl_b32 {T[11]}, {T[2]}, 12')
        a(f's_add_u32 {T[9]}, {T[9]}, {T[11]}')
        a(f's_add_u32 {T[9]}, {T[9]}, {DBGK}')
        a(f'v_and_b32 v17, 255, v1')
        a(f'v_lshlrev_b32 v17, 4, v17')
        a(f'buffer_store_dwordx4 {vr(D, 4)}, v17, {SWS}, {T[9]} offen')
    stamp(a, 'C3')

    a('s_waitcnt lgkmcnt(0)')
    a('s_barrier')
    stamp(a, 'S3')

    Lnc = a.newlabel('L_noconv')
    Lce = a.newlabel('L_convend')
    a(f's_cmp_ge_u32 {sWave}, 4')
    a(f's_cbranch_scc1 {Lnc}')
    VA, VB = 2, 3
    ACC = 4
    AF = [36, 100]
    BF = [68, 132]
    a(f's_lshr_b32 {T[2]}, {sWave}, 1')
    a(f's_and_b32 {T[3]}, {sWave}, 1')
    a(f'v_and_b32 v164, 15, v0')
    a(f'v_lshrrev_b32 v165, 4, v0')
    a(f's_lshl_b32 {T[5]}, {T[3]}, 8')
    a(f'v_lshlrev_b32 v166, 5, v164')
    a(f'v_lshl_add_u32 v166, v165, 4, v166')
    a(f's_mul_i32 {T[4]}, {T[2]}, {UBS}')
    a(f's_sub_u32 {T[4]}, {T[4]}, {T[5]}')
    a(f's_add_u32 {T[4]}, {T[4]}, {UB + 480 - 192}')
    a(f'v_add_u32 v{VB}, {T[4]}, v166')
    a(f'v_and_b32 v166, 3, v164')
    a(f'v_sub_u32 v166, 3, v166')
    a(f'v_mul_u32_u24 v166, {KCS}, v166')
    a(f'v_lshrrev_b32 v167, 2, v164')
    a(f'v_lshlrev_b32 v167, 3, v167')
    a(f'v_sub_u32 v166, v166, v167')
    a(f'v_lshl_add_u32 v166, v165, 4, v166')
    a(f's_mul_i32 {T[4]}, {T[2]}, {4 * KCS}')
    a(f's_sub_u32 {T[4]}, {T[4]}, {T[5]}')
    a(f's_add_u32 {T[4]}, {T[4]}, {KC + 280}')
    a(f'v_add_u32 v{VA}, {T[4]}, v166')

    def conv_loads(q0i):
        s = q0i & 1
        out = []
        for k in range(8):
            offa = 512 * (7 - k) + 64 * (3 - q0i)
            offb = 512 * k + 64 * (3 - q0i)
            out.append(f'ds_read_b128 {vr(BF[s] + 4 * k, 4)}, v{VB} offset:{offb}')
            out.append(f'ds_read_b64 {vr(AF[s] + 4 * k, 2)}, v{VA} offset:{offa}')
            out.append(f'ds_read_b64 {vr(AF[s] + 4 * k + 2, 2)}, v{VA} offset:{offa + 8}')
        return out
    mf = []
    for ct in range(8):
        for q1 in range(ct + 1):
            mf.append((max(q1, ct - q1), ct, q1))
    mf.sort()
    loads = [(q, x) for q in range(4) for x in conv_loads(q)]
    issued = 0
    known = 0
    for q in range(4):
        s = q & 1
        for idx, (lvl, ct, q1) in enumerate(mf):
            need = 24 * q + 3 * (lvl + 1)
            if q == 0 and idx == 0:
                while issued < 15:
                    a(loads[issued][1]); issued += 1
            while issued < need:
                a(loads[issued][1]); issued += 1
            if known < need:
                assert issued - need <= 15
                a(f's_waitcnt lgkmcnt({issued - need})')
                known = need
            first = (q == 0 and (lvl, ct, q1) == min(m for m in mf if m[1] == ct))
            c = '0' if first else vr(ACC + 4 * ct, 4)
            a(f'v_mfma_f32_16x16x32_bf16 {vr(ACC + 4 * ct, 4)}, {vr(AF[s] + 4 * q1, 4)}, {vr(BF[s] + 4 * (ct - q1), 4)}, {c}')
            if issued < len(loads) and issued - known < 15 and loads[issued][0] <= q + 1:
                a(loads[issued][1]); issued += 1
    a(f's_lshl_b32 {T[4]}, {sWave}, 13')
    a(f's_add_u32 {T[4]}, {T[4]}, {PART}')
    a(f'v_lshl_add_u32 v{VA}, v0, 4, {T[4]}')
    for ct in range(8):
        a(f'ds_write_b128 v{VA}, {vr(ACC + 4 * ct, 4)} offset:{1024 * ct}')
    a(f's_branch {Lce}')
    a.label(Lnc)
    wprefetch(a)
    Lnt = a.newlabel('L_notouch')
    a(f's_cmp_eq_u32 {sWave}, 7')
    a(f's_cbranch_scc0 {Lnt}')
    srd(a, SB, P_WD, 1792 * 1024)
    a(f's_mul_i32 {T[5]}, {sW}, 7168')
    a(f'v_lshlrev_b32 v10, 4, v0')
    for i in range(7):
        if i == 4:
            a(f's_add_u32 {T[5]}, {T[5]}, 4096')
        a(f'buffer_load_dwordx4 v[200:203], v10, {SB}, {T[5]} offen offset:{1024 * (i & 3)}')
    a.label(Lnt)
    a.label(Lce)
    a('s_waitcnt lgkmcnt(0)')
    a('s_barrier')
    stamp(a, 'S4')

    a(f's_lshr_b32 {T[2]}, {sWave}, 2')
    a(f's_and_b32 {T[3]}, {sWave}, 3')
    a(f's_lshl_b32 {T[4]}, {T[2]}, 14')
    a(f's_lshl_b32 {T[5]}, {T[3]}, 11')
    a(f's_add_u32 {T[4]}, {T[4]}, {T[5]}')
    a(f's_add_u32 {T[4]}, {T[4]}, {PART}')
    a(f'v_lshl_add_u32 v2, v0, 4, {T[4]}')
    for i in range(2):
        a(f'ds_read_b128 {vr(4 + 8 * i, 4)}, v2 offset:{1024 * i}')
        a(f'ds_read_b128 {vr(8 + 8 * i, 4)}, v2 offset:{1024 * i + 8192}')
    a(f'v_and_b32 v20, 15, v0')
    a(f'v_lshrrev_b32 v21, 4, v0')
    a(f'v_lshlrev_b32 v20, 5, v20')
    a(f'v_lshl_add_u32 v20, v21, 3, v20')
    a(f's_lshl_b32 {T[5]}, {T[3]}, 10')
    a(f'v_add_u32 v20, {T[5]}, v20')
    a(f's_mul_i32 {T[6]}, {T[2]}, {UBS}')
    a(f's_add_u32 {T[6]}, {T[6]}, {UB + 512}')
    a(f'v_add_u32 v21, {T[6]}, v20')
    a(f's_lshl_b32 {T[6]}, {T[2]}, 12')
    a(f's_add_u32 {T[6]}, {T[6]}, {XB}')
    a(f'v_add_u32 v22, {T[6]}, v20')
    for i in range(2):
        a(f'ds_read_b64 {vr(24 + 4 * i, 2)}, v21 offset:{512 * i}')
        a(f'ds_read_b64 {vr(26 + 4 * i, 2)}, v22 offset:{512 * i}')
    a(f's_lshl_b32 {T[7]}, {sDSK}, 16')
    a(f's_and_b32 {T[8]}, {sDSK}, 0xffff0000')
    a(f's_cmp_eq_u32 {T[2]}, 0')
    a(f's_cselect_b32 {T[7]}, {T[7]}, {T[8]}')
    a(f's_lshl_b32 {T[8]}, {sCP}, 1')
    a(f's_add_u32 {T[8]}, {T[8]}, {T[2]}')
    a(f's_lshl_b32 {T[8]}, {T[8]}, 12')
    a(f's_add_u32 {T[8]}, {T[8]}, {HT}')
    a('s_waitcnt lgkmcnt(0)')
    Es = [32, 44]
    for i in range(2):
        Y, Y2 = 4 + 8 * i, 8 + 8 * i
        for k in range(4):
            a(f'v_add_f32 v{Y + k}, v{Y + k}, v{Y2 + k}')
    for i in range(2):
        Uu, Xx, E = 24 + 4 * i, 26 + 4 * i, Es[i]
        for k in range(2):
            a(f'v_lshlrev_b32 v{E + 2 * k}, 16, v{Xx + k}')
            a(f'v_and_b32 v{E + 2 * k + 1}, 0xffff0000, v{Xx + k}')
            a(f'v_lshlrev_b32 v{E + 4 + 2 * k}, 16, v{Uu + k}')
            a(f'v_and_b32 v{E + 4 + 2 * k + 1}, 0xffff0000, v{Uu + k}')
    for i in range(2):
        Y, E = 4 + 8 * i, Es[i]
        for k in range(4):
            a(f'v_fmac_f32 v{Y + k}, {T[7]}, v{E + 4 + k}')
    for i in range(2):
        Y, E = 4 + 8 * i, Es[i]
        for k in range(4):
            a(f'v_add_f32 v{Y + k}, v{Y + k}, v{E + k}')
    for i in range(2):
        Y = 4 + 8 * i
        a(f'v_cvt_pk_bf16_f32 v{56 + 2 * i}, v{Y}, v{Y + 1}')
        a(f'v_cvt_pk_bf16_f32 v{57 + 2 * i}, v{Y + 2}, v{Y + 3}')
    a(f'v_permlane16_swap_b32 v56, v58')
    a(f'v_permlane16_swap_b32 v57, v59')
    a(f'v_and_b32 v20, 15, v0')
    a(f'v_lshlrev_b32 v20, 5, v20')
    a(f'v_lshrrev_b32 v21, 5, v0')
    a(f'v_lshl_add_u32 v20, v21, 4, v20')
    a(f'v_bfe_u32 v21, v0, 4, 1')
    a(f'v_lshl_add_u32 v20, v21, 9, v20')
    a(f'v_add_u32 v20, {T[5]}, v20')
    store_h(a, T[8])
    a('s_waitcnt vmcnt(0)')
    a('s_barrier')
    stamp(a, 'S5')


def wprefetch(a):
    sWBp = T[16]
    PF1 = PAIRC + 20
    a(f's_mul_i32 {sWBp}, {sFB}, {7 * 32768}')
    a(f's_add_u32 {sWBp}, {sWBp}, {WP}')
    a(f'v_mov_b32 v22, {PF1}')
    a(f's_mov_b32 {sSpin}, 0')
    Lo = a.newlabel('L_pfo')
    Lgo = a.newlabel('L_pfgo')
    a(f's_cmp_eq_u32 {sWave}, 4')
    a(f's_cbranch_scc0 {Lo}')
    Lp = a.newlabel('L_prepoll')
    Lpd = a.newlabel('L_prepok')
    a(f'v_lshlrev_b32 v20, 4, v0')
    a(f's_mov_b32 {T[1]}, {PREPF}')
    a.label(Lp)
    a(f'buffer_load_dwordx4 v[16:19], v20, {SWS}, {T[1]} offen sc1')
    a(f's_add_u32 {sSpin}, {sSpin}, 1')
    a('s_waitcnt vmcnt(0)')
    for i_ in range(4):
        a(f'v_xor_b32 v{16 + i_}, {sTAG}, v{16 + i_}')
    a('v_or_b32 v16, v16, v17')
    a('v_or3_b32 v16, v16, v18, v19')
    a('v_cmp_ne_u32 vcc, 0, v16')
    a(f's_cmp_ge_u32 {sSpin}, {SPIN_MAX}')
    a(f's_cbranch_scc1 {Lpd}')
    a(f's_cbranch_vccz {Lpd}')
    a('s_sleep 2')
    a(f's_branch {Lp}')
    a.label(Lpd)
    a.label(Lo)
    stamp(a, 'pfok')


def store_h(a, soff):
    a(f'buffer_store_dwordx4 v[56:59], v20, {SWS}, {soff} offen sc1')


def wprep(a):
    AL15, GG_ = 84, 85
    a(f'v_and_b32 v{AL15}, 15, v0')
    a(f'v_lshrrev_b32 v{GG_}, 4, v0')
    a(f'v_lshrrev_b32 v99, 2, v{AL15}')
    a(f'v_lshrrev_b32 v100, 1, v{GG_}')
    a(f'v_lshl_add_u32 v99, v100, 3, v99')
    a(f'v_mul_u32_u24 v99, 224, v99')
    a(f'v_and_b32 v100, 3, v0')
    a(f'v_lshl_add_u32 v99, v100, 3, v99')
    a(f'v_and_b32 v100, 1, v{GG_}')
    a(f'v_mul_u32_u24 v100, {STG_U - STG_G}, v100')
    a(f'v_add_u32 v99, v99, v100')
    sJ0 = T[16]
    a(f's_sub_u32 {sJ0}, {sWave}, 4')
    a(f's_lshl_b32 {sJ0}, {sJ0}, 1')
    a(f's_lshl_b32 {T[17]}, {sJ0}, 5')
    a(f's_add_u32 {T[17]}, {T[17]}, {STG_G}')
    a(f'v_add_u32 v98, {T[17]}, v99')
    a(f'v_lshlrev_b32 v108, 4, v0')
    a(f'v_lshlrev_b32 v112, 2, v0')
    a(f'v_mov_b32 v152, 0x3f803f80')
    a(f'v_mov_b32 v153, 0x3f803f80')
    a(f's_lshr_b32 {T[17]}, {sW}, 4')
    a(f's_mul_i32 {T[17]}, {T[17]}, 7')
    a(f's_add_u32 {T[17]}, {T[17]}, {sJ0}')
    a(f's_lshl_b32 {T[17]}, {T[17]}, 5')
    a(f's_and_b32 {T[18]}, {sW}, 15')
    a(f's_lshl_b32 {T[18]}, {T[18]}, 1')
    a(f's_add_u32 {T[17]}, {T[17]}, {T[18]}')
    a(f's_lshl_b32 {T[17]}, {T[17]}, 10')
    a(f's_add_u32 {T[17]}, {T[17]}, {WP}')
    a(f's_mul_i32 {T[19]}, {sW}, 896')
    a(f's_lshl_b32 {T[18]}, {sJ0}, 7')
    a(f's_add_u32 {T[19]}, {T[19]}, {T[18]}')
    a(f's_add_u32 {T[19]}, {T[19]}, {CSP}')
    Ld = a.newlabel('L_prepdone')
    for jj in range(3):
        PF = 116 + 8 * jj
        if jj == 2:
            a(f's_cmp_eq_u32 {sWave}, 4')
            a(f's_cbranch_scc0 {Ld}_r')
        dj = jj if jj < 2 else 6
        for kk in range(2):
            for rd in range(2):
                a(f'ds_read_b64_tr_b16 {vr(PF + 4 * kk + 2 * rd, 2)}, v98 offset:{(16 * kk + 4 * rd) * 224 + 32 * dj}')
    a.label(Ld + '_r')
    a('s_waitcnt lgkmcnt(0)')
    for jj in range(3):
        PF = 116 + 8 * jj
        dj = jj if jj < 2 else 6
        if jj == 2:
            a(f's_cmp_eq_u32 {sWave}, 4')
            a(f's_cbranch_scc0 {Ld}')
        a(f's_add_u32 {T[18]}, {T[17]}, {32 * 1024 * dj}')
        a(f'buffer_store_dwordx4 {vr(PF, 4)}, v108, {SWS}, {T[18]} offen sc1')
        a(f'buffer_store_dwordx4 {vr(PF + 4, 4)}, v108, {SWS}, {T[18]} offen offset:1024 sc1')
        SM = 140 + 4 * jj
        for i in range(4):
            a(f'v_mfma_f32_4x4x4_16b_bf16 {vr(SM, 4)}, v[152:153], {vr(PF + 2 * i, 2)}, {"0" if i == 0 else vr(SM, 4)}')
        a(f'v_mov_b32 v110, v{SM}')
        a(f'v_mov_b32 v111, v{SM}')
        a(f'v_permlane32_swap_b32 v110, v111')
        a(f'v_add_f32 v110, v110, v111')
        a(f's_add_u32 {T[18]}, {T[19]}, {128 * dj}')
        a(f's_mov_b64 {sEX}, exec')
        a('s_mov_b32 exec_hi, 0')
        a(f'buffer_store_dword v110, v112, {SWS}, {T[18]} offen sc1')
        a(f's_mov_b64 exec, {sEX}')
    a.label(Ld)


def ln_finish2(a, S, Q, t):
    def each(fmt):
        for r in range(2):
            a(fmt.format(S=S[r], Q=Q[r], t=t[r]))
    each('v_mul_f32 v{S}, 0x3b000000, v{S}')
    each('v_mul_f32 v{Q}, 0x3b000000, v{Q}')
    each('v_fma_f32 v{Q}, -v{S}, v{S}, v{Q}')
    each('v_max_f32 v{Q}, 0, v{Q}')
    each('v_cvt_pk_bf16_f32 v{t}, v{Q}, v{Q}')
    each('v_lshlrev_b32 v{t}, 16, v{t}')
    each('v_add_f32 v{t}, 0x3727c5ac, v{t}')
    each('v_cvt_pk_bf16_f32 v{t}, v{t}, v{t}')
    each('v_lshlrev_b32 v{t}, 16, v{t}')
    each('v_sqrt_f32 v{t}, v{t}')
    each('v_cvt_pk_bf16_f32 v{t}, v{t}, v{t}')
    each('v_lshlrev_b32 v{Q}, 16, v{t}')


def ln_finish(a, S, Q, t3, t4):
    a(f'v_mul_f32 v{S}, 0x3b000000, v{S}')
    a(f'v_mul_f32 v{Q}, 0x3b000000, v{Q}')
    a(f'v_fma_f32 v{Q}, -v{S}, v{S}, v{Q}')
    a(f'v_max_f32 v{Q}, 0, v{Q}')
    a(f'v_cvt_pk_bf16_f32 v{t3}, v{Q}, v{Q}')
    a(f'v_lshlrev_b32 v{t3}, 16, v{t3}')
    a(f'v_add_f32 v{t3}, 0x3727c5ac, v{t3}')
    a(f'v_cvt_pk_bf16_f32 v{t3}, v{t3}, v{t3}')
    a(f'v_lshlrev_b32 v{t3}, 16, v{t3}')
    a(f'v_sqrt_f32 v{t3}, v{t3}')
    a(f'v_cvt_pk_bf16_f32 v{t4}, v{t3}, v{t3}')
    a(f'v_lshlrev_b32 v{Q}, 16, v{t4}')


HEADER = """; Fused pre-LN S4D convolution + pre-LN GEGLU FFN, one persistent launch (256 workgroups x 512 threads).
; d_in order: A_u, log_A_real, A_imag, C_real, C_imag, log_dt, D_skip, B_x, w_gate, w_up, w_down ; d_out, d_debug, d_ws
; @launch grid=(256,1,1) block=(512,1,1) lds=%d
.amdgcn_target "amdgcn-amd-amdhsa--gfx950"
.text
.globl %s
.p2align 8
.type %s,@function
""" % (LDS_SIZE, KNAME, KNAME)

FOOTER = """.section .rodata,"a"
.p2align 6
.amdhsa_kernel %s
  .amdhsa_next_free_vgpr 256
  .amdhsa_next_free_sgpr 102
  .amdhsa_accum_offset 256
  .amdhsa_group_segment_fixed_size 0
  .amdhsa_kernarg_size 112
  .amdhsa_user_sgpr_count 2
  .amdhsa_user_sgpr_kernarg_segment_ptr 1
  .amdhsa_system_sgpr_workgroup_id_x 1
.end_amdhsa_kernel
""" % KNAME


def build(upto='all', dbg=None):
    a = Asm()
    STAMPS['on'] = (dbg is not None and dbg.startswith('T'))
    STAMPS['only'] = set(dbg[2:].split(',')) if (dbg and len(dbg) > 2) else None
    STAMPS['names'] = []
    a.label(KNAME)
    entry(a)
    p12(a, dbg)
    if upto in ('p3', 'all'):
        import gen34
        gen34.p3(a, dbg)
        if upto == 'all':
            gen34.p4(a, dbg)
    dump_stamps(a)
    a.label('L_end')
    a('s_endpgm')
    n = a.fix_hazards()
    return HEADER + a.text() + FOOTER, n


if __name__ == '__main__':
    upto = sys.argv[1] if len(sys.argv) > 1 else 'all'
    dbg = sys.argv[2] if len(sys.argv) > 2 and sys.argv[2] != '-' else None
    out = sys.argv[3] if len(sys.argv) > 3 else 'out.s'
    txt, n = build(upto, dbg)
    open(out, 'w').write(txt)
    if dbg and dbg.startswith('T'):
        open(out + '.stamps', 'w').write(' '.join(STAMPS['names']))
    print(f'wrote {out}: {len(txt)} bytes, {txt.count(chr(10))} lines, {n} nops inserted')
```

```python
from gen import *
import gen as G
import math
import struct


def f2h(x):
    return hex(struct.unpack('<I', struct.pack('<f', x))[0])


K1 = f2h(-2.0 * math.sqrt(2.0 / math.pi) * math.log2(math.e))
K2 = f2h(-2.0 * math.sqrt(2.0 / math.pi) * math.log2(math.e) * 0.044715)

H = 128
ACC0 = 16
ACC1 = 32
WF = 48
WF0 = 48
CS = 64
TMP = 80
CSLD = 96
vWD = 112
vHA = 2
vWA = 3
vM, vR = 4, 5
vC1, vC2, vS2S = 6, 113, 114
vL16 = 7
vS1, vS2, vQ1, vQ2 = 8, 9, 10, 11
vCSA = 12
vHD = 13
vT0, vT1 = 14, 15

sGrp, sTq = T[20], T[21]
sWB = T[22]
sGB = T[23]
SWD = SA


class Q:
    def __init__(self, a):
        self.a = a
        self.q = []

    def add(self, tag, n=1):
        self.q += [tag] * n

    def has(self, tag):
        return tag in self.q

    def wait(self, tag):
        last = max(i for i, t in enumerate(self.q) if t == tag)
        n = len(self.q) - 1 - last
        self.a(f's_waitcnt vmcnt({n})')
        del self.q[:last + 1]


def dma_w8(a, j, slot):
    a(f's_lshl_b32 {T[1]}, {sWave}, 12')
    a(f's_add_u32 {T[0]}, {sWB}, {T[1]}')
    a(f's_add_u32 {T[0]}, {T[0]}, {j * 32768}')
    a(f's_add_u32 m0, {T[1]}, {G.WSLOT[slot]}')
    a('s_nop 0')
    for i in range(4):
        a(f'buffer_load_dwordx4 v{vL16}, {SWS}, {T[0]} offen offset:{1024 * i} lds')


def dma_w4(a, j, slot):
    a(f's_lshl_b32 {T[1]}, {sTq}, 13')
    a(f's_add_u32 {T[0]}, {sWB}, {T[1]}')
    a(f's_add_u32 {T[0]}, {T[0]}, {j * 32768}')
    a(f's_add_u32 m0, {T[1]}, {G.WSLOT[slot]}')
    a('s_nop 0')
    for i in range(4):
        a(f'buffer_load_dwordx4 v{vL16}, {SWS}, {T[0]} offen offset:{1024 * i} lds')
    a(f's_add_u32 m0, m0, 4096')
    a(f's_add_u32 {T[0]}, {T[0]}, 4096')
    for i in range(4):
        a(f'buffer_load_dwordx4 v{vL16}, {SWS}, {T[0]} offen offset:{1024 * i} lds')


def dma_h(a, s):
    a(f's_lshl_b32 {T[1]}, {sWave}, 10')
    a(f's_add_u32 m0, {T[1]}, {HRING + (s % NRING) * 8192}')
    a(f's_mov_b32 {T[0]}, {HT + s * 32 * 4096}')
    a(f'buffer_load_dwordx4 v{vHD}, {SWS}, {T[0]} offen lds')


def dma_wd4(a, c):
    a(f's_lshl_b32 {T[1]}, {sTq}, 12')
    a(f's_add_u32 m0, {T[1]}, {(c % NWD) * WDSLOT}')
    a(f's_lshl_b32 {T[0]}, {sTq}, 15')
    a(f's_add_u32 {T[0]}, {T[0]}, {c * 128 * 1024}')
    for i in range(4):
        if i:
            a(f's_add_u32 m0, m0, 1024')
            a(f's_add_u32 {T[0]}, {T[0]}, 8192')
        a(f'buffer_load_dwordx4 v{vWD}, {SWD}, {T[0]} offen lds')


def dma_wd8(a, c):
    a(f's_bitcmp1_b32 {sWave}, 0')
    a(f's_mov_b32 {T[0]}, {16 * 1024 * kconst(2 * c)}')
    a(f's_cselect_b32 {T[0]}, {16 * 1024 * kconst(2 * c + 1)}, {T[0]}')
    a(f's_add_u32 {T[0]}, {T[0]}, {sD8}')
    a(f's_lshl_b32 {T[1]}, {sWave}, 11')
    a(f's_add_u32 m0, {T[1]}, {(c % NWD) * WDSLOT}')
    a('s_nop 0')
    a(f'buffer_load_dwordx4 v{vWD}, {SWD}, {T[0]} offen lds')
    a(f's_add_u32 m0, m0, 1024')
    a(f's_add_u32 {T[0]}, {T[0]}, 8192')
    a(f'buffer_load_dwordx4 v{vWD}, {SWD}, {T[0]} offen lds')


sWq, sMq, sDq, sM4q = T[16], T[17], T[18], T[19]
sTT, sKQ, sG, sD8 = 's16', 's17', 's18', 's19'


def kconst(nn):
    if nn < 12:
        return 28 * (nn // 3) + nn % 3
    if nn < 20:
        return 28 * ((nn - 12) // 2) + 3 + (nn - 12) % 2
    return 28 * ((nn - 20) // 2) + 5 + (nn - 20) % 2


def w_pieces(j, slot):
    return [[f's_add_u32 m0, {sMq}, {G.WSLOT[slot] + 1024 * i}',
             f's_add_u32 {T[0]}, {sWq}, {j * 32768 + 1024 * i}',
             f'buffer_load_dwordx4 v{vL16}, {SWS}, {T[0]} offen lds'] for i in range(8)]


def wd_pieces(c):
    return [[f's_add_u32 m0, {sM4q}, {(c % NWD) * WDSLOT + 1024 * i}',
             f's_add_u32 {T[0]}, {sDq}, {(16 * kconst(2 * c + (i >> 1)) + 8 * (i & 1)) * 1024}',
             f'buffer_load_dwordx4 v{vWD}, {SWD}, {T[0]} offen lds'] for i in range(4)]


def mfma_phase(a, acc, slot, pieces=(), first=1, last=30):
    n = 32
    depth = 6
    at = {}
    if pieces:
        m = len(pieces)
        for idx, p in enumerate(pieces):
            k = first + (idx * (last - first)) // max(m - 1, 1) if m > 1 else first
            at.setdefault(k, []).append(p)
    a(f'v_add_u32 v{vWA}, {G.WSLOT[slot]}, v{vL16}')
    a('s_setprio 1')
    for k in range(depth):
        a(f'ds_read_b128 {vr(WF + 4 * (k % 8), 4)}, v{vWA} offset:{1024 * k}')
    for k in range(n):
        if k + depth < n:
            a(f'ds_read_b128 {vr(WF + 4 * ((k + depth) % 8), 4)}, v{vWA} offset:{1024 * (k + depth)}')
            a(f's_waitcnt lgkmcnt({depth})')
        else:
            a(f's_waitcnt lgkmcnt({n - 1 - k})')
        c = '0' if k == 0 else vr(acc, 16)
        a(f'v_mfma_f32_32x32x16_bf16 {vr(acc, 16)}, {vr(WF + 4 * (k % 8), 4)}, {vr(H + 4 * k, 4)}, {c}')
        for p in at.get(k, []):
            for x in p:
                a(x)
    a('s_setprio 0')


def epilogue(a, acc, j):
    for i in range(4):
        a(f'ds_read_b128 {vr(CS + 4 * i, 4)}, v{vCSA} offset:{128 * j + 32 * i}')
    a(f's_add_u32 {T[3]}, {sGB}, {1024 * j}')
    Z = TMP
    for i in range(4):
        a(f's_waitcnt lgkmcnt({3 - i})')
        for k in range(4):
            a(f'v_fmac_f32 v{acc + 4 * i + k}, v{vM}, v{CS + 4 * i + k}')
        if i < 2:
            for k in range(4):
                a(f'v_mul_f32 v{Z + 4 * i + k}, v{acc + 4 * i + k}, v{acc + 4 * i + k}')
    for i in range(8):
        a(f'v_fma_f32 v{Z + i}, v{Z + i}, v{vC2}, v{vC1}')
    for i in range(8):
        a(f'v_mul_f32 v{Z + i}, v{Z + i}, v{acc + i}')
    for i in range(8):
        a(f'v_exp_f32 v{Z + i}, v{Z + i}')
        a(f'v_mul_f32 v{acc + i}, v{acc + i}, v{acc + 8 + i}')
    for i in range(8):
        a(f'v_fma_f32 v{Z + i}, v{Z + i}, v{vS2S}, v{vS2S}')
    for i in range(8):
        a(f'v_rcp_f32 v{Z + i}, v{Z + i}')
    P = TMP + 8
    for i in range(4):
        a(f'v_mul_f32 v{acc + 2 * i}, v{acc + 2 * i}, v{Z + 2 * i}')
        a(f'v_mul_f32 v{acc + 2 * i + 1}, v{acc + 2 * i + 1}, v{Z + 2 * i + 1}')
        a(f'v_cvt_pk_bf16_f32 v{P + i}, v{acc + 2 * i}, v{acc + 2 * i + 1}')
    a(f'v_permlane32_swap_b32 v{P}, v{P + 2}')
    a(f'v_permlane32_swap_b32 v{P + 1}, v{P + 3}')
    a(f'buffer_store_dwordx4 {vr(P, 4)}, v{vL16}, {SWS}, {T[3]} offen sc1')


def stats_final(a):
    ln_finish(a, vS1, vQ1, vT0, vT1)
    a(f'v_cvt_pk_bf16_f32 v{vT0}, v{vS1}, v{vS1}')
    a(f'v_rcp_f32 v{vR}, v{vQ1}')
    a(f'v_lshlrev_b32 v{vT0}, 16, v{vT0}')
    a(f'v_sub_f32 v{vM}, 0, v{vT0}')
    a(f'v_mul_f32 v{vS2S}, v{vQ1}, v{vQ1}')
    a(f'v_mul_f32 v{vC1}, {K1}, v{vR}')
    a(f'v_mul_f32 v{vC2}, v{vR}, v{vR}')
    a(f'v_mul_f32 v{vC2}, v{vC2}, v{vR}')
    a(f'v_mul_f32 v{vC2}, {K2}, v{vC2}')


def p3(a, dbg):
    a.comment('================ P3: LN2 + gate/up GEMM + GEGLU')
    Lb2 = a.newlabel('L_arr2')
    a(f's_cmp_eq_u32 {sWave}, 7')
    a(f's_cbranch_scc0 {Lb2}')
    a(f's_and_b32 {T[1]}, {sW}, 15')
    a(f's_lshl_b32 {T[1]}, {T[1]}, 8')
    a(f's_add_u32 {T[1]}, {T[1]}, {CNT2}')
    arrive(a, T[1], 'v16', 'v17')
    a.label(Lb2)
    a(f's_lshr_b32 {sGrp}, {sWave}, 2')
    a(f's_and_b32 {sTq}, {sWave}, 3')
    a(f's_mul_i32 {sWB}, {sFB}, {7 * 32768}')
    a(f's_add_u32 {sWB}, {sWB}, {WP}')
    a(f's_lshl_b32 {T[0]}, {sTB}, 2')
    a(f's_add_u32 {T[0]}, {T[0]}, {sTq}')
    a(f's_mul_i32 {T[0]}, {T[0]}, 112')
    a(f's_mul_i32 {T[1]}, {sFB}, 7')
    a(f's_add_u32 {T[0]}, {T[0]}, {T[1]}')
    a(f's_lshl_b32 {T[0]}, {T[0]}, 10')
    a(f's_add_u32 {sGB}, {T[0]}, {GG}')
    a(f'v_lshlrev_b32 v{vL16}, 4, v0')
    a(f'v_lshrrev_b32 v{vT0}, 4, v0')
    a(f'v_and_b32 v{vT1}, 15, v0')
    a(f'v_lshlrev_b32 v{vHD}, 2, v{vT0}')
    a(f'v_xor_b32 v{vHD}, v{vHD}, v{vT1}')
    a(f'v_lshlrev_b32 v{vHD}, 4, v{vHD}')
    a(f's_lshl_b32 {T[0]}, {sWave}, 2')
    a(f'v_add_u32 v{vT0}, {T[0]}, v{vT0}')
    a(f'v_lshl_add_u32 v{vHD}, v{vT0}, 12, v{vHD}')
    a(f's_lshl_b32 {T[0]}, {sTB}, 8')
    a(f'v_add_u32 v{vHD}, {T[0]}, v{vHD}')
    a(f'v_lshrrev_b32 v{TMP}, 2, v{vT1}')
    a(f'v_lshrrev_b32 v{TMP + 1}, 5, v0')
    a(f'v_lshl_add_u32 v{TMP + 1}, v{TMP + 1}, 3, v{TMP}')
    a(f'v_lshlrev_b32 v{vHA}, 8, v{TMP + 1}')
    a(f'v_xor_b32 v{TMP}, {sTq}, v{TMP}')
    a(f'v_lshlrev_b32 v{TMP}, 2, v{TMP}')
    a(f'v_bfe_u32 v{TMP + 1}, v0, 4, 1')
    a(f'v_lshl_add_u32 v{TMP}, v{TMP + 1}, 1, v{TMP}')
    a(f'v_bfe_u32 v{TMP + 1}, v0, 1, 1')
    a(f'v_add_u32 v{TMP}, v{TMP}, v{TMP + 1}')
    a(f'v_lshl_add_u32 v{vHA}, v{TMP}, 4, v{vHA}')
    a(f'v_and_b32 v{TMP}, 1, v0')
    a(f'v_lshl_add_u32 v{vHA}, v{TMP}, 3, v{vHA}')
    a(f's_mul_i32 {T[0]}, {sGrp}, {G.WSLOT[1] - G.WSLOT[0]}')
    a(f's_add_u32 {T[0]}, {T[0]}, {G.WSLOT[0]}')
    a(f'v_add_u32 v{vWA}, {T[0]}, v{vL16}')
    a(f'v_lshrrev_b32 v{vT0}, 5, v0')
    a(f'v_lshlrev_b32 v{vT0}, 4, v{vT0}')
    a(f'v_add_u32 v{vCSA}, {CSL}, v{vT0}')
    for r_ in (vS1, vS2, vQ1, vQ2):
        a(f'v_mov_b32 v{r_}, 0')
    srd(a, SWD, P_WD, 1792 * 1024)
    a(f'v_lshrrev_b32 v{vT0}, 3, v0')
    a(f'v_bfe_u32 v{vT1}, v0, 4, 1')
    a(f'v_lshlrev_b32 v{vT1}, 2, v{vT1}')
    a(f'v_and_b32 v{vWD}, 7, v0')
    a(f'v_xor_b32 v{vWD}, v{vWD}, v{vT1}')
    a(f'v_lshlrev_b32 v{vWD}, 4, v{vWD}')
    a(f'v_lshl_add_u32 v{vWD}, v{vT0}, 10, v{vWD}')
    a(f's_lshl_b32 {T[1]}, {sDB}, 7')
    a(f'v_add_u32 v{vWD}, {T[1]}, v{vWD}')
    a(f's_lshl_b32 {sMq}, {sTq}, 13')
    a(f's_add_u32 {sWq}, {sWB}, {sMq}')
    a(f's_lshl_b32 {sM4q}, {sTq}, 12')
    a(f's_mul_i32 {sDq}, {sTq}, {7 * 16 * 1024}')
    L6 = a.newlabel('L_p3w6')
    L7 = a.newlabel('L_p3w7')
    LS6 = a.newlabel('L_S6')
    a('s_barrier')
    a(f's_cmp_eq_u32 {sWave}, 7')
    a(f's_cbranch_scc1 {L7}')
    a(f's_cmp_eq_u32 {sWave}, 6')
    a(f's_cbranch_scc1 {L6}')
    a(f's_lshl_b32 {T[1]}, {sWave}, 14')
    a(f's_add_u32 {T[0]}, {sWB}, {T[1]}')
    a(f's_add_u32 m0, {T[1]}, {G.WSLOT[0]}')
    for g4 in range(4):
        if g4:
            a('s_add_u32 m0, m0, 4096')
            a(f's_add_u32 {T[0]}, {T[0]}, 4096')
        else:
            a('s_nop 0')
        for i_ in range(4):
            a(f'buffer_load_dwordx4 v{vL16}, {SWS}, {T[0]} offen offset:{1024 * i_} lds')
    a(f's_cmp_ge_u32 {sWave}, 4')
    a(f's_cbranch_scc1 {LS6}')
    a(f's_mul_i32 {T[0]}, {sFB}, {16 * 896}')
    a(f's_add_u32 {T[0]}, {T[0]}, {CSP}')
    a(f'v_lshlrev_b32 v{vT0}, 2, v1')
    a(f'v_min_u32 v{vT0}, {223 * 4}, v{vT0}')
    for q in range(16):
        if q:
            a(f's_add_u32 {T[0]}, {T[0]}, 896')
        a(f'buffer_load_dword v{CSLD + q}, v{vT0}, {SWS}, {T[0]} offen')
    a(f's_branch {LS6}')
    a.label(L6)
    a(f's_and_b32 {T[1]}, {sY}, 3')
    a(f's_lshl_b32 {T[1]}, {T[1]}, 15')
    a(f's_add_u32 {T[0]}, {sWB}, {T[1]}')
    a(f's_add_u32 {T[0]}, {T[0]}, {3 * 32768}')
    a(f'v_lshlrev_b32 v20, 7, v0')
    for i_ in range(4):
        if i_:
            a(f's_add_u32 {T[0]}, {T[0]}, 8192')
        a(f'buffer_load_dword v21, v20, {SWS}, {T[0]} offen')
    a(f's_branch {LS6}')
    a.label(L7)
    poll_ge(a, CNT2, 16, 256, 16, 'v16', 'v17', 'b2')
    a(f's_and_b32 {T[1]}, {sFB}, 7')
    a(f's_lshl_b32 {T[1]}, {T[1]}, 18')
    a(f's_lshl_b32 {T[0]}, {sTB}, 8')
    a(f's_add_u32 {T[0]}, {T[0]}, {T[1]}')
    a(f's_add_u32 {T[0]}, {T[0]}, {HT}')
    a(f'v_lshlrev_b32 v20, 12, v0')
    a(f'buffer_load_dword v21, v20, {SWS}, {T[0]} offen')
    a(f'buffer_load_dword v21, v20, {SWS}, {T[0]} offen offset:128')
    Lne = a.newlabel('L_noep')
    a(f's_cmp_eq_u32 {sW}, 0')
    a(f's_cbranch_scc0 {Lne}')
    a(f'v_mov_b32 v16, {sTAG}')
    a(f'v_mov_b32 v17, 0')
    a(f's_mov_b32 {T[1]}, {EPOCH}')
    a(f's_mov_b64 {sEX}, exec')
    a('s_mov_b64 exec, 1')
    a(f'buffer_store_dword v16, v17, {SWS}, {T[1]} offen sc1')
    a(f's_mov_b64 exec, {sEX}')
    a.label(Lne)
    a.label(LS6)
    a('s_barrier')
    G.stamp(a, 'S6'); G.stamp(a, '@kS6')
    for s in range(NRING - 1):
        dma_h(a, s)
    SUMR, GRM, ONES = 116, 120, 124

    def phase0(g):
        a(f'v_mov_b32 v{ONES}, 0x3f803f80')
        a(f'v_mov_b32 v{ONES + 1}, 0x3f803f80')

        def compute_slice(s, fill=()):
            fill = list(fill)
            for kk in range(2):
                k = 2 * s + kk
                c = '0' if k == 0 else vr(ACC0, 16)
                hs = vr(H + 4 * k + 2 * g, 2)
                a(f'v_mfma_f32_32x32x16_bf16 {vr(ACC0, 16)}, {vr(WF0 + 8 * (s & 1) + 4 * kk, 4)}, {vr(H + 4 * k, 4)}, {c}')
                while fill:
                    a(fill.pop(0))
                a(f'v_mfma_f32_4x4x4_16b_bf16 {vr(SUMR, 4)}, {vr(ONES, 2)}, {hs}, {"0" if k == 0 else vr(SUMR, 4)}')
                a(f'v_mfma_f32_4x4x4_16b_bf16 {vr(GRM, 4)}, {hs}, {hs}, {"0" if k == 0 else vr(GRM, 4)}')
            for x in fill:
                a(x)
        for s in range(16):
            issued = min(s + NRING - 1, 16)
            if s in (7, 8) and g == 0:
                G.stamp(a, f'@a{s}')
            a(f's_waitcnt vmcnt({issued - 1 - s}) lgkmcnt(0)')
            if s in (7, 8) and g == 0:
                G.stamp(a, f'@b{s}')
            a('s_barrier')
            if s in (7, 8) and g == 0:
                G.stamp(a, f'@c{s}')
            if g == 0:
                if s == 0:
                    G.stamp(a, 'h0')
                if s in (4, 8, 12):
                    G.stamp(a, f'h{s}')
            base = (s % NRING) * 8192 + HRING
            rds = []
            for kk in range(2):
                k = 2 * s + kk
                rds.append(f'ds_read_b64_tr_b16 {vr(H + 4 * k, 2)}, v{vHA} offset:{base + kk * 4096}')
                rds.append(f'ds_read_b64_tr_b16 {vr(H + 4 * k + 2, 2)}, v{vHA} offset:{base + kk * 4096 + 1024}')
                rds.append(f'ds_read_b128 {vr(WF0 + 8 * (s & 1) + 4 * kk, 4)}, v{vWA} offset:{1024 * k}')
            if s > 0:
                compute_slice(s - 1, rds)
            else:
                for x in rds:
                    a(x)
            if s + NRING - 1 < 16:
                dma_h(a, s + NRING - 1)
            if s == 0 and g == 0:
                for st in (8, 4, 2, 1):
                    for q in range(st):
                        a(f'v_add_f32 v{CSLD + q}, v{CSLD + q}, v{CSLD + q + st}')
                a(f'v_lshlrev_b32 v{vT0}, 2, v1')
                a(f'v_min_u32 v{vT0}, {223 * 4}, v{vT0}')
                a(f'v_add_u32 v{vT0}, {CSL}, v{vT0}')
                a(f'ds_write_b32 v{vT0}, v{CSLD}')
        a('s_waitcnt lgkmcnt(0)')
        compute_slice(15)
        if g == 0:
            G.stamp(a, 'ph0'); G.stamp(a, '@kph0')
        a(f'v_and_b32 v{vT0}, 3, v0')
        a(f'v_cmp_eq_u32 vcc, 1, v{vT0}')
        a(f'v_cndmask_b32 v{vQ1}, v{GRM}, v{GRM + 1}, vcc')
        a(f'v_cmp_eq_u32 vcc, 2, v{vT0}')
        a(f'v_cndmask_b32 v{vQ1}, v{vQ1}, v{GRM + 2}, vcc')
        a(f'v_cmp_eq_u32 vcc, 3, v{vT0}')
        a(f'v_cndmask_b32 v{vQ1}, v{vQ1}, v{GRM + 3}, vcc')
        a(f'v_mov_b32 v{vS1}, v{SUMR}')
        a(f'v_mov_b32 v{vS2}, v{SUMR}')
        a(f'v_mov_b32 v{vQ2}, v{vQ1}')
        a(f'v_permlane32_swap_b32 v{vS1}, v{vS2}')
        a(f'v_permlane32_swap_b32 v{vQ1}, v{vQ2}')
        a(f'v_add_f32 v{vS1}, v{vS1}, v{vS2}')
        a(f'v_add_f32 v{vS2}, v{vQ1}, v{vQ2}')
        a(f's_lshl_b32 {T[0]}, {sWave}, 9')
        a(f's_add_u32 {T[0]}, {T[0]}, {SXCH}')
        a(f'v_lshl_add_u32 v{vT0}, v0, 3, {T[0]}')
        a(f'ds_write_b64 v{vT0}, {vr(vS1, 2)}')
        assert SXCH % 4096 == 0
        a(f'v_xor_b32 v{vT0}, 2048, v{vT0}')
        a('s_waitcnt lgkmcnt(0)')
        a('s_barrier')

    def finish_stats():
        a(f'ds_read_b64 {vr(vQ1, 2)}, v{vT0}')
        a('s_waitcnt lgkmcnt(0)')
        a(f'v_add_f32 v{vS1}, v{vS1}, v{vQ1}')
        a(f'v_add_f32 v{vQ1}, v{vS2}, v{vQ2}')
        stats_final(a)
    LB = a.newlabel('L_grpB')
    LJ = a.newlabel('L_join')
    a(f's_cmp_eq_u32 {sGrp}, 0')
    a(f's_cbranch_scc0 {LB}')
    phase0(0)
    q = Q(a)
    a(f'ds_read_b64 {vr(vQ1, 2)}, v{vT0}')
    mfma_phase(a, ACC1, 2, w_pieces(4, 0), first=8); q.add('W4', 8)
    a(f'v_add_f32 v{vS1}, v{vS1}, v{vQ1}')
    a(f'v_add_f32 v{vQ1}, v{vS2}, v{vQ2}')
    stats_final(a)
    a('s_barrier')
    G.stamp(a, 'p1')
    epilogue(a, ACC0, 0); q.add('st')
    epilogue(a, ACC1, 2); q.add('st')
    q.wait('W4')
    a('s_barrier')
    G.stamp(a, 'p2'); G.stamp(a, '@kp2')
    mfma_phase(a, ACC0, 0, wd_pieces(0) + wd_pieces(1) + wd_pieces(2)); q.add('wd', 12)
    q.wait('st')
    a('s_barrier')
    G.stamp(a, 'p3')
    La = a.newlabel('L_arr3a')
    a(f's_cmp_eq_u32 {sWave}, 0')
    a(f's_cbranch_scc0 {La}')
    a(f's_lshl_b32 {T[1]}, {sTB}, 8')
    a(f's_add_u32 {T[1]}, {T[1]}, {CNT3A}')
    arrive(a, T[1], f'v{vT0}', f'v{vT1}')
    a.label(La)
    epilogue(a, ACC0, 4); q.add('st')
    p4_setup(a)
    a('s_barrier')
    G.stamp(a, 'p4')
    mfma_phase(a, ACC0, 2, wd_pieces(5) + wd_pieces(6)); q.add('wd', 8)
    q.wait('st')
    a('s_barrier')
    G.stamp(a, 'p5'); G.stamp(a, '@kp5')
    epilogue(a, ACC0, 6)
    load_g1(a)
    a(f's_branch {LJ}')
    a.label(LB)
    phase0(1)
    q = Q(a)
    for p in w_pieces(3, 3):
        for x in p:
            a(x)
    q.add('W3', 8)
    finish_stats()
    epilogue(a, ACC0, 1); q.add('st')
    q.wait('W3')
    a('s_barrier')
    mfma_phase(a, ACC0, 3, w_pieces(5, 1) + w_pieces(6, 2)); q.add('W5', 8); q.add('W6', 8)
    a('s_barrier')
    epilogue(a, ACC0, 3); q.add('st')
    p4_setup(a)
    q.wait('W5')
    a('s_barrier')
    mfma_phase(a, ACC0, 1, wd_pieces(3) + wd_pieces(4)); q.add('wd', 8)
    q.wait('W6')
    a('s_barrier')
    L7a = a.newlabel('L_p7a')
    L7b = a.newlabel('L_p7b')
    a(f's_lshr_b32 {T[5]}, {sT64}, 1')
    a(f's_lshl_b32 {T[5]}, {T[5]}, 8')
    a(f's_add_u32 {T[5]}, {T[5]}, {CNT3A}')
    a(f's_cmp_eq_u32 {sWave}, 7')
    a(f's_cbranch_scc0 {L7a}')
    a(f'v_mov_b32 v{TMP + 14}, 0')
    a(f'buffer_load_dword v{TMP + 15}, v{TMP + 14}, {SWS}, {T[5]} offen sc1')
    a.label(L7a)
    epilogue(a, ACC0, 5)
    a(f's_cmp_eq_u32 {sWave}, 7')
    a(f's_cbranch_scc0 {L7b}')
    a('s_waitcnt vmcnt(1)')
    a(f'v_cmp_gt_u32 vcc, 16, v{TMP + 15}')
    a(f's_cbranch_vccz {L7b}')
    poll_ge(a, T[5], 1, 256, 16, f'v{TMP + 15}', f'v{TMP + 14}', 'b3a')
    a.label(L7b)
    a('s_waitcnt vmcnt(9)')
    a('s_barrier')
    Lb = a.newlabel('L_arr3b')
    a(f's_cmp_eq_u32 {sWave}, 4')
    a(f's_cbranch_scc0 {Lb}')
    a(f's_lshl_b32 {T[1]}, {sTB}, 8')
    a(f's_add_u32 {T[1]}, {T[1]}, {CNT3B}')
    arrive(a, T[1], f'v{vT0}', f'v{vT1}')
    a.label(Lb)
    load_g1(a)
    a.label(LJ)
    G.stamp(a, 'P3end'); G.stamp(a, '@kP3end')
    a('s_waitcnt vmcnt(12)')
    a('s_barrier')
    G.stamp(a, 'drain3')
    Lb3 = a.newlabel('L_b3')
    a(f's_cmp_eq_u32 {sWave}, 0')
    a(f's_cbranch_scc0 {Lb3}')
    a(f's_lshl_b32 {T[1]}, {sTB}, 8')
    a(f's_add_u32 {T[1]}, {T[1]}, {CNT3}')
    arrive(a, T[1], f'v{vT0}', f'v{vT1}')
    a.label(Lb3)


G1R, G2R = 128, 176
vL, vAA, vAA1 = 7, 2, 11


def g_load(a, nn):
    reg = G1R + 4 * nn
    a(f's_add_u32 {T[0]}, {sG}, {kconst(nn) * 1024}')
    a(f'buffer_load_dwordx4 {vr(reg, 4)}, v{vL}, {SWS}, {T[0]} offen')


def load_g1(a):
    for nn in range(12):
        g_load(a, nn)


def p4_setup(a):
    vT, vT2 = 14, 15
    a(f's_and_b32 {sTT}, {sWave}, 1')
    a(f's_lshr_b32 {sKQ}, {sWave}, 1')
    a(f's_mul_i32 {sD8}, {sKQ}, {7 * 16 * 1024}')
    a(f's_lshl_b32 {sG}, {sT64}, 1')
    a(f's_add_u32 {sG}, {sG}, {sTT}')
    a(f's_mul_i32 {sG}, {sG}, 112')
    a(f's_mul_i32 {T[0]}, {sKQ}, 7')
    a(f's_add_u32 {sG}, {sG}, {T[0]}')
    a(f's_lshl_b32 {sG}, {sG}, 10')
    a(f's_add_u32 {sG}, {sG}, {GG}')
    a(f'v_and_b32 v{vT}, 15, v0')
    a(f'v_lshrrev_b32 v{vT}, 2, v{vT}')
    a(f'v_lshrrev_b32 v{vT2}, 5, v0')
    a(f'v_lshl_add_u32 v{vT2}, v{vT2}, 3, v{vT}')
    a(f's_lshl_b32 {T[0]}, {sKQ}, 5')
    a(f'v_add_u32 v{vT2}, {T[0]}, v{vT2}')
    a(f'v_lshlrev_b32 v{vAA}, 7, v{vT2}')
    a(f'v_bfe_u32 v{vT}, v{vT}, 1, 1')
    a(f'v_lshlrev_b32 v{vT}, 2, v{vT}')
    a(f'v_bfe_u32 v{vT2}, v0, 4, 1')
    a(f'v_lshlrev_b32 v{vT2}, 1, v{vT2}')
    a(f'v_bfe_u32 v8, v0, 1, 1')
    a(f'v_add_u32 v{vT2}, v{vT2}, v8')
    a(f'v_xor_b32 v9, v{vT2}, v{vT}')
    a(f'v_or_b32 v{vT2}, 4, v{vT2}')
    a(f'v_xor_b32 v10, v{vT2}, v{vT}')
    a(f'v_and_b32 v8, 1, v0')
    a(f'v_lshlrev_b32 v8, 3, v8')
    a(f'v_add_u32 v{vAA}, v{vAA}, v8')
    a(f'v_lshl_add_u32 v{vAA1}, v10, 4, v{vAA}')
    a(f'v_lshl_add_u32 v{vAA}, v9, 4, v{vAA}')
    a(f'v_lshrrev_b32 v{vT}, 3, v0')
    a(f'v_and_b32 v{vT2}, 7, v0')
    a(f'v_lshlrev_b32 v{vT2}, 4, v{vT2}')
    a(f'v_lshl_add_u32 v13, v{vT}, 12, v{vT2}')


def p4(a, dbg):
    a.comment('================ P4: down GEMM + residual')
    vT, vT2 = 14, 15
    ACCa, ACCb = 16, 32
    AF = 48
    NC = 14
    q = Q(a)
    for nn in range(12):
        q.add(('g', nn))
    dma_wd8(a, 7); dma_wd8(a, 8); q.add('wd78', 4)
    a(f's_lshl_b32 {T[0]}, {sDB}, 6')
    a(f's_lshl_b32 {T[1]}, {sWave}, 3')
    a(f's_add_u32 {T[0]}, {T[0]}, {T[1]}')
    a(f's_lshl_b32 {T[0]}, {T[0]}, 12')
    a(f's_lshl_b32 {T[1]}, {sT64}, 7')
    a(f's_add_u32 {T[0]}, {T[0]}, {T[1]}')
    a(f's_add_u32 {T[0]}, {T[0]}, {HT}')
    a(f's_lshl_b32 {T[1]}, {sWave}, 10')
    a(f's_add_u32 m0, {T[1]}, {RESID}')
    a('s_nop 0')
    a(f'buffer_load_dwordx4 v13, {SWS}, {T[0]} offen lds')
    q.add('res')
    G.stamp(a, 'P4start')

    def early_look(wv, cnt):
        L = a.newlabel('L_look')
        a(f's_cmp_eq_u32 {sWave}, {wv}')
        a(f's_cbranch_scc0 {L}')
        a(f's_lshr_b32 {T[5]}, {sT64}, 1')
        a(f's_lshl_b32 {T[5]}, {T[5]}, 8')
        a(f's_add_u32 {T[5]}, {T[5]}, {cnt}')
        a('v_mov_b32 v80, 0')
        a(f'buffer_load_dword v81, v80, {SWS}, {T[5]} offen sc1')
        a.label(L)
    early_look(7, CNT3B)
    g2_next = 12
    AFS = [48, 64]

    def a_reads(c):
        slot = c % NWD
        af = AFS[c & 1]
        a(f'v_add_u32 v12, {slot * WDSLOT}, v{vAA}')
        a(f'v_add_u32 v13, {slot * WDSLOT}, v{vAA1}')
        out = []
        for i in range(2):
            for dt, va in ((0, 12), (1, 13)):
                for rd in range(2):
                    off = i * 16 * 128 + rd * 4 * 128
                    out.append(f'ds_read_b64_tr_b16 {vr(af + 8 * i + 4 * dt + 2 * rd, 2)}, v{va} offset:{off}')
        return out
    for x in a_reads(0):
        a(x)
    for c in range(NC):
        if c in (2, 6):
            wv, cnt = (7, CNT3B) if c == 2 else (6, CNT3)
            if c == 6:
                q.wait('wd78')
            L7 = a.newlabel('L_p4poll')
            a(f's_cmp_eq_u32 {sWave}, {wv}')
            a(f's_cbranch_scc0 {L7}')
            a('s_waitcnt vmcnt(0)')
            a('v_cmp_gt_u32 vcc, 16, v81')
            a(f's_cbranch_vccz {L7}')
            a(f's_lshr_b32 {T[5]}, {sT64}, 1')
            a(f's_lshl_b32 {T[5]}, {T[5]}, 8')
            a(f's_add_u32 {T[5]}, {T[5]}, {cnt}')
            poll_ge(a, T[5], 1, 256, 16, 'v82', 'v83', 'b3')
            a.label(L7)
            a('s_barrier')
            G.stamp(a, 'f3b' if c == 2 else 'f3')
        if c == 8:
            q.wait('wdr1')
            a('s_barrier')
        if c == 10:
            q.wait('wdr2')
            a('s_barrier')
        tag = ('g', 2 * c + 1)
        if q.has(tag):
            q.wait(tag)
        if c == 0:
            G.stamp(a, 'g0')
        nxt = a_reads(c + 1) if c + 1 < NC else []
        af = AFS[c & 1]
        a('s_waitcnt lgkmcnt(0)')
        fill = list(nxt)
        post = []
        mf = []
        for i in range(2):
            b = G1R + 4 * (2 * c + i)
            cA = '0' if (c == 0 and i == 0) else vr(ACCa, 16)
            cB = '0' if (c == 0 and i == 0) else vr(ACCb, 16)
            mf.append(f'v_mfma_f32_32x32x16_bf16 {vr(ACCa, 16)}, {vr(af + 8 * i, 4)}, {vr(b, 4)}, {cA}')
            mf.append(f'v_mfma_f32_32x32x16_bf16 {vr(ACCb, 16)}, {vr(af + 8 * i + 4, 4)}, {vr(b, 4)}, {cB}')
        a(mf[0])
        for x in fill[:4]:
            a(x)
        a(mf[1])
        for x in fill[4:]:
            a(x)
        a(mf[2])
        ng = {2: 3, 3: 3, 4: 2, 6: 4, 7: 4}.get(c, 0)
        for k_ in range(ng):
            if k_ == (ng + 1) // 2:
                a(mf[3]); mf[3] = None
            g_load(a, g2_next); q.add(('g', g2_next)); g2_next += 1
        if mf[3] is not None:
            a(mf[3])
        if c == 4:
            early_look(6, CNT3)
        if c == 3:
            for c2 in (9, 10):
                dma_wd8(a, c2)
                q.add('wdr1', 2)
        if c == 7:
            for c2 in (11, 12, 13):
                dma_wd8(a, c2)
                q.add('wdr2', 2)
    assert g2_next == 28
    G.stamp(a, 'P4loop'); G.stamp(a, '@kP4loop')
    a('s_barrier')
    a(f's_lshl_b32 {T[0]}, {sTT}, 2')
    a(f's_add_u32 {T[0]}, {T[0]}, {sKQ}')
    a(f's_lshl_b32 {T[0]}, {T[0]}, 13')
    a(f's_add_u32 {T[0]}, {T[0]}, {RED}')
    a(f'v_add_u32 v{vT}, {T[0]}, v{vL}')
    for u in range(4):
        for hb in range(2):
            a(f'ds_write_b128 v{vT}, {vr(ACCa + 8 * u + 4 * hb, 4)} offset:{u * 2048 + hb * 1024}')
    a(f'v_and_b32 v{vT2}, 15, v0')
    a(f'v_lshrrev_b32 v8, 2, v{vT2}')
    a(f'v_lshrrev_b32 v9, 5, v0')
    a(f'v_lshl_add_u32 v8, v9, 2, v8')
    a(f's_lshl_b32 {T[0]}, {sKQ}, 4')
    a(f'v_add_u32 v8, {T[0]}, v8')
    a(f'v_lshlrev_b32 v8, 7, v8')
    a(f'v_bfe_u32 v9, v0, 4, 1')
    a(f'v_lshlrev_b32 v9, 5, v9')
    a(f'v_add_u32 v8, v8, v9')
    a(f'v_and_b32 v9, 3, v0')
    a(f'v_lshl_add_u32 v8, v9, 3, v8')
    a(f's_lshl_b32 {T[0]}, {sTT}, 6')
    a(f's_add_u32 {T[0]}, {T[0]}, {RESID}')
    a(f'v_add_u32 v8, {T[0]}, v8')
    srd(a, SB, P_OUT, 2048 * 1024)
    a(f'v_and_b32 v9, 31, v0')
    a(f'v_lshlrev_b32 v9, 10, v9')
    a(f'v_lshrrev_b32 v10, 5, v0')
    a(f'v_lshl_add_u32 v9, v10, 4, v9')
    a(f's_lshl_b32 {T[2]}, {sT64}, 1')
    a(f's_add_u32 {T[2]}, {T[2]}, {sTT}')
    a(f's_lshl_b32 {T[2]}, {T[2]}, 15')
    a(f's_lshl_b32 {T[1]}, {sDB}, 7')
    a(f's_add_u32 {T[2]}, {T[2]}, {T[1]}')
    a(f's_lshl_b32 {T[1]}, {sKQ}, 5')
    a(f's_add_u32 {T[2]}, {T[2]}, {T[1]}')
    a(f's_lshl_b32 {T[0]}, {sTT}, 15')
    a(f's_lshl_b32 {T[1]}, {sKQ}, 11')
    a(f's_add_u32 {T[0]}, {T[0]}, {T[1]}')
    a(f's_add_u32 {T[0]}, {T[0]}, {RED}')
    a(f'v_add_u32 v{vT}, {T[0]}, v{vL}')
    a('s_waitcnt lgkmcnt(0)')
    a('s_barrier')
    R = 64
    for src in range(4):
        for hb in range(2):
            a(f'ds_read_b128 {vr(R + 8 * src + 4 * hb, 4)}, v{vT} offset:{src * 8192 + hb * 1024}')
    RS = 100
    a(f'ds_read_b64_tr_b16 {vr(RS, 2)}, v8')
    a(f'ds_read_b64_tr_b16 {vr(RS + 2, 2)}, v8 offset:1024')
    a('s_waitcnt lgkmcnt(0)')
    for i in range(8):
        a(f'v_add_f32 v{R + i}, v{R + i}, v{R + 8 + i}')
        a(f'v_add_f32 v{R + 16 + i}, v{R + 16 + i}, v{R + 24 + i}')
    for i in range(4):
        a(f'v_lshlrev_b32 v{R + 8 + 2 * i}, 16, v{RS + i}')
        a(f'v_and_b32 v{R + 9 + 2 * i}, 0xffff0000, v{RS + i}')
    for i in range(8):
        a(f'v_add_f32 v{R + i}, v{R + i}, v{R + 16 + i}')
    for i in range(8):
        a(f'v_add_f32 v{R + i}, v{R + i}, v{R + 8 + i}')
    for i in range(4):
        a(f'v_cvt_pk_bf16_f32 v{104 + i}, v{R + 2 * i}, v{R + 2 * i + 1}')
    a(f'v_permlane32_swap_b32 v104, v106')
    a(f'v_permlane32_swap_b32 v105, v107')
    a(f'buffer_store_dwordx4 v[104:107], v9, {SB}, {T[2]} offen')
    G.stamp(a, 'end'); G.stamp(a, '@kend')
```

```python
import sys
from asmlib import Asm

KNAME = 'sequential_preLN__ssm_conv_s4d__geglu_ffn__prompt_kernel'

CNT2, CNT3, CNT3A, CNT3B, CNTW = 0x41000, 0x42000, 0x43000, 0x44000, 0x45000
EPOCH = 0x0000
PREPF = 0x1000
STATS = 0x4000
CSP = 0x8000
HT = 0x100000
WP = 0x300000
GG = 0x700000
DBGK = 0xE00000
WS_SIZE = 0x1000000

LDS_SIZE = 163840
TROW = 544
TAB_E = 19264
TAB_G = TAB_E
TAB_CH = TAB_E + 64 * TROW
KC = 115712
KCS = 4160
STG_G = 149248
STG_U = STG_G + 7168 + 128
UB = 0
UBS = 4608
PART = 9216
XB = 41984
MISC = 163712

HRING = 0
NRING = 6
WSLOT = [50176, 82944, 115712, 0]
CSL = 148992
SXCH = 151552
WDSLOT = 16384
NWD = 9
RESID = 147456
RED = 0


def eoff(r):
    return 576 * r + 32 * (r >> 2) + 32 * (r >> 4)


assert eoff(32) + 512 == TAB_E and 2 * TAB_CH <= KC and STG_U + 7168 <= MISC

sW, sWave = 's2', 's3'
SWS = 's[4:7]'
SA, SB, SC = 's[8:11]', 's[12:15]', 's[16:19]'
P_X, P_LA, P_AI, P_CR, P_CI, P_LDT, P_D, P_BX, P_WG, P_WU, P_WD, P_OUT, P_DBG, P_WS = [20 + 2 * i for i in range(14)]
sX, sY, sCP, sTB, sFB, sT64, sDB = 's48', 's49', 's50', 's51', 's52', 's53', 's54'
T = [f's{n}' for n in range(55, 80)]
sEX = 's[90:91]'
sLDT, sDSK = 's80', 's81'
sIt = 's82'
sSpin = 's83'
sTAG = 's84'

LOG2E = 0x3fb8aa3b
INV2PI = 0x3e22f983


def v(n):
    return f'v{n}'


def vr(n, c):
    return f'v[{n}:{n + c - 1}]'


def srd(a, dst, ptr, size):
    n = int(dst[2:dst.index(':')])
    a(f's_mov_b32 s{n}, s{ptr}')
    a(f's_mov_b32 s{n + 1}, s{ptr + 1}')
    a(f's_mov_b32 s{n + 2}, {size}')
    a(f's_mov_b32 s{n + 3}, 0x20000')


SPIN_MAX = 30000
CODE_QUARTER = 9216
STAMPS = {'on': False, 'names': []}
STAMP_REGS = [85, 86, 87, 88, 89, 92, 93, 94, 95, 96, 97, 98, 99]


def stamp(a, name):
    if not STAMPS['on']:
        return
    if STAMPS.get('only') and name.lstrip('@') not in STAMPS['only']:
        return
    i = len(STAMPS['names'])
    STAMPS['names'].append(name)
    a('s_memtime s[100:101]' if name.startswith('@') else 's_memrealtime s[100:101]')
    a('s_waitcnt lgkmcnt(0)')
    a(f's_mov_b32 s{STAMP_REGS[i]}, s100')


def stampval(a, name, sreg):
    if not STAMPS['on']:
        return
    if STAMPS.get('only') and name.lstrip('#') not in STAMPS['only']:
        return
    i = len(STAMPS['names'])
    STAMPS['names'].append(name)
    a(f's_mov_b32 s{STAMP_REGS[i]}, {sreg}')


def dump_stamps(a):
    if not STAMPS['on']:
        return
    n = len(STAMPS['names'])
    a('v_mov_b32 v2, 0')
    for i in range(n):
        a(f'v_mov_b32 v3, s{STAMP_REGS[i]}')
        a(f'v_cmp_eq_u32 vcc, {i}, v0')
        a('s_nop 1')
        a('v_cndmask_b32 v2, v2, v3, vcc')
    a(f's_lshl_b32 {T[0]}, {sW}, 3')
    a(f's_add_u32 {T[0]}, {T[0]}, {sWave}')
    a(f's_lshl_b32 {T[0]}, {T[0]}, 6')
    a(f's_add_u32 {T[0]}, {T[0]}, {DBGK}')
    a('v_lshlrev_b32 v3, 2, v0')
    a(f's_mov_b64 {sEX}, exec')
    a('s_mov_b64 exec, 0xffff')
    a(f'buffer_store_dword v2, v3, {SWS}, {T[0]} offen')
    a(f's_mov_b64 exec, {sEX}')


def poll_ge(a, off, nlanes, stride, target, vtmp, vtmp2, name, sleep=1):
    L = a.newlabel('L_poll_' + name)
    Ld = a.newlabel('L_polld_' + name)
    a(f'v_min_u32 {vtmp2}, {nlanes - 1}, v0')
    a(f's_mov_b32 {T[0]}, {stride}')
    a(f'v_mul_lo_u32 {vtmp2}, {vtmp2}, {T[0]}')
    if isinstance(off, int):
        a(f's_mov_b32 {T[1]}, {off}')
    else:
        a(f's_mov_b32 {T[1]}, {off}')
    a(f's_mov_b32 {sSpin}, 0')
    a.label(L)
    a(f'buffer_load_dword {vtmp}, {vtmp2}, {SWS}, {T[1]} offen sc1')
    a(f's_add_u32 {sSpin}, {sSpin}, 1')
    a(f's_waitcnt vmcnt(0)')
    a(f'v_cmp_gt_u32 vcc, {target}, {vtmp}')
    a(f's_cmp_ge_u32 {sSpin}, {SPIN_MAX}')
    a(f's_cbranch_scc1 {Ld}')
    a(f's_cbranch_vccz {Ld}')
    a(f's_sleep {sleep}')
    a(f's_branch {L}')
    a.label(Ld)


def arrive(a, off_sgpr_or_int, vtmp, vtmp2):
    a(f'v_mov_b32 {vtmp}, 1')
    a(f'v_mov_b32 {vtmp2}, 0')
    a(f's_mov_b64 {sEX}, exec')
    a(f's_mov_b64 exec, 1')
    a(f'buffer_atomic_add {vtmp}, {vtmp2}, {SWS}, {off_sgpr_or_int} offen')
    a(f's_mov_b64 exec, {sEX}')


def entry(a):
    a(f's_cmp_ge_u32 s2, 256')
    a(f's_cbranch_scc1 L_end')
    a('s_load_dwordx16 s[20:35], s[0:1], 0')
    a('s_load_dwordx8 s[36:43], s[0:1], 64')
    a('s_load_dwordx4 s[44:47], s[0:1], 96')
    a('v_lshrrev_b32 v2, 6, v0')
    a('v_mov_b32 v1, v0')
    a('v_and_b32 v0, 63, v0')
    a(f'v_readfirstlane_b32 {sWave}, v2')
    a(f's_and_b32 {sX}, s2, 7')
    a(f's_lshr_b32 {sY}, s2, 3')
    a(f's_lshl_b32 {sCP}, {sX}, 5')
    a(f's_add_u32 {sCP}, {sCP}, {sY}')
    a(f's_and_b32 {T[0]}, {sX}, 3')
    a(f's_lshl_b32 {T[0]}, {T[0]}, 2')
    a(f's_and_b32 {T[1]}, {sY}, 3')
    a(f's_add_u32 {sTB}, {T[0]}, {T[1]}')
    a(f's_lshr_b32 {T[0]}, {sX}, 2')
    a(f's_lshl_b32 {T[0]}, {T[0]}, 3')
    a(f's_lshr_b32 {sDB}, {sY}, 2')
    a(f's_add_u32 {sFB}, {T[0]}, {sDB}')
    a(f's_lshl_b32 {T[0]}, {sX}, 2')
    a(f's_add_u32 {sT64}, {T[0]}, {T[1]}')
    a('s_waitcnt lgkmcnt(0)')
    srd(a, SWS, P_WS, WS_SIZE)
    stamp(a, 'entry')
    stamp(a, '@c0')


PAIRC = MISC + 64


def p12(a, dbg):
    LU = a.newlabel('L_Upath')
    LS2 = a.newlabel('L_S2')
    a(f's_lshl_b32 {T[0]}, {sCP}, 2')
    a(f's_load_dword {sLDT}, s[{P_LDT}:{P_LDT + 1}], {T[0]}')
    a(f's_load_dword {sDSK}, s[{P_D}:{P_D + 1}], {T[0]}')
    a(f's_load_dword {sTAG}, s[{P_WS}:{P_WS + 1}], {EPOCH}')
    a(f's_cmp_ge_u32 {sWave}, 4')
    a(f's_cbranch_scc1 {LU}')
    kpath(a, dbg)
    a(f's_branch {LS2}')
    a.label(LU)
    upath(a, dbg)
    a.label(LS2)
    a('s_waitcnt lgkmcnt(0)')
    a('s_barrier')
    stamp(a, 'S2')
    p12_rest(a, dbg)


def kpath(a, dbg):
    XR = [4, 8]
    PR = 12
    t0, t1, t2, t3, t4 = 16, 17, 18, 19, 20
    Lnz = a.newlabel('L_nozero')
    a(f's_or_b32 {T[1]}, {sW}, {sWave}')
    a(f's_cmp_eq_u32 {T[1]}, 0')
    a(f's_cbranch_scc0 {Lnz}')
    a(f'v_lshlrev_b32 v{t0}, 8, v0')
    a(f'v_mov_b32 v{t1}, 0')
    a(f's_mov_b32 {T[1]}, {CNT2}')
    a(f'buffer_store_dword v{t1}, v{t0}, {SWS}, {T[1]} offen sc1')
    a(f'v_and_b32 v{t0}, 15, v0')
    a(f'v_lshlrev_b32 v{t0}, 8, v{t0}')
    a(f's_mov_b32 {T[1]}, {CNTW}')
    a(f'buffer_store_dword v{t1}, v{t0}, {SWS}, {T[1]} offen sc1')
    a.label(Lnz)
    srd(a, SA, P_X, 2048 * 1024)
    a(f's_lshl_b32 {T[1]}, {sW}, 2')
    a(f's_add_u32 {T[1]}, {T[1]}, {sWave}')
    a(f's_lshl_b32 {T[1]}, {T[1]}, 11')
    a(f'v_lshlrev_b32 v{t0}, 4, v0')
    a(f'buffer_load_dwordx4 {vr(XR[0], 4)}, v{t0}, {SA}, {T[1]} offen')
    a(f'buffer_load_dwordx4 {vr(XR[1], 4)}, v{t0}, {SA}, {T[1]} offen offset:1024')
    a(f's_lshr_b32 {T[2]}, {sWave}, 1')
    a(f's_lshl_b32 {T[3]}, {sCP}, 1')
    a(f's_add_u32 {T[3]}, {T[3]}, {T[2]}')
    a(f's_lshl_b32 {T[3]}, {T[3]}, 8')
    a(f's_and_b32 {T[4]}, {sWave}, 1')
    a(f's_lshl_b32 {T[4]}, {T[4]}, 7')
    a(f's_add_u32 {T[3]}, {T[3]}, {T[4]}')
    a(f'v_lshlrev_b32 v{t1}, 1, v0')
    for i, p in enumerate((P_LA, P_AI, P_CR, P_CI)):
        srd(a, SB, p, 512 * 128 * 2)
        a(f'buffer_load_ushort v{PR + i}, v{t1}, {SB}, {T[3]} offen')
    a(f'v_mov_b32 v{t2}, {PAIRC}')
    a(f'v_mov_b32 v{t3}, 0')
    a(f'v_mov_b32 v{t4}, 0')
    for o in (0, 4, 8, 12, 16, 20, 24, 28, 32):
        a(f'ds_write_b32 v{t2}, v{t3} offset:{o}')
    a('s_waitcnt lgkmcnt(0)')
    a('s_barrier')
    a(f's_and_b32 {T[19]}, {sW}, 15')
    a(f's_mul_i32 {T[19]}, {T[19]}, {32 * 3584}')
    a(f's_lshr_b32 {T[17]}, {sW}, 4')
    a(f's_mul_i32 {T[17]}, {T[17]}, 224')
    a(f's_add_u32 {T[19]}, {T[19]}, {T[17]}')
    Lq2 = a.newlabel('L_q2')
    for qq in range(2):
        if qq == 1:
            a(f's_cmp_eq_u32 {sWave}, 3')
            a(f's_cbranch_scc1 {Lq2}')
        a(f's_lshl_b32 {T[16]}, {sWave}, 6')
        if qq:
            a(f's_add_u32 {T[16]}, {T[16]}, 256')
        a(f'v_add_u32 v30, {T[16]}, v0')
        a(f's_mov_b32 {T[18]}, 4682')
        a(f'v_mul_lo_u32 v31, v30, {T[18]}')
        a(f'v_lshrrev_b32 v31, 16, v31')
        a(f'v_mul_u32_u24 v32, 14, v31')
        a(f'v_sub_u32 v32, v30, v32')
        a(f's_mov_b32 {T[18]}, 3584')
        a(f'v_mul_lo_u32 v31, v31, {T[18]}')
        a(f'v_lshl_add_u32 v31, v32, 4, v31')
        a(f's_lshl_b32 {T[17]}, {T[16]}, 4')
        srd(a, SB, P_WG, 512 * 3584)
        a(f's_add_u32 m0, {T[17]}, {STG_G}')
        a('s_nop 0')
        a(f'buffer_load_dwordx4 v31, {SB}, {T[19]} offen lds')
        srd(a, SB, P_WU, 512 * 3584)
        a(f's_add_u32 m0, {T[17]}, {STG_U}')
        a('s_nop 0')
        a(f'buffer_load_dwordx4 v31, {SB}, {T[19]} offen lds')
    a.label(Lq2)

    a(f's_mul_i32 {sTAG}, {sTAG}, 1664525')
    a(f's_add_u32 {sTAG}, {sTAG}, 1013904223')
    Lw_ = a.newlabel('L_w3')
    Lwd_ = a.newlabel('L_w3d')
    a(f's_cmp_eq_u32 {sWave}, 3')
    a(f's_cbranch_scc1 {Lw_}')
    a('s_waitcnt vmcnt(8)')
    a(f's_branch {Lwd_}')
    a.label(Lw_)
    a('s_waitcnt vmcnt(6)')
    a.label(Lwd_)
    stamp(a, 'xrow')
    S, Q, ONE = [16, 18], [17, 19], 20
    a(f'v_mov_b32 v{ONE}, 0x3f803f80')
    for r in range(2):
        a(f'v_mov_b32 v{S[r]}, 0')
        a(f'v_mov_b32 v{Q[r]}, 0')
    for i in range(4):
        for r in range(2):
            a(f'v_dot2_f32_bf16 v{S[r]}, v{XR[r] + i}, v{ONE}, v{S[r]}')
            a(f'v_dot2_f32_bf16 v{Q[r]}, v{XR[r] + i}, v{XR[r] + i}, v{Q[r]}')
    for m in ('row_shr:1 row_mask:0xf', 'row_shr:2 row_mask:0xf', 'row_shr:4 row_mask:0xf', 'row_shr:8 row_mask:0xf',
              'row_bcast:15 row_mask:0xa', 'row_bcast:31 row_mask:0xc'):
        for r in range(2):
            a(f'v_add_f32_dpp v{S[r]}, v{S[r]}, v{S[r]} {m} bank_mask:0xf')
            a(f'v_add_f32_dpp v{Q[r]}, v{Q[r]}, v{Q[r]} {m} bank_mask:0xf')
    ln_finish2(a, S, Q, [21, 22])
    GRN = 24
    a(f'v_cvt_pk_bf16_f32 v{GRN}, v{S[0]}, v{Q[0]}')
    a(f'v_cvt_pk_bf16_f32 v{GRN + 2}, v{S[1]}, v{Q[1]}')
    a(f'v_mov_b32 v{GRN + 1}, {sTAG}')
    a(f'v_mov_b32 v{GRN + 3}, {sTAG}')
    a(f's_lshl_b32 {T[1]}, {sW}, 2')
    a(f's_add_u32 {T[1]}, {T[1]}, {sWave}')
    a(f's_lshl_b32 {T[1]}, {T[1]}, 4')
    a(f's_add_u32 {T[1]}, {T[1]}, {STATS}')
    a(f'v_mov_b32 v21, 0')
    a(f's_mov_b64 {sEX}, exec')
    a(f's_mov_b32 exec_lo, 0')
    a(f's_mov_b32 exec_hi, 0x80000000')
    a(f'buffer_store_dwordx4 {vr(GRN, 4)}, v21, {SWS}, {T[1]} offen sc1')
    a(f's_mov_b64 exec, {sEX}')
    a(f'v_mov_b32 v30, {PAIRC + 12}')
    a('v_mov_b32 v31, 1')
    a(f's_mov_b64 {sEX}, exec')
    a('s_mov_b64 exec, 1')
    a('ds_add_u32 v30, v31')
    a(f's_mov_b64 exec, {sEX}')
    stamp(a, 'pub')
    Lw_ = a.newlabel('L_w3')
    Lwd_ = a.newlabel('L_w3d')
    a(f's_cmp_eq_u32 {sWave}, 3')
    a(f's_cbranch_scc1 {Lw_}')
    a('s_waitcnt vmcnt(5)')
    a(f's_branch {Lwd_}')
    a.label(Lw_)
    a('s_waitcnt vmcnt(3)')
    a.label(Lwd_)
    stamp(a, 'par')

    LAR, AIM, CR, CI = PR, PR + 1, PR + 2, PR + 3
    DT, AL, TH = 16, 17, 18
    for i in range(4):
        a(f'v_lshlrev_b32 v{PR + i}, 16, v{PR + i}')
    a(f's_lshl_b32 {T[3]}, {sLDT}, 16')
    a(f's_and_b32 {T[4]}, {sLDT}, 0xffff0000')
    a(f's_cmp_eq_u32 {T[2]}, 0')
    a(f's_cselect_b32 {T[3]}, {T[3]}, {T[4]}')
    a(f'v_mov_b32 v{DT}, {LOG2E}')
    a(f'v_mul_f32 v{LAR}, v{LAR}, v{DT}')
    a(f'v_mul_f32 v{DT}, {T[3]}, v{DT}')
    a(f'v_exp_f32 v{LAR}, v{LAR}')
    a(f'v_exp_f32 v{DT}, v{DT}')
    a(f'v_cvt_pk_bf16_f32 v{19}, v{LAR}, v{DT}')
    a(f'v_lshlrev_b32 v{LAR}, 16, v19')
    a(f'v_and_b32 v{DT}, 0xffff0000, v19')
    a(f'v_mul_f32 v{AL}, v{LAR}, v{DT}')
    a(f'v_mul_f32 v{TH}, v{AIM}, v{DT}')
    a(f'v_mul_f32 v{AL}, {hex(LOG2E | 0x80000000)}, v{AL}')
    a(f'v_mul_f32 v{TH}, {hex(INV2PI)}, v{TH}')
    a(f'v_add_f32 v{DT}, v{DT}, v{DT}')
    a(f'v_mul_f32 v{CR}, v{CR}, v{DT}')
    a(f'v_mul_f32 v{CI}, v{CI}, v{DT}')
    WG, WGN, WE, WEN = 20, 22, 24, 26
    ZG0, ZG1 = [28, 30], [32, 34]
    ZE0, ZE1 = [36, 38], [40, 42]
    MM = [44, 45, 46, 47]
    AA = [48, 49, 50, 51]
    spec = [(WG, '0x42000000', True), (WE, '1.0', False), (ZE1[0], '0x41800000', False), (ZG1[1], '0x44800000', True)]
    for k, (d, p, neg) in enumerate(spec):
        a(f'v_mul_f32 v{MM[k]}, {p}, v{AL}')
        a(f'v_mul_f32 v{AA[k]}, {p}, v{TH}')
    for k, (d, p, neg) in enumerate(spec):
        a(f'v_exp_f32 v{MM[k]}, v{MM[k]}')
        a(f'v_fract_f32 v{AA[k]}, v{AA[k]}')
    for k, (d, p, neg) in enumerate(spec):
        a(f'v_cos_f32 v{d}, v{AA[k]}')
        a(f'v_sin_f32 v{d + 1}, v{AA[k]}')
    for k, (d, p, neg) in enumerate(spec):
        a(f'v_mul_f32 v{d}, v{d}, v{MM[k]}')
        if neg:
            a(f'v_mul_f32_e64 v{d + 1}, -v{d + 1}, v{MM[k]}')
        else:
            a(f'v_mul_f32 v{d + 1}, v{d + 1}, v{MM[k]}')
    for (w, wn) in ((WG, WGN), (WE, WEN)):
        a(f'v_sub_f32 v{wn}, 0, v{w + 1}')
        a(f'v_mov_b32 v{wn + 1}, v{w}')
    a(f'v_mul_f32 v{ZG1[0]}, v{CR}, v{ZG1[1]}')
    a(f'v_mul_f32 v{ZG1[0] + 1}, v{CR}, v{ZG1[1] + 1}')
    a(f'v_fmac_f32 v{ZG1[0]}, v{CI}, v{ZG1[1] + 1}')
    a(f'v_fma_f32 v{ZG1[0] + 1}, -v{CI}, v{ZG1[1]}, v{ZG1[0] + 1}')
    a(f'v_mov_b32 v{ZG0[0]}, v{CR}')
    a(f'v_sub_f32 v{ZG0[0] + 1}, 0, v{CI}')
    a(f'v_mov_b32 v{ZE0[0]}, 1.0')
    a(f'v_mov_b32 v{ZE0[0] + 1}, 0')
    AE, AG = 52, 53
    a(f's_mul_i32 {T[8]}, {T[2]}, {TAB_CH}')
    a(f's_and_b32 {T[9]}, {sWave}, 1')
    a(f's_lshl_b32 {T[9]}, {T[9]}, 8')
    a(f's_add_u32 {T[9]}, {T[8]}, {T[9]}')
    PK = [54, 55, 56, 57]
    TM = [58, 60, 62, 64]

    def cs_a(z, wn, k):
        return [f'v_pk_mul_f32 {vr(TM[k], 2)}, {vr(z, 2)}, {vr(wn, 2)} op_sel:[1,0] op_sel_hi:[1,1]',
                f'v_cvt_pk_bf16_f32 v{PK[k]}, v{z}, v{z + 1}']

    def cs_b(z, zn, w, off, k):
        return [f'v_pk_fma_f32 {vr(zn, 2)}, {vr(z, 2)}, {vr(w, 2)}, {vr(TM[k], 2)} op_sel:[0,0,0] op_sel_hi:[0,1,1]',
                f'ds_write_addtid_b32 v{PK[k]} offset:{off}']
    a(f's_mov_b32 m0, {T[9]}')
    for it in range(4):
        for i in range(8):
            ga = TAB_G + (8 * it + i) * TROW
            chains = [(ZG0[i & 1], ZG0[(i + 1) & 1], WG, WGN, ga),
                      (ZG1[i & 1], ZG1[(i + 1) & 1], WG, WGN, ga + 32 * TROW)]
            e = i >> 1
            if i & 1 == 0:
                chains.append((ZE0[e & 1], ZE0[(e + 1) & 1], WE, WEN, eoff(4 * it + e)))
            else:
                chains.append((ZE1[e & 1], ZE1[(e + 1) & 1], WE, WEN, eoff(16 + 4 * it + e)))
            pa = [cs_a(z, wn, k) for k, (z, zn, w, wn, off) in enumerate(chains)]
            pb = [cs_b(z, zn, w, off, k) for k, (z, zn, w, wn, off) in enumerate(chains)]
            for grp in (pa, pb):
                for n_ in range(2):
                    for c_ in grp:
                        a(c_[n_])
    a(f'v_cvt_pk_bf16_f32 v{PK[0]}, v{ZE1[0]}, v{ZE1[0] + 1}')
    a(f'ds_write_addtid_b32 v{PK[0]} offset:{eoff(32)}')
    stamp(a, 'tabdone')
    a('s_waitcnt vmcnt(1)')
    a(f'v_mov_b32 v66, {PAIRC + 24}')
    a('v_mov_b32 v67, 1')
    a(f's_mov_b64 {sEX}, exec')
    a('s_mov_b64 exec, 1')
    a('ds_add_u32 v66, v67')
    a(f's_mov_b64 exec, {sEX}')
    a(f's_lshl_b32 {T[9]}, {T[2]}, 2')
    a(f's_add_u32 {T[9]}, {T[9]}, {PAIRC}')
    a(f'v_mov_b32 v16, {T[9]}')
    a(f'v_mov_b32 v17, 1')
    a('s_waitcnt lgkmcnt(0)')
    a(f's_mov_b64 {sEX}, exec')
    a('s_mov_b64 exec, 1')
    a('ds_add_u32 v16, v17')
    a(f's_mov_b64 exec, {sEX}')
    Lsp = a.newlabel('L_pair')
    Lspd = a.newlabel('L_paird')
    a(f's_mov_b32 {sSpin}, 0')
    a.label(Lsp)
    a('ds_read_b32 v17, v16')
    a(f's_add_u32 {sSpin}, {sSpin}, 1')
    a('s_waitcnt lgkmcnt(0)')
    a('v_cmp_gt_u32 vcc, 2, v17')
    a(f's_cmp_ge_u32 {sSpin}, {SPIN_MAX * 8}')
    a(f's_cbranch_scc1 {Lspd}')
    a(f's_cbranch_vccnz {Lsp}')
    a.label(Lspd)
    stamp(a, 'S1')

    AL15, GG_ = 16, 17
    a(f'v_and_b32 v{AL15}, 15, v0')
    a(f'v_lshrrev_b32 v{GG_}, 4, v0')
    BG = 18
    a(f'v_mul_u32_u24 v{BG}, {TROW}, v{AL15}')
    a(f'v_lshl_add_u32 v{BG}, v{GG_}, 4, v{BG}')
    a(f's_add_u32 {T[9]}, {T[8]}, {TAB_G}')
    a(f'v_add_u32 v{BG}, {T[9]}, v{BG}')
    KA = 19
    a(f's_mul_i32 {T[9]}, {T[2]}, {4 * KCS}')
    a(f's_add_u32 {T[9]}, {T[9]}, {KC + 4088 - 32}')
    a(f'v_lshlrev_b32 v{KA}, 6, v{AL15}')
    a(f'v_lshl_add_u32 v{KA}, v{GG_}, 3, v{KA}')
    a(f'v_sub_u32 v{KA}, {T[9]}, v{KA}')
    GF = [32, 64]
    EF0, EF1 = 96, 128
    ACC = 160
    EA0, EA1 = 20, 21

    def rho_addr(j):
        base = 128 << j
        seq = []
        for rt, dst in enumerate((EA0, EA1)):
            tmp = 22 + rt
            seq.append([
                f'v_add_u32 v{dst}, {base + 16 * rt}, v{AL15}',
                f'v_cvt_f32_u32 v{dst}, v{dst}',
                f'v_cvt_pk_bf16_f32 v{dst}, v{dst}, v{dst}',
                f'v_lshlrev_b32 v{dst}, 16, v{dst}',
                f'v_cvt_u32_f32 v{dst}, v{dst}',
                f'v_subrev_u32 v{dst}, {base}, v{dst}',
                f'v_lshrrev_b32 v{tmp}, 2, v{dst}',
                f'v_lshrrev_b32 v{tmp + 2}, 4, v{dst}',
                f'v_mul_u32_u24 v{dst}, 576, v{dst}',
                f'v_add_u32 v{tmp}, v{tmp}, v{tmp + 2}',
                f'v_lshl_add_u32 v{dst}, v{tmp}, 5, v{dst}',
                f'v_lshl_add_u32 v{dst}, v{GG_}, 4, v{dst}',
                f'v_add_u32 v{dst}, {T[8]}, v{dst}'])
        for x, y in zip(*seq):
            a(x)
            a(y)

    def load_g(slot, vv):
        for s in range(8):
            a(f'ds_read_b128 {vr(GF[slot] + 4 * s, 4)}, v{BG} offset:{vv * 16 * TROW + 64 * s}')

    def kchain(tiles):
        def mm(k):
            for (gs, acc) in tiles:
                c0 = '0' if k == 0 else vr(acc, 4)
                c1 = '0' if k == 0 else vr(acc + 4, 4)
                a(f'v_mfma_f32_16x16x32_bf16 {vr(acc, 4)}, {vr(EF0 + 4 * k, 4)}, {vr(GF[gs] + 4 * k, 4)}, {c0}')
                a(f'v_mfma_f32_16x16x32_bf16 {vr(acc + 4, 4)}, {vr(EF1 + 4 * k, 4)}, {vr(GF[gs] + 4 * k, 4)}, {c1}')
        for s in range(8):
            a(f'ds_read_b128 {vr(EF0 + 4 * s, 4)}, v{EA0} offset:{64 * s}')
            a(f'ds_read_b128 {vr(EF1 + 4 * s, 4)}, v{EA1} offset:{64 * s}')
            if s >= 3:
                a(f's_waitcnt lgkmcnt(6)')
                mm(s - 3)
        for k in (5, 6, 7):
            a(f's_waitcnt lgkmcnt({2 * (7 - k)})')
            mm(k)

    def kr_write(acc, vv):
        for rt in range(2):
            b = acc + 4 * rt
            a(f'v_cvt_pk_bf16_f32 v{24 + 2 * rt}, v{b + 3}, v{b + 2}')
            a(f'v_cvt_pk_bf16_f32 v{25 + 2 * rt}, v{b + 1}, v{b}')
        if vv:
            a(f'v_subrev_u32 v28, {1024 * vv}, v{KA}')
            ka = 28
        else:
            ka = KA
        a(f'ds_write_b64 v{ka}, v[24:25] offset:32')
        a(f'ds_write_b64 v{ka}, v[26:27]')
    Lp1 = a.newlabel('L_kpart1')
    Lpe = a.newlabel('L_kparte')
    a(f's_and_b32 {T[5]}, {sWave}, 1')
    a(f's_cmp_eq_u32 {T[5]}, 0')
    a(f's_cbranch_scc0 {Lp1}')
    load_g(0, 0)
    rho_addr(0)
    kchain([(0, ACC)])
    rho_addr(1)
    kchain([(0, ACC + 8)])
    a(f'v_cmp_gt_u32 vcc, 8, v{AL15}')
    for i in range(8):
        a(f'v_cndmask_b32 v{ACC + i}, v{ACC + 8 + i}, v{ACC + i}, vcc')
    kr_write(ACC, 0)
    a(f's_branch {Lpe}')
    a.label(Lp1)
    load_g(0, 1)
    rho_addr(2)
    kchain([(0, ACC)])
    load_g(0, 2)
    load_g(1, 3)
    rho_addr(3)
    kr_write(ACC, 1)
    kchain([(0, ACC + 8), (1, ACC + 16)])
    kr_write(ACC + 8, 2)
    kr_write(ACC + 16, 3)
    a.label(Lpe)
    a(f's_mul_i32 {T[9]}, {T[2]}, {4 * KCS}')
    a(f's_mul_i32 {T[11]}, {T[5]}, {2 * KCS}')
    a(f's_add_u32 {T[9]}, {T[9]}, {T[11]}')
    a(f's_add_u32 {T[9]}, {T[9]}, {KC + 4096}')
    a(f'v_lshl_add_u32 v28, v{AL15}, 2, {T[9]}')
    a(f'v_mov_b32 v29, 0')
    a(f'ds_write_b32 v28, v29')
    a(f'ds_write_b32 v28, v29 offset:{KCS}')
    stamp(a, 'C2')
    a(f'v_mov_b32 v40, {PAIRC + 24}')
    lds_spin(a, 'v40', 'v41', 'v_cmp_gt_u32 vcc, 4', 'L_stg', sleep=False)
    wprep(a)
    stamp(a, 'prepd')


XG = [12, 16]
UP = [68, 76]


def lds_spin(a, vaddr, vtmp, cmp_, label, sleep=True):
    L = a.newlabel(label)
    Ld = a.newlabel(label + 'd')
    a(f's_mov_b32 {sSpin}, 0')
    a.label(L)
    a(f'ds_read_b32 {vtmp}, {vaddr}')
    a(f's_add_u32 {sSpin}, {sSpin}, 1')
    a('s_waitcnt lgkmcnt(0)')
    a(f'{cmp_}, {vtmp}')
    a(f's_cmp_ge_u32 {sSpin}, {SPIN_MAX * 64}')
    a(f's_cbranch_scc1 {Ld}')
    a(f's_cbranch_vccz {Ld}')
    if sleep:
        a('s_sleep 1')
    a(f's_branch {L}')
    a.label(Ld)


def upath(a, dbg):
    t0, t1, t2, t3, t4 = 4, 5, 6, 7, 8
    sUV = T[15]
    a('s_setprio 1')
    a(f's_sub_u32 {sUV}, {sWave}, 4')
    srd(a, SA, P_X, 2048 * 1024)
    a('s_barrier')
    Ln4 = a.newlabel('L_nowarm')
    a(f's_cmp_eq_u32 {sUV}, 0')
    a(f's_cbranch_scc0 {Ln4}')
    a(f'v_lshlrev_b32 v30, 10, v0')
    a(f's_lshl_b32 {T[7]}, {sY}, 16')
    a(f's_lshl_b32 {T[8]}, {sX}, 7')
    a(f's_add_u32 {T[7]}, {T[7]}, {T[8]}')
    a(f'buffer_load_dword v31, v30, {SA}, {T[7]} offen')
    a.label(Ln4)
    Lnc_ = a.newlabel('L_nocode')
    a(f's_cmp_eq_u32 {sUV}, 1')
    a(f's_cbranch_scc0 {Lnc_}')
    a('s_getpc_b64 s[16:17]')
    a.label('L_pcref')
    a(f's_sub_u32 s16, s16, L_pcref-{KNAME}')
    a('s_subb_u32 s17, s17, 0')
    a(f's_mov_b32 s18, L_end-{KNAME}')
    a('s_mov_b32 s19, 0x20000')
    a(f's_and_b32 {T[8]}, {sY}, 3')
    a(f's_mul_i32 {T[8]}, {T[8]}, {CODE_QUARTER}')
    a('v_lshlrev_b32 v30, 7, v0')
    for i_ in range(2):
        a(f'buffer_load_dword v31, v30, {SC}, {T[8]} offen')
        if i_ == 0:
            a(f's_add_u32 {T[8]}, {T[8]}, 8192')
    a.label(Lnc_)
    Lnto = a.newlabel('L_notouch0')
    a(f's_cmp_eq_u32 {sUV}, 3')
    a(f's_cbranch_scc0 {Lnto}')
    a('v_mov_b32 v30, 0')
    a(f's_lshl_b32 {T[8]}, {sW}, 6')
    a(f's_add_u32 {T[8]}, {T[8]}, {STATS}')
    a(f'buffer_load_dword v31, v30, {SWS}, {T[8]} offen sc1')
    a.label(Lnto)
    sR = [T[13], T[14]]
    a(f'v_lshlrev_b32 v{t2}, 12, v0')
    for k in range(2):
        a(f's_lshl_b32 {sR[k]}, {sUV}, 1')
        a(f's_add_u32 {sR[k]}, {sR[k]}, {sY}')
        if k:
            a(f's_add_u32 {sR[k]}, {sR[k]}, 1')
        a(f's_and_b32 {sR[k]}, {sR[k]}, 7')
    for k in range(2):
        a(f's_lshl_b32 {T[8 + k]}, {sR[k]}, 18')
        a(f's_lshl_b32 {T[10]}, {sCP}, 2')
        a(f's_add_u32 {T[8 + k]}, {T[8 + k]}, {T[10]}')
    GR = [20, 28]
    sGA = [T[11], T[12]]
    for k in range(2):
        a(f's_lshl_b32 {sGA[k]}, {sR[k]}, 11')
        a(f's_add_u32 {sGA[k]}, {sGA[k]}, {STATS}')
    a(f'v_lshlrev_b32 v9, 5, v0')
    a('s_waitcnt lgkmcnt(0)')
    a(f's_mul_i32 {sTAG}, {sTAG}, 1664525')
    a(f's_add_u32 {sTAG}, {sTAG}, 1013904223')
    a(f'v_mov_b32 v22, {PAIRC + 12}')
    lds_spin(a, 'v22', 'v23', 'v_cmp_gt_u32 vcc, 4', 'L_pubwait')
    stamp(a, 'gstart')

    def gran_loads(pol=' sc1'):
        for k in range(2):
            a(f'buffer_load_dwordx4 {vr(GR[k], 4)}, v9, {SWS}, {sGA[k]} offen{pol}')
            a(f'buffer_load_dwordx4 {vr(GR[k] + 4, 4)}, v9, {SWS}, {sGA[k]} offen offset:16{pol}')
    for k in range(2):
        for r in range(4):
            a(f'buffer_load_dword v{XG[k] + r}, v{t2}, {SA}, {T[8 + k]} offen offset:{1024 * r}')
    gran_loads('')
    stamp(a, 'gissue')
    a('s_waitcnt vmcnt(4)')
    stamp(a, 'gdone')
    a(f's_mov_b32 {T[4]}, 0x05040100')
    a(f's_mov_b32 {T[5]}, 0x07060302')
    for k in range(2):
        X_, XP = XG[k], UP[k] + 4
        a(f'v_perm_b32 v{XP}, v{X_ + 1}, v{X_}, {T[4]}')
        a(f'v_perm_b32 v{XP + 1}, v{X_ + 3}, v{X_ + 2}, {T[4]}')
        a(f'v_perm_b32 v{XP + 2}, v{X_ + 1}, v{X_}, {T[5]}')
        a(f'v_perm_b32 v{XP + 3}, v{X_ + 3}, v{X_ + 2}, {T[5]}')
    Lchk = a.newlabel('L_gchk')
    Lok = a.newlabel('L_gok')
    a(f's_mov_b32 {sSpin}, 0')
    a.label(Lchk)
    a('s_waitcnt vmcnt(0)')
    for k in range(2):
        for r in range(4):
            a(f'v_xor_b32 v{36 + 4 * k + r}, {sTAG}, v{GR[k] + 2 * r + 1}')
    a('v_or3_b32 v36, v36, v37, v38')
    a('v_or3_b32 v39, v39, v40, v41')
    a('v_or3_b32 v42, v42, v43, v36')
    a('v_or_b32 v36, v39, v42')
    a('v_cmp_ne_u32 vcc, 0, v36')
    a(f's_add_u32 {sSpin}, {sSpin}, 1')
    a(f's_cmp_ge_u32 {sSpin}, {SPIN_MAX}')
    a(f's_cbranch_scc1 {Lok}')
    a(f's_cbranch_vccz {Lok}')
    gran_loads()
    a(f's_branch {Lchk}')
    a.label(Lok)
    stampval(a, '#gspin', sSpin)
    stamp(a, 'gran')
    for k in range(2):
        Mv, Rv = 36, 40
        for r in range(4):
            a(f'v_and_b32 v{Rv + r}, 0xffff0000, v{GR[k] + 2 * r}')
            a(f'v_lshlrev_b32 v{Mv + r}, 16, v{GR[k] + 2 * r}')
            a(f'v_rcp_f32 v{Rv + r}, v{Rv + r}')
        E0, E1 = 52, 60
        for r in range(4):
            a(f'v_lshlrev_b32 v{E0 + r}, 16, v{XG[k] + r}')
            a(f'v_and_b32 v{E1 + r}, 0xffff0000, v{XG[k] + r}')
        for r in range(4):
            a(f'v_sub_f32 v{E0 + r}, v{E0 + r}, v{Mv + r}')
            a(f'v_sub_f32 v{E1 + r}, v{E1 + r}, v{Mv + r}')
        for E in (E0, E1):
            a(f'v_cvt_pk_bf16_f32 v{E + 4}, v{E}, v{E + 1}')
            a(f'v_cvt_pk_bf16_f32 v{E + 5}, v{E + 2}, v{E + 3}')
        for E in (E0, E1):
            a(f'v_lshlrev_b32 v{E}, 16, v{E + 4}')
            a(f'v_and_b32 v{E + 1}, 0xffff0000, v{E + 4}')
            a(f'v_lshlrev_b32 v{E + 2}, 16, v{E + 5}')
            a(f'v_and_b32 v{E + 3}, 0xffff0000, v{E + 5}')
        for r in range(4):
            a(f'v_mul_f32 v{E0 + r}, v{E0 + r}, v{Rv + r}')
            a(f'v_mul_f32 v{E1 + r}, v{E1 + r}, v{Rv + r}')
        for ch, E in enumerate((E0, E1)):
            a(f'v_cvt_pk_bf16_f32 v{UP[k] + 2 * ch}, v{E}, v{E + 1}')
            a(f'v_cvt_pk_bf16_f32 v{UP[k] + 2 * ch + 1}, v{E + 2}, v{E + 3}')
    stamp(a, 'udone')
    a('s_setprio 0')


def p12_rest(a, dbg):
    a.comment('---- U waves: u and x into LDS (tables are dead now)')
    Lnu = a.newlabel('L_nouw')
    a(f's_cmp_ge_u32 {sWave}, 4')
    a(f's_cbranch_scc0 {Lnu}')
    for k in range(2):
        a(f's_lshl_b32 {T[6]}, {T[13 + k]}, 9')
        a(f'v_lshl_add_u32 v9, v0, 3, {T[6]}')
        a(f'ds_write_b64 v9, {vr(UP[k], 2)} offset:{UB + 512}')
        a(f'ds_write_b64 v9, {vr(UP[k] + 2, 2)} offset:{UB + UBS + 512}')
        a(f'ds_write_b64 v9, {vr(UP[k] + 4, 2)} offset:{XB}')
        a(f'ds_write_b64 v9, {vr(UP[k] + 6, 2)} offset:{XB + 4096}')
    a(f's_and_b32 {T[7]}, {sWave}, 1')
    a(f's_mul_i32 {T[7]}, {T[7]}, {UBS}')
    a(f'v_lshl_add_u32 v10, v0, 3, {T[7]}')
    a(f'v_mov_b32 v4, 0')
    a(f'v_mov_b32 v5, 0')
    a(f'ds_write_b64 v10, v[4:5] offset:{UB}')
    a.label(Lnu)
    a(f's_lshr_b32 {T[2]}, {sWave}, 2')

    a(f's_mul_i32 {T[9]}, {T[2]}, {4 * KCS}')
    a(f's_add_u32 {T[9]}, {T[9]}, {KC}')
    a(f'v_and_b32 v16, 255, v1')
    a(f'v_lshl_add_u32 v16, v16, 4, {T[9]}')
    D = 20
    a(f'ds_read_b128 {vr(D, 4)}, v16')
    a(f'ds_read_b64 {vr(D + 4, 2)}, v16 offset:16')
    a('s_waitcnt lgkmcnt(0)')
    C1, C2, C3 = 32, 36, 40
    for k in range(4):
        a(f'v_alignbit_b32 v{C1 + k}, v{D + k + 1}, v{D + k}, 16')
        a(f'v_mov_b32 v{C2 + k}, v{D + k + 1}')
        a(f'v_alignbit_b32 v{C3 + k}, v{D + k + 2}, v{D + k + 1}, 16')
    a(f'ds_write_b128 v16, {vr(C1, 4)} offset:{KCS}')
    a(f'ds_write_b128 v16, {vr(C2, 4)} offset:{2 * KCS}')
    a(f'ds_write_b128 v16, {vr(C3, 4)} offset:{3 * KCS}')
    if dbg == 'K':
        a('s_waitcnt lgkmcnt(0)')
        a(f's_lshl_b32 {T[9]}, {sCP}, 13')
        a(f's_lshl_b32 {T[11]}, {T[2]}, 12')
        a(f's_add_u32 {T[9]}, {T[9]}, {T[11]}')
        a(f's_add_u32 {T[9]}, {T[9]}, {DBGK}')
        a(f'v_and_b32 v17, 255, v1')
        a(f'v_lshlrev_b32 v17, 4, v17')
        a(f'buffer_store_dwordx4 {vr(D, 4)}, v17, {SWS}, {T[9]} offen')
    stamp(a, 'C3')

    a('s_waitcnt lgkmcnt(0)')
    a('s_barrier')
    stamp(a, 'S3')

    Lnc = a.newlabel('L_noconv')
    Lce = a.newlabel('L_convend')
    a(f's_cmp_ge_u32 {sWave}, 4')
    a(f's_cbranch_scc1 {Lnc}')
    a(f'v_mov_b32 v40, {PAIRC + 8}')
    a(f'v_mov_b32 v41, 1')
    a('s_waitcnt vmcnt(0)')
    stamp(a, 'kack')
    a(f's_mov_b64 {sEX}, exec')
    a('s_mov_b64 exec, 1')
    a('ds_add_rtn_u32 v42, v40, v41')
    a('s_waitcnt lgkmcnt(0)')
    a(f'v_readfirstlane_b32 {T[1]}, v42')
    a(f's_cmp_eq_u32 {T[1]}, 3')
    Lnl2 = a.newlabel('L_notlast')
    a(f's_cbranch_scc0 {Lnl2}')
    a(f's_and_b32 {T[1]}, {sW}, 15')
    a(f's_lshl_b32 {T[1]}, {T[1]}, 8')
    a(f's_add_u32 {T[1]}, {T[1]}, {CNTW}')
    a(f'v_mov_b32 v40, 1')
    a(f'v_mov_b32 v41, 0')
    a(f'buffer_atomic_add v40, v41, {SWS}, {T[1]} offen')
    if STAMPS['on']:
        a('s_waitcnt vmcnt(0)')
    stamp(a, 'warr')
    a.label(Lnl2)
    a(f's_mov_b64 exec, {sEX}')
    VA, VB = 2, 3
    ACC = 4
    AF = [36, 100]
    BF = [68, 132]
    a(f's_lshr_b32 {T[2]}, {sWave}, 1')
    a(f's_and_b32 {T[3]}, {sWave}, 1')
    a(f'v_and_b32 v164, 15, v0')
    a(f'v_lshrrev_b32 v165, 4, v0')
    a(f's_lshl_b32 {T[5]}, {T[3]}, 8')
    a(f'v_lshlrev_b32 v166, 5, v164')
    a(f'v_lshl_add_u32 v166, v165, 4, v166')
    a(f's_mul_i32 {T[4]}, {T[2]}, {UBS}')
    a(f's_sub_u32 {T[4]}, {T[4]}, {T[5]}')
    a(f's_add_u32 {T[4]}, {T[4]}, {UB + 480 - 192}')
    a(f'v_add_u32 v{VB}, {T[4]}, v166')
    a(f'v_and_b32 v166, 3, v164')
    a(f'v_sub_u32 v166, 3, v166')
    a(f'v_mul_u32_u24 v166, {KCS}, v166')
    a(f'v_lshrrev_b32 v167, 2, v164')
    a(f'v_lshlrev_b32 v167, 3, v167')
    a(f'v_sub_u32 v166, v166, v167')
    a(f'v_lshl_add_u32 v166, v165, 4, v166')
    a(f's_mul_i32 {T[4]}, {T[2]}, {4 * KCS}')
    a(f's_sub_u32 {T[4]}, {T[4]}, {T[5]}')
    a(f's_add_u32 {T[4]}, {T[4]}, {KC + 280}')
    a(f'v_add_u32 v{VA}, {T[4]}, v166')

    def conv_loads(q0i):
        s = q0i & 1
        out = []
        for k in range(8):
            offa = 512 * (7 - k) + 64 * (3 - q0i)
            offb = 512 * k + 64 * (3 - q0i)
            out.append(f'ds_read_b128 {vr(BF[s] + 4 * k, 4)}, v{VB} offset:{offb}')
            out.append(f'ds_read_b64 {vr(AF[s] + 4 * k, 2)}, v{VA} offset:{offa}')
            out.append(f'ds_read_b64 {vr(AF[s] + 4 * k + 2, 2)}, v{VA} offset:{offa + 8}')
        return out
    mf = []
    for ct in range(8):
        for q1 in range(ct + 1):
            mf.append((max(q1, ct - q1), ct, q1))
    mf.sort()
    loads = [(q, x) for q in range(4) for x in conv_loads(q)]
    issued = 0
    known = 0
    for q in range(4):
        s = q & 1
        for idx, (lvl, ct, q1) in enumerate(mf):
            need = 24 * q + 3 * (lvl + 1)
            if q == 0 and idx == 0:
                while issued < 15:
                    a(loads[issued][1]); issued += 1
            while issued < need:
                a(loads[issued][1]); issued += 1
            if known < need:
                assert issued - need <= 15
                a(f's_waitcnt lgkmcnt({issued - need})')
                known = need
            first = (q == 0 and (lvl, ct, q1) == min(m for m in mf if m[1] == ct))
            c = '0' if first else vr(ACC + 4 * ct, 4)
            a(f'v_mfma_f32_16x16x32_bf16 {vr(ACC + 4 * ct, 4)}, {vr(AF[s] + 4 * q1, 4)}, {vr(BF[s] + 4 * (ct - q1), 4)}, {c}')
            if issued < len(loads) and issued - known < 15 and loads[issued][0] <= q + 1:
                a(loads[issued][1]); issued += 1
    stamp(a, 'convd')
    a(f's_lshl_b32 {T[4]}, {sWave}, 13')
    a(f's_add_u32 {T[4]}, {T[4]}, {PART}')
    a(f'v_lshl_add_u32 v{VA}, v0, 4, {T[4]}')
    for ct in range(8):
        a(f'ds_write_b128 v{VA}, {vr(ACC + 4 * ct, 4)} offset:{1024 * ct}')
    a(f's_branch {Lce}')
    a.label(Lnc)
    Lnt = a.newlabel('L_notouch')
    a(f's_cmp_eq_u32 {sWave}, 7')
    a(f's_cbranch_scc0 {Lnt}')
    srd(a, SB, P_WD, 1792 * 1024)
    a(f's_mul_i32 {T[5]}, {sW}, 7168')
    a(f'v_lshlrev_b32 v10, 4, v0')
    for i in range(7):
        if i == 4:
            a(f's_add_u32 {T[5]}, {T[5]}, 4096')
        a(f'buffer_load_dwordx4 v[200:203], v10, {SB}, {T[5]} offen offset:{1024 * (i & 3)}')
    a.label(Lnt)
    a.label(Lce)
    a('s_waitcnt lgkmcnt(0)')
    a('s_barrier')
    stamp(a, 'S4')

    a(f's_lshr_b32 {T[2]}, {sWave}, 2')
    a(f's_and_b32 {T[3]}, {sWave}, 3')
    a(f's_lshl_b32 {T[4]}, {T[2]}, 14')
    a(f's_lshl_b32 {T[5]}, {T[3]}, 11')
    a(f's_add_u32 {T[4]}, {T[4]}, {T[5]}')
    a(f's_add_u32 {T[4]}, {T[4]}, {PART}')
    a(f'v_lshl_add_u32 v2, v0, 4, {T[4]}')
    for i in range(2):
        a(f'ds_read_b128 {vr(4 + 8 * i, 4)}, v2 offset:{1024 * i}')
        a(f'ds_read_b128 {vr(8 + 8 * i, 4)}, v2 offset:{1024 * i + 8192}')
    a(f'v_and_b32 v20, 15, v0')
    a(f'v_lshrrev_b32 v21, 4, v0')
    a(f'v_lshlrev_b32 v20, 5, v20')
    a(f'v_lshl_add_u32 v20, v21, 3, v20')
    a(f's_lshl_b32 {T[5]}, {T[3]}, 10')
    a(f'v_add_u32 v20, {T[5]}, v20')
    a(f's_mul_i32 {T[6]}, {T[2]}, {UBS}')
    a(f's_add_u32 {T[6]}, {T[6]}, {UB + 512}')
    a(f'v_add_u32 v21, {T[6]}, v20')
    a(f's_lshl_b32 {T[6]}, {T[2]}, 12')
    a(f's_add_u32 {T[6]}, {T[6]}, {XB}')
    a(f'v_add_u32 v22, {T[6]}, v20')
    for i in range(2):
        a(f'ds_read_b64 {vr(24 + 4 * i, 2)}, v21 offset:{512 * i}')
        a(f'ds_read_b64 {vr(26 + 4 * i, 2)}, v22 offset:{512 * i}')
    a(f's_lshl_b32 {T[7]}, {sDSK}, 16')
    a(f's_and_b32 {T[8]}, {sDSK}, 0xffff0000')
    a(f's_cmp_eq_u32 {T[2]}, 0')
    a(f's_cselect_b32 {T[7]}, {T[7]}, {T[8]}')
    a(f's_lshl_b32 {T[8]}, {sCP}, 1')
    a(f's_add_u32 {T[8]}, {T[8]}, {T[2]}')
    a(f's_lshl_b32 {T[8]}, {T[8]}, 12')
    a(f's_add_u32 {T[8]}, {T[8]}, {HT}')
    a('s_waitcnt lgkmcnt(0)')
    Es = [32, 44]
    for i in range(2):
        Y, Y2 = 4 + 8 * i, 8 + 8 * i
        for k in range(4):
            a(f'v_add_f32 v{Y + k}, v{Y + k}, v{Y2 + k}')
    for i in range(2):
        Uu, Xx, E = 24 + 4 * i, 26 + 4 * i, Es[i]
        for k in range(2):
            a(f'v_lshlrev_b32 v{E + 2 * k}, 16, v{Xx + k}')
            a(f'v_and_b32 v{E + 2 * k + 1}, 0xffff0000, v{Xx + k}')
            a(f'v_lshlrev_b32 v{E + 4 + 2 * k}, 16, v{Uu + k}')
            a(f'v_and_b32 v{E + 4 + 2 * k + 1}, 0xffff0000, v{Uu + k}')
    for i in range(2):
        Y, E = 4 + 8 * i, Es[i]
        for k in range(4):
            a(f'v_fmac_f32 v{Y + k}, {T[7]}, v{E + 4 + k}')
    for i in range(2):
        Y, E = 4 + 8 * i, Es[i]
        for k in range(4):
            a(f'v_add_f32 v{Y + k}, v{Y + k}, v{E + k}')
    for i in range(2):
        Y = 4 + 8 * i
        a(f'v_cvt_pk_bf16_f32 v{56 + 2 * i}, v{Y}, v{Y + 1}')
        a(f'v_cvt_pk_bf16_f32 v{57 + 2 * i}, v{Y + 2}, v{Y + 3}')
    a(f'v_permlane16_swap_b32 v56, v58')
    a(f'v_permlane16_swap_b32 v57, v59')
    a(f'v_and_b32 v20, 15, v0')
    a(f'v_lshlrev_b32 v20, 5, v20')
    a(f'v_lshrrev_b32 v21, 5, v0')
    a(f'v_lshl_add_u32 v20, v21, 4, v20')
    a(f'v_bfe_u32 v21, v0, 4, 1')
    a(f'v_lshl_add_u32 v20, v21, 9, v20')
    a(f'v_add_u32 v20, {T[5]}, v20')
    store_h(a, T[8])
    Lw4 = a.newlabel('L_wlook')
    a(f's_cmp_eq_u32 {sWave}, 4')
    a(f's_cbranch_scc0 {Lw4}')
    poll_ge(a, CNTW, 16, 256, 16, 'v16', 'v17', 'w', sleep=4)
    stampval(a, '#wspin', sSpin)
    a.label(Lw4)
    a('s_waitcnt vmcnt(0)')
    a('s_barrier')
    stamp(a, 'S5')


def wprefetch(a):
    Lo = a.newlabel('L_pfo')
    a(f's_cmp_eq_u32 {sWave}, 4')
    a(f's_cbranch_scc0 {Lo}')
    poll_ge(a, CNTW, 16, 256, 16, 'v16', 'v17', 'w', sleep=6)
    stampval(a, '#wspin', sSpin)
    a.label(Lo)
    stamp(a, 'pfok')


def store_h(a, soff):
    a(f'buffer_store_dwordx4 v[56:59], v20, {SWS}, {soff} offen sc1')


def wprep(a):
    AL15, GG_ = 84, 85
    a(f'v_and_b32 v{AL15}, 15, v0')
    a(f'v_lshrrev_b32 v{GG_}, 4, v0')
    a(f'v_lshrrev_b32 v99, 2, v{AL15}')
    a(f'v_lshrrev_b32 v100, 1, v{GG_}')
    a(f'v_lshl_add_u32 v99, v100, 3, v99')
    a(f'v_mul_u32_u24 v99, 224, v99')
    a(f'v_and_b32 v100, 3, v0')
    a(f'v_lshl_add_u32 v99, v100, 3, v99')
    a(f'v_and_b32 v100, 1, v{GG_}')
    a(f'v_mul_u32_u24 v100, {STG_U - STG_G}, v100')
    a(f'v_add_u32 v99, v99, v100')
    sJ0 = T[16]
    a(f's_lshl_b32 {sJ0}, {sWave}, 1')
    a(f's_lshl_b32 {T[17]}, {sJ0}, 5')
    a(f's_add_u32 {T[17]}, {T[17]}, {STG_G}')
    a(f'v_add_u32 v98, {T[17]}, v99')
    a(f'v_lshlrev_b32 v108, 4, v0')
    a(f'v_lshlrev_b32 v112, 2, v0')
    a(f'v_mov_b32 v152, 0x3f803f80')
    a(f'v_mov_b32 v153, 0x3f803f80')
    a(f's_lshr_b32 {T[17]}, {sW}, 4')
    a(f's_mul_i32 {T[17]}, {T[17]}, 7')
    a(f's_add_u32 {T[17]}, {T[17]}, {sJ0}')
    a(f's_lshl_b32 {T[17]}, {T[17]}, 5')
    a(f's_and_b32 {T[18]}, {sW}, 15')
    a(f's_lshl_b32 {T[18]}, {T[18]}, 1')
    a(f's_add_u32 {T[17]}, {T[17]}, {T[18]}')
    a(f's_lshl_b32 {T[17]}, {T[17]}, 10')
    a(f's_add_u32 {T[17]}, {T[17]}, {WP}')
    a(f's_mul_i32 {T[19]}, {sW}, 896')
    a(f's_lshl_b32 {T[18]}, {sJ0}, 7')
    a(f's_add_u32 {T[19]}, {T[19]}, {T[18]}')
    a(f's_add_u32 {T[19]}, {T[19]}, {CSP}')
    Ld = a.newlabel('L_prepdone')
    for jj in range(2):
        PF = 116 + 8 * jj
        if jj == 1:
            a(f's_cmp_eq_u32 {sWave}, 3')
            a(f's_cbranch_scc1 {Ld}_r')
        for kk in range(2):
            for rd in range(2):
                a(f'ds_read_b64_tr_b16 {vr(PF + 4 * kk + 2 * rd, 2)}, v98 offset:{(16 * kk + 4 * rd) * 224 + 32 * jj}')
    a.label(Ld + '_r')
    a('s_waitcnt lgkmcnt(0)')
    for jj in range(2):
        PF = 116 + 8 * jj
        if jj == 1:
            a(f's_cmp_eq_u32 {sWave}, 3')
            a(f's_cbranch_scc1 {Ld}')
        a(f's_add_u32 {T[18]}, {T[17]}, {32 * 1024 * jj}')
        a(f'buffer_store_dwordx4 {vr(PF, 4)}, v108, {SWS}, {T[18]} offen sc1')
        a(f'buffer_store_dwordx4 {vr(PF + 4, 4)}, v108, {SWS}, {T[18]} offen offset:1024 sc1')
        SM = 140 + 4 * jj
        for i in range(4):
            a(f'v_mfma_f32_4x4x4_16b_bf16 {vr(SM, 4)}, v[152:153], {vr(PF + 2 * i, 2)}, {"0" if i == 0 else vr(SM, 4)}')
        a(f'v_mov_b32 v110, v{SM}')
        a(f'v_mov_b32 v111, v{SM}')
        a(f'v_permlane32_swap_b32 v110, v111')
        a(f'v_add_f32 v110, v110, v111')
        a(f's_add_u32 {T[18]}, {T[19]}, {128 * jj}')
        a(f's_mov_b64 {sEX}, exec')
        a('s_mov_b32 exec_hi, 0')
        a(f'buffer_store_dword v110, v112, {SWS}, {T[18]} offen sc1')
        a(f's_mov_b64 exec, {sEX}')
    a.label(Ld)


def ln_finish2(a, S, Q, t):
    def each(fmt):
        for r in range(2):
            a(fmt.format(S=S[r], Q=Q[r], t=t[r]))
    each('v_mul_f32 v{S}, 0x3b000000, v{S}')
    each('v_mul_f32 v{Q}, 0x3b000000, v{Q}')
    each('v_fma_f32 v{Q}, -v{S}, v{S}, v{Q}')
    each('v_max_f32 v{Q}, 0, v{Q}')
    each('v_cvt_pk_bf16_f32 v{t}, v{Q}, v{Q}')
    each('v_lshlrev_b32 v{t}, 16, v{t}')
    each('v_add_f32 v{t}, 0x3727c5ac, v{t}')
    each('v_cvt_pk_bf16_f32 v{t}, v{t}, v{t}')
    each('v_lshlrev_b32 v{t}, 16, v{t}')
    each('v_sqrt_f32 v{t}, v{t}')
    each('v_cvt_pk_bf16_f32 v{t}, v{t}, v{t}')
    each('v_lshlrev_b32 v{Q}, 16, v{t}')


def ln_finish(a, S, Q, t3, t4):
    a(f'v_mul_f32 v{S}, 0x3b000000, v{S}')
    a(f'v_mul_f32 v{Q}, 0x3b000000, v{Q}')
    a(f'v_fma_f32 v{Q}, -v{S}, v{S}, v{Q}')
    a(f'v_max_f32 v{Q}, 0, v{Q}')
    a(f'v_cvt_pk_bf16_f32 v{t3}, v{Q}, v{Q}')
    a(f'v_lshlrev_b32 v{t3}, 16, v{t3}')
    a(f'v_add_f32 v{t3}, 0x3727c5ac, v{t3}')
    a(f'v_cvt_pk_bf16_f32 v{t3}, v{t3}, v{t3}')
    a(f'v_lshlrev_b32 v{t3}, 16, v{t3}')
    a(f'v_sqrt_f32 v{t3}, v{t3}')
    a(f'v_cvt_pk_bf16_f32 v{t4}, v{t3}, v{t3}')
    a(f'v_lshlrev_b32 v{Q}, 16, v{t4}')


HEADER = """; Fused pre-LN S4D convolution + pre-LN GEGLU FFN, one persistent launch (256 workgroups x 512 threads).
; d_in order: A_u, log_A_real, A_imag, C_real, C_imag, log_dt, D_skip, B_x, w_gate, w_up, w_down ; d_out, d_debug, d_ws
; @launch grid=(256,1,1) block=(512,1,1) lds=%d
.amdgcn_target "amdgcn-amd-amdhsa--gfx950"
.text
.globl %s
.p2align 8
.type %s,@function
""" % (LDS_SIZE, KNAME, KNAME)

FOOTER = """.section .rodata,"a"
.p2align 6
.amdhsa_kernel %s
  .amdhsa_next_free_vgpr 256
  .amdhsa_next_free_sgpr 102
  .amdhsa_accum_offset 256
  .amdhsa_group_segment_fixed_size 0
  .amdhsa_kernarg_size 112
  .amdhsa_user_sgpr_count 2
  .amdhsa_user_sgpr_kernarg_segment_ptr 1
  .amdhsa_system_sgpr_workgroup_id_x 1
.end_amdhsa_kernel
""" % KNAME


def build(upto='all', dbg=None):
    a = Asm()
    STAMPS['on'] = (dbg is not None and dbg.startswith('T'))
    STAMPS['only'] = set(dbg[2:].split(',')) if (dbg and len(dbg) > 2) else None
    STAMPS['names'] = []
    a.label(KNAME)
    entry(a)
    p12(a, dbg)
    if upto in ('p3', 'all'):
        import gen34
        gen34.p3(a, dbg)
        if upto == 'all':
            gen34.p4(a, dbg)
    dump_stamps(a)
    a.label('L_end')
    a('s_endpgm')
    n = a.fix_hazards()
    return HEADER + a.text() + FOOTER, n


if __name__ == '__main__':
    upto = sys.argv[1] if len(sys.argv) > 1 else 'all'
    dbg = sys.argv[2] if len(sys.argv) > 2 and sys.argv[2] != '-' else None
    out = sys.argv[3] if len(sys.argv) > 3 else 'out.s'
    txt, n = build(upto, dbg)
    open(out, 'w').write(txt)
    if dbg and dbg.startswith('T'):
        open(out + '.stamps', 'w').write(' '.join(STAMPS['names']))
    print(f'wrote {out}: {len(txt)} bytes, {txt.count(chr(10))} lines, {n} nops inserted')
```

```python
from gen import *
from asmlib import Asm
import gen as G
import math
import struct


def f2h(x):
    return hex(struct.unpack('<I', struct.pack('<f', x))[0])


K1 = f2h(-2.0 * math.sqrt(2.0 / math.pi) * math.log2(math.e))
K2 = f2h(-2.0 * math.sqrt(2.0 / math.pi) * math.log2(math.e) * 0.044715)

H = 128
ACC0 = 16
ACC1 = 32
WF = 48
WF0 = 48
CS = 64
TMP = 80
CSLD = 96
vWD = 112
vHA = 2
vWA = 3
vM, vR = 4, 5
vC1, vC2, vS2S = 6, 113, 114
vL16 = 7
vS1, vS2, vQ1, vQ2 = 8, 9, 10, 11
vCSA = 12
vHD = 13
vT0, vT1 = 14, 15

sGrp, sTq = T[20], T[21]
sWB = T[22]
sGB = T[23]
SWD = SA


class Q:
    def __init__(self, a):
        self.a = a
        self.q = []

    def add(self, tag, n=1):
        self.q += [tag] * n

    def has(self, tag):
        return tag in self.q

    def wait(self, tag):
        last = max(i for i, t in enumerate(self.q) if t == tag)
        n = len(self.q) - 1 - last
        self.a(f's_waitcnt vmcnt({n})')
        del self.q[:last + 1]


def dma_w8(a, j, slot):
    a(f's_lshl_b32 {T[1]}, {sWave}, 12')
    a(f's_add_u32 {T[0]}, {sWB}, {T[1]}')
    a(f's_add_u32 {T[0]}, {T[0]}, {j * 32768}')
    a(f's_add_u32 m0, {T[1]}, {G.WSLOT[slot]}')
    a('s_nop 0')
    for i in range(4):
        a(f'buffer_load_dwordx4 v{vL16}, {SWS}, {T[0]} offen offset:{1024 * i} lds')


def dma_w4(a, j, slot):
    a(f's_lshl_b32 {T[1]}, {sTq}, 13')
    a(f's_add_u32 {T[0]}, {sWB}, {T[1]}')
    a(f's_add_u32 {T[0]}, {T[0]}, {j * 32768}')
    a(f's_add_u32 m0, {T[1]}, {G.WSLOT[slot]}')
    a('s_nop 0')
    for i in range(4):
        a(f'buffer_load_dwordx4 v{vL16}, {SWS}, {T[0]} offen offset:{1024 * i} lds')
    a(f's_add_u32 m0, m0, 4096')
    a(f's_add_u32 {T[0]}, {T[0]}, 4096')
    for i in range(4):
        a(f'buffer_load_dwordx4 v{vL16}, {SWS}, {T[0]} offen offset:{1024 * i} lds')


def dma_h(a, s):
    a(f's_lshl_b32 {T[1]}, {sWave}, 10')
    a(f's_add_u32 m0, {T[1]}, {HRING + (s % NRING) * 8192}')
    a(f's_mov_b32 {T[0]}, {HT + s * 32 * 4096}')
    a(f'buffer_load_dwordx4 v{vHD}, {SWS}, {T[0]} offen lds')


def dma_wd4(a, c):
    a(f's_lshl_b32 {T[1]}, {sTq}, 12')
    a(f's_add_u32 m0, {T[1]}, {(c % NWD) * WDSLOT}')
    a(f's_lshl_b32 {T[0]}, {sTq}, 15')
    a(f's_add_u32 {T[0]}, {T[0]}, {c * 128 * 1024}')
    for i in range(4):
        if i:
            a(f's_add_u32 m0, m0, 1024')
            a(f's_add_u32 {T[0]}, {T[0]}, 8192')
        a(f'buffer_load_dwordx4 v{vWD}, {SWD}, {T[0]} offen lds')


def dma_wd8(a, c):
    a(f's_bitcmp1_b32 {sWave}, 0')
    a(f's_mov_b32 {T[0]}, {16 * 1024 * kconst(2 * c)}')
    a(f's_cselect_b32 {T[0]}, {16 * 1024 * kconst(2 * c + 1)}, {T[0]}')
    a(f's_add_u32 {T[0]}, {T[0]}, {sD8}')
    a(f's_lshl_b32 {T[1]}, {sWave}, 11')
    a(f's_add_u32 m0, {T[1]}, {(c % NWD) * WDSLOT}')
    a('s_nop 0')
    a(f'buffer_load_dwordx4 v{vWD}, {SWD}, {T[0]} offen lds')
    a(f's_add_u32 m0, m0, 1024')
    a(f's_add_u32 {T[0]}, {T[0]}, 8192')
    a(f'buffer_load_dwordx4 v{vWD}, {SWD}, {T[0]} offen lds')


sWq, sMq, sDq, sM4q = T[16], T[17], T[18], T[19]
sTT, sKQ, sG, sD8 = 's16', 's17', 's18', 's19'


def kconst(nn):
    if nn < 12:
        return 28 * (nn // 3) + nn % 3
    if nn < 20:
        return 28 * ((nn - 12) // 2) + 3 + (nn - 12) % 2
    return 28 * ((nn - 20) // 2) + 5 + (nn - 20) % 2


def w_pieces(j, slot):
    return [[f's_add_u32 m0, {sMq}, {G.WSLOT[slot] + 1024 * i}',
             f's_add_u32 {T[0]}, {sWq}, {j * 32768 + 1024 * i}',
             f'buffer_load_dwordx4 v{vL16}, {SWS}, {T[0]} offen lds'] for i in range(8)]


def wd_pieces(c):
    return [[f's_add_u32 m0, {sM4q}, {(c % NWD) * WDSLOT + 1024 * i}',
             f's_add_u32 {T[0]}, {sDq}, {(16 * kconst(2 * c + (i >> 1)) + 8 * (i & 1)) * 1024}',
             f'buffer_load_dwordx4 v{vWD}, {SWD}, {T[0]} offen lds'] for i in range(4)]


def mfma_phase(a, acc, slot, pieces=(), first=1, last=30, extra=(), pre=(), ring=8, depth=6):
    n = 32
    extra = list(extra)
    nx = len(extra)
    at = {}
    if pieces:
        m = len(pieces)
        for idx, p in enumerate(pieces):
            k = first + (idx * (last - first)) // max(m - 1, 1) if m > 1 else first
            at.setdefault(k, []).append(p)
    a(f'v_add_u32 v{vWA}, {G.WSLOT[slot]}, v{vL16}')
    a('s_setprio 1')
    for x in pre:
        a(x)
    for k in range(depth):
        a(f'ds_read_b128 {vr(WF + 4 * (k % ring), 4)}, v{vWA} offset:{1024 * k}')
    for k in range(n):
        if k + depth < n:
            a(f'ds_read_b128 {vr(WF + 4 * ((k + depth) % ring), 4)}, v{vWA} offset:{1024 * (k + depth)}')
            a(f's_waitcnt lgkmcnt({depth})')
        else:
            a(f's_waitcnt lgkmcnt({n - 1 - k})')
        c = '0' if k == 0 else vr(acc, 16)
        a(f'v_mfma_f32_32x32x16_bf16 {vr(acc, 16)}, {vr(WF + 4 * (k % ring), 4)}, {vr(H + 4 * k, 4)}, {c}')
        for p in at.get(k, []):
            for x in p:
                a(x)
        if k >= 1:
            want = min(nx, (nx * k + 29) // 30)
            while nx - len(extra) < want:
                a(extra.pop(0))
    a('s_setprio 0')


def epi_reads(j, cs):
    return [f'ds_read_b128 {vr(cs + 4 * i, 4)}, v{vCSA} offset:{128 * j + 32 * i}' for i in range(4)]


def epi_body(acc, cs, waits=True):
    o = []
    Z = TMP
    for i in range(4):
        if waits:
            o.append(f's_waitcnt lgkmcnt({3 - i})')
        for k in range(4):
            o.append(f'v_fmac_f32 v{acc + 4 * i + k}, v{vM}, v{cs + 4 * i + k}')
        if i < 2:
            for k in range(4):
                o.append(f'v_mul_f32 v{Z + 4 * i + k}, v{acc + 4 * i + k}, v{acc + 4 * i + k}')
    for i in range(8):
        o.append(f'v_fma_f32 v{Z + i}, v{Z + i}, v{vC2}, v{vC1}')
    for i in range(8):
        o.append(f'v_mul_f32 v{Z + i}, v{Z + i}, v{acc + i}')
    for i in range(8):
        o.append(f'v_exp_f32 v{Z + i}, v{Z + i}')
        o.append(f'v_mul_f32 v{acc + i}, v{acc + i}, v{acc + 8 + i}')
    for i in range(8):
        o.append(f'v_fma_f32 v{Z + i}, v{Z + i}, v{vS2S}, v{vS2S}')
    for i in range(8):
        o.append(f'v_rcp_f32 v{Z + i}, v{Z + i}')
    P = TMP + 8
    for i in range(4):
        o.append(f'v_mul_f32 v{acc + 2 * i}, v{acc + 2 * i}, v{Z + 2 * i}')
        o.append(f'v_mul_f32 v{acc + 2 * i + 1}, v{acc + 2 * i + 1}, v{Z + 2 * i + 1}')
        o.append(f'v_cvt_pk_bf16_f32 v{P + i}, v{acc + 2 * i}, v{acc + 2 * i + 1}')
    o.append(f'v_permlane32_swap_b32 v{P}, v{P + 2}')
    o.append(f'v_permlane32_swap_b32 v{P + 1}, v{P + 3}')
    return o


def epi_store(a, j):
    a(f's_add_u32 {T[3]}, {sGB}, {1024 * j}')
    a(f'buffer_store_dwordx4 {vr(TMP + 8, 4)}, v{vL16}, {SWS}, {T[3]} offen sc1')


def epilogue(a, acc, j):
    for x in epi_reads(j, CS):
        a(x)
    for x in epi_body(acc, CS):
        a(x)
    epi_store(a, j)


def stats_final(a):
    ln_finish(a, vS1, vQ1, vT0, vT1)
    a(f'v_cvt_pk_bf16_f32 v{vT0}, v{vS1}, v{vS1}')
    a(f'v_rcp_f32 v{vR}, v{vQ1}')
    a(f'v_lshlrev_b32 v{vT0}, 16, v{vT0}')
    a(f'v_sub_f32 v{vM}, 0, v{vT0}')
    a(f'v_mul_f32 v{vS2S}, v{vQ1}, v{vQ1}')
    a(f'v_mul_f32 v{vC1}, {K1}, v{vR}')
    a(f'v_mul_f32 v{vC2}, v{vR}, v{vR}')
    a(f'v_mul_f32 v{vC2}, v{vC2}, v{vR}')
    a(f'v_mul_f32 v{vC2}, {K2}, v{vC2}')


def p3(a, dbg):
    a.comment('================ P3: LN2 + gate/up GEMM + GEGLU')
    Lb2 = a.newlabel('L_arr2')
    a(f's_cmp_eq_u32 {sWave}, 7')
    a(f's_cbranch_scc0 {Lb2}')
    a(f's_and_b32 {T[1]}, {sW}, 15')
    a(f's_lshl_b32 {T[1]}, {T[1]}, 8')
    a(f's_add_u32 {T[1]}, {T[1]}, {CNT2}')
    arrive(a, T[1], 'v16', 'v17')
    a.label(Lb2)
    a(f's_lshr_b32 {sGrp}, {sWave}, 2')
    a(f's_and_b32 {sTq}, {sWave}, 3')
    a(f's_mul_i32 {sWB}, {sFB}, {7 * 32768}')
    a(f's_add_u32 {sWB}, {sWB}, {WP}')
    a(f's_lshl_b32 {T[0]}, {sTB}, 2')
    a(f's_add_u32 {T[0]}, {T[0]}, {sTq}')
    a(f's_mul_i32 {T[0]}, {T[0]}, 112')
    a(f's_mul_i32 {T[1]}, {sFB}, 7')
    a(f's_add_u32 {T[0]}, {T[0]}, {T[1]}')
    a(f's_lshl_b32 {T[0]}, {T[0]}, 10')
    a(f's_add_u32 {sGB}, {T[0]}, {GG}')
    a(f'v_lshlrev_b32 v{vL16}, 4, v0')
    a(f'v_lshrrev_b32 v{vT0}, 4, v0')
    a(f'v_and_b32 v{vT1}, 15, v0')
    a(f'v_lshlrev_b32 v{vHD}, 2, v{vT0}')
    a(f'v_xor_b32 v{vHD}, v{vHD}, v{vT1}')
    a(f'v_lshlrev_b32 v{vHD}, 4, v{vHD}')
    a(f's_lshl_b32 {T[0]}, {sWave}, 2')
    a(f'v_add_u32 v{vT0}, {T[0]}, v{vT0}')
    a(f'v_lshl_add_u32 v{vHD}, v{vT0}, 12, v{vHD}')
    a(f's_lshl_b32 {T[0]}, {sTB}, 8')
    a(f'v_add_u32 v{vHD}, {T[0]}, v{vHD}')
    a(f'v_lshrrev_b32 v{TMP}, 2, v{vT1}')
    a(f'v_lshrrev_b32 v{TMP + 1}, 5, v0')
    a(f'v_lshl_add_u32 v{TMP + 1}, v{TMP + 1}, 3, v{TMP}')
    a(f'v_lshlrev_b32 v{vHA}, 8, v{TMP + 1}')
    a(f'v_xor_b32 v{TMP}, {sTq}, v{TMP}')
    a(f'v_lshlrev_b32 v{TMP}, 2, v{TMP}')
    a(f'v_bfe_u32 v{TMP + 1}, v0, 4, 1')
    a(f'v_lshl_add_u32 v{TMP}, v{TMP + 1}, 1, v{TMP}')
    a(f'v_bfe_u32 v{TMP + 1}, v0, 1, 1')
    a(f'v_add_u32 v{TMP}, v{TMP}, v{TMP + 1}')
    a(f'v_lshl_add_u32 v{vHA}, v{TMP}, 4, v{vHA}')
    a(f'v_and_b32 v{TMP}, 1, v0')
    a(f'v_lshl_add_u32 v{vHA}, v{TMP}, 3, v{vHA}')
    a(f's_mul_i32 {T[0]}, {sGrp}, {G.WSLOT[1] - G.WSLOT[0]}')
    a(f's_add_u32 {T[0]}, {T[0]}, {G.WSLOT[0]}')
    a(f'v_add_u32 v{vWA}, {T[0]}, v{vL16}')
    a(f'v_lshrrev_b32 v{vT0}, 5, v0')
    a(f'v_lshlrev_b32 v{vT0}, 4, v{vT0}')
    a(f'v_add_u32 v{vCSA}, {CSL}, v{vT0}')
    for r_ in (vS1, vS2, vQ1, vQ2):
        a(f'v_mov_b32 v{r_}, 0')
    srd(a, SWD, P_WD, 1792 * 1024)
    a(f'v_lshrrev_b32 v{vT0}, 3, v0')
    a(f'v_bfe_u32 v{vT1}, v0, 4, 1')
    a(f'v_lshlrev_b32 v{vT1}, 2, v{vT1}')
    a(f'v_and_b32 v{vWD}, 7, v0')
    a(f'v_xor_b32 v{vWD}, v{vWD}, v{vT1}')
    a(f'v_lshlrev_b32 v{vWD}, 4, v{vWD}')
    a(f'v_lshl_add_u32 v{vWD}, v{vT0}, 10, v{vWD}')
    a(f's_lshl_b32 {T[1]}, {sDB}, 7')
    a(f'v_add_u32 v{vWD}, {T[1]}, v{vWD}')
    a(f's_lshl_b32 {sMq}, {sTq}, 13')
    a(f's_add_u32 {sWq}, {sWB}, {sMq}')
    a(f's_lshl_b32 {sM4q}, {sTq}, 12')
    a(f's_mul_i32 {sDq}, {sTq}, {7 * 16 * 1024}')
    L6 = a.newlabel('L_p3w6')
    L7 = a.newlabel('L_p3w7')
    LS6 = a.newlabel('L_S6')
    a('s_barrier')
    a(f's_cmp_eq_u32 {sWave}, 7')
    a(f's_cbranch_scc1 {L7}')
    a(f's_cmp_eq_u32 {sWave}, 6')
    a(f's_cbranch_scc1 {L6}')
    a(f's_lshl_b32 {T[1]}, {sWave}, 14')
    a(f's_add_u32 {T[0]}, {sWB}, {T[1]}')
    a(f's_add_u32 m0, {T[1]}, {G.WSLOT[0]}')
    for g4 in range(4):
        if g4:
            a('s_add_u32 m0, m0, 4096')
            a(f's_add_u32 {T[0]}, {T[0]}, 4096')
        else:
            a('s_nop 0')
        for i_ in range(4):
            a(f'buffer_load_dwordx4 v{vL16}, {SWS}, {T[0]} offen offset:{1024 * i_} lds')
    a(f's_cmp_ge_u32 {sWave}, 4')
    a(f's_cbranch_scc1 {LS6}')
    a(f's_mul_i32 {T[0]}, {sFB}, {16 * 896}')
    a(f's_add_u32 {T[0]}, {T[0]}, {CSP}')
    a(f'v_lshlrev_b32 v{vT0}, 2, v1')
    a(f'v_min_u32 v{vT0}, {223 * 4}, v{vT0}')
    for q in range(16):
        if q:
            a(f's_add_u32 {T[0]}, {T[0]}, 896')
        a(f'buffer_load_dword v{CSLD + q}, v{vT0}, {SWS}, {T[0]} offen')
    a(f's_branch {LS6}')
    a.label(L6)
    a(f's_and_b32 {T[1]}, {sY}, 3')
    a(f's_lshl_b32 {T[1]}, {T[1]}, 15')
    a(f's_add_u32 {T[0]}, {sWB}, {T[1]}')
    a(f's_add_u32 {T[0]}, {T[0]}, {3 * 32768}')
    a(f'v_lshlrev_b32 v20, 7, v0')
    for i_ in range(4):
        if i_:
            a(f's_add_u32 {T[0]}, {T[0]}, 8192')
        a(f'buffer_load_dword v21, v20, {SWS}, {T[0]} offen')
    a(f's_branch {LS6}')
    a.label(L7)
    poll_ge(a, CNT2, 16, 256, 16, 'v16', 'v17', 'b2', sleep=4)
    a(f's_and_b32 {T[1]}, {sFB}, 7')
    a(f's_lshl_b32 {T[1]}, {T[1]}, 18')
    a(f's_lshl_b32 {T[0]}, {sTB}, 8')
    a(f's_add_u32 {T[0]}, {T[0]}, {T[1]}')
    a(f's_add_u32 {T[0]}, {T[0]}, {HT}')
    a(f'v_lshlrev_b32 v20, 12, v0')
    a(f'buffer_load_dword v21, v20, {SWS}, {T[0]} offen')
    a(f'buffer_load_dword v21, v20, {SWS}, {T[0]} offen offset:128')
    Lne = a.newlabel('L_noep')
    a(f's_cmp_eq_u32 {sW}, 0')
    a(f's_cbranch_scc0 {Lne}')
    a(f'v_mov_b32 v16, {sTAG}')
    a(f'v_mov_b32 v17, 0')
    a(f's_mov_b32 {T[1]}, {EPOCH}')
    a(f's_mov_b64 {sEX}, exec')
    a('s_mov_b64 exec, 1')
    a(f'buffer_store_dword v16, v17, {SWS}, {T[1]} offen sc1')
    a(f's_mov_b64 exec, {sEX}')
    a.label(Lne)
    a.label(LS6)
    a('s_barrier')
    G.stamp(a, 'S6'); G.stamp(a, '@kS6')
    for s in range(NRING - 1):
        dma_h(a, s)
    SUMR, GRM, ONES = 116, 120, 124

    def phase0(g):
        a(f'v_mov_b32 v{ONES}, 0x3f803f80')
        a(f'v_mov_b32 v{ONES + 1}, 0x3f803f80')

        def compute_slice(s, fill=()):
            fill = list(fill)
            for kk in range(2):
                k = 2 * s + kk
                c = '0' if k == 0 else vr(ACC0, 16)
                hs = vr(H + 4 * k + 2 * g, 2)
                a(f'v_mfma_f32_32x32x16_bf16 {vr(ACC0, 16)}, {vr(WF0 + 8 * (s & 1) + 4 * kk, 4)}, {vr(H + 4 * k, 4)}, {c}')
                while fill:
                    a(fill.pop(0))
                a(f'v_mfma_f32_4x4x4_16b_bf16 {vr(SUMR, 4)}, {vr(ONES, 2)}, {hs}, {"0" if k == 0 else vr(SUMR, 4)}')
                a(f'v_mfma_f32_4x4x4_16b_bf16 {vr(GRM, 4)}, {hs}, {hs}, {"0" if k == 0 else vr(GRM, 4)}')
            for x in fill:
                a(x)
        for s in range(16):
            issued = min(s + NRING - 1, 16)
            if s in (7, 8) and g == 0:
                G.stamp(a, f'@a{s}')
            a(f's_waitcnt vmcnt({issued - 1 - s}) lgkmcnt(0)')
            if s in (7, 8) and g == 0:
                G.stamp(a, f'@b{s}')
            a('s_barrier')
            if s in (7, 8) and g == 0:
                G.stamp(a, f'@c{s}')
            if g == 0:
                if s == 0:
                    G.stamp(a, 'h0'); G.stamp(a, '@kh0')
                if s in (4, 8, 12):
                    G.stamp(a, f'h{s}')
            base = (s % NRING) * 8192 + HRING
            rds = []
            for kk in range(2):
                k = 2 * s + kk
                rds.append(f'ds_read_b64_tr_b16 {vr(H + 4 * k, 2)}, v{vHA} offset:{base + kk * 4096}')
                rds.append(f'ds_read_b64_tr_b16 {vr(H + 4 * k + 2, 2)}, v{vHA} offset:{base + kk * 4096 + 1024}')
                rds.append(f'ds_read_b128 {vr(WF0 + 8 * (s & 1) + 4 * kk, 4)}, v{vWA} offset:{1024 * k}')
            if s > 0:
                compute_slice(s - 1, rds)
            else:
                for x in rds:
                    a(x)
            if s + NRING - 1 < 16:
                dma_h(a, s + NRING - 1)
            if s == 0 and g == 0:
                for st in (8, 4, 2, 1):
                    for q in range(st):
                        a(f'v_add_f32 v{CSLD + q}, v{CSLD + q}, v{CSLD + q + st}')
                a(f'v_lshlrev_b32 v{vT0}, 2, v1')
                a(f'v_min_u32 v{vT0}, {223 * 4}, v{vT0}')
                a(f'v_add_u32 v{vT0}, {CSL}, v{vT0}')
                a(f'ds_write_b32 v{vT0}, v{CSLD}')
        a('s_waitcnt lgkmcnt(0)')
        compute_slice(15)
        if g == 0:
            G.stamp(a, 'ph0'); G.stamp(a, '@kph0'); G.stamp(a, '@x0')
        a(f'v_and_b32 v{vT0}, 3, v0')
        a(f'v_cmp_eq_u32 vcc, 1, v{vT0}')
        a(f'v_cndmask_b32 v{vQ1}, v{GRM}, v{GRM + 1}, vcc')
        a(f'v_cmp_eq_u32 vcc, 2, v{vT0}')
        a(f'v_cndmask_b32 v{vQ1}, v{vQ1}, v{GRM + 2}, vcc')
        a(f'v_cmp_eq_u32 vcc, 3, v{vT0}')
        a(f'v_cndmask_b32 v{vQ1}, v{vQ1}, v{GRM + 3}, vcc')
        a(f'v_mov_b32 v{vS1}, v{SUMR}')
        a(f'v_mov_b32 v{vS2}, v{SUMR}')
        a(f'v_mov_b32 v{vQ2}, v{vQ1}')
        a(f'v_permlane32_swap_b32 v{vS1}, v{vS2}')
        a(f'v_permlane32_swap_b32 v{vQ1}, v{vQ2}')
        a(f'v_add_f32 v{vS1}, v{vS1}, v{vS2}')
        a(f'v_add_f32 v{vS2}, v{vQ1}, v{vQ2}')
        a(f's_lshl_b32 {T[0]}, {sWave}, 9')
        a(f's_add_u32 {T[0]}, {T[0]}, {SXCH}')
        a(f'v_lshl_add_u32 v{vT0}, v0, 3, {T[0]}')
        a(f'ds_write_b64 v{vT0}, {vr(vS1, 2)}')
        assert SXCH % 4096 == 0
        a(f'v_xor_b32 v{vT0}, 2048, v{vT0}')
        a('s_waitcnt lgkmcnt(0)')
        if g == 0:
            G.stamp(a, '@x1')
        a('s_barrier')
        if g == 0:
            G.stamp(a, '@x2')

    def finish_stats():
        a(f'ds_read_b64 {vr(vQ1, 2)}, v{vT0}')
        a('s_waitcnt lgkmcnt(0)')
        a(f'v_add_f32 v{vS1}, v{vS1}, v{vQ1}')
        a(f'v_add_f32 v{vQ1}, v{vS2}, v{vQ2}')
        stats_final(a)
    LB = a.newlabel('L_grpB')
    LJ = a.newlabel('L_join')
    a(f's_cmp_eq_u32 {sGrp}, 0')
    a(f's_cbranch_scc0 {LB}')
    phase0(0)
    q = Q(a)
    tmp = Asm()
    tmp(f'v_add_f32 v{vS1}, v{vS1}, v{vQ1}')
    tmp(f'v_add_f32 v{vQ1}, v{vS2}, v{vQ2}')
    stats_final(tmp)
    pre = [f'ds_read_b64 {vr(vQ1, 2)}, v{vT0}']
    mfma_phase(a, ACC1, 2, w_pieces(3, 3) + w_pieces(4, 0), first=0, last=30, extra=tmp.lines, pre=pre)
    q.add('W3', 8); q.add('W4', 8)
    G.stamp(a, '@x3')
    q.wait('W3')
    G.stamp(a, '@x4')
    a('s_barrier')
    G.stamp(a, 'p1'); G.stamp(a, '@kp1'); G.stamp(a, '@x5')
    epilogue(a, ACC0, 0); q.add('st')
    epilogue(a, ACC1, 2); q.add('st')
    q.wait('W4')
    a('s_barrier')
    G.stamp(a, 'p2'); G.stamp(a, '@kp2')
    mfma_phase(a, ACC0, 0, wd_pieces(0) + wd_pieces(1) + wd_pieces(2)); q.add('wd', 12)
    q.wait('st')
    a('s_barrier')
    G.stamp(a, 'p3'); G.stamp(a, '@kp3')
    La = a.newlabel('L_arr3a')
    a(f's_cmp_eq_u32 {sWave}, 0')
    a(f's_cbranch_scc0 {La}')
    a(f's_lshl_b32 {T[1]}, {sTB}, 8')
    a(f's_add_u32 {T[1]}, {T[1]}, {CNT3A}')
    arrive(a, T[1], f'v{vT0}', f'v{vT1}')
    a.label(La)
    epilogue(a, ACC0, 4); q.add('st')
    p4_setup(a)
    a('s_barrier')
    G.stamp(a, 'p4'); G.stamp(a, '@kp4')
    mfma_phase(a, ACC0, 2, wd_pieces(5) + wd_pieces(6)); q.add('wd', 8)
    q.wait('st')
    a('s_barrier')
    G.stamp(a, 'p5'); G.stamp(a, '@kp5')
    epilogue(a, ACC0, 6)
    load_g1(a)
    a(f's_branch {LJ}')
    a.label(LB)
    phase0(1)
    q = Q(a)
    finish_stats()
    epilogue(a, ACC0, 1); q.add('st')
    a('s_barrier')
    mfma_phase(a, ACC0, 3, w_pieces(5, 1) + w_pieces(6, 2)); q.add('W5', 8); q.add('W6', 8)
    a('s_barrier')
    epilogue(a, ACC0, 3); q.add('st')
    p4_setup(a)
    q.wait('W5')
    a('s_barrier')
    mfma_phase(a, ACC0, 1, wd_pieces(3) + wd_pieces(4)); q.add('wd', 8)
    q.wait('W6')
    a('s_barrier')
    L7a = a.newlabel('L_p7a')
    L7b = a.newlabel('L_p7b')
    a(f's_lshr_b32 {T[5]}, {sT64}, 1')
    a(f's_lshl_b32 {T[5]}, {T[5]}, 8')
    a(f's_add_u32 {T[5]}, {T[5]}, {CNT3A}')
    a(f's_cmp_eq_u32 {sWave}, 7')
    a(f's_cbranch_scc0 {L7a}')
    a(f'v_mov_b32 v{TMP + 14}, 0')
    a(f'buffer_load_dword v{TMP + 15}, v{TMP + 14}, {SWS}, {T[5]} offen sc1')
    a.label(L7a)
    epilogue(a, ACC0, 5)
    a(f's_cmp_eq_u32 {sWave}, 7')
    a(f's_cbranch_scc0 {L7b}')
    a('s_waitcnt vmcnt(1)')
    a(f'v_cmp_gt_u32 vcc, 16, v{TMP + 15}')
    a(f's_cbranch_vccz {L7b}')
    poll_ge(a, T[5], 1, 256, 16, f'v{TMP + 15}', f'v{TMP + 14}', 'b3a')
    a.label(L7b)
    a('s_waitcnt vmcnt(9)')
    a('s_barrier')
    Lb = a.newlabel('L_arr3b')
    a(f's_cmp_eq_u32 {sWave}, 4')
    a(f's_cbranch_scc0 {Lb}')
    a(f's_lshl_b32 {T[1]}, {sTB}, 8')
    a(f's_add_u32 {T[1]}, {T[1]}, {CNT3B}')
    arrive(a, T[1], f'v{vT0}', f'v{vT1}')
    a.label(Lb)
    load_g1(a)
    a.label(LJ)
    G.stamp(a, 'P3end'); G.stamp(a, '@kP3end')
    a('s_waitcnt vmcnt(12)')
    a('s_barrier')
    G.stamp(a, 'drain3')
    Lb3 = a.newlabel('L_b3')
    a(f's_cmp_eq_u32 {sWave}, 0')
    a(f's_cbranch_scc0 {Lb3}')
    a(f's_lshl_b32 {T[1]}, {sTB}, 8')
    a(f's_add_u32 {T[1]}, {T[1]}, {CNT3}')
    arrive(a, T[1], f'v{vT0}', f'v{vT1}')
    a.label(Lb3)


G1R, G2R = 128, 176
vL, vAA, vAA1 = 7, 2, 11


def g_load(a, nn):
    reg = G1R + 4 * nn
    a(f's_add_u32 {T[0]}, {sG}, {kconst(nn) * 1024}')
    a(f'buffer_load_dwordx4 {vr(reg, 4)}, v{vL}, {SWS}, {T[0]} offen')


def load_g1(a):
    for nn in range(12):
        g_load(a, nn)


def p4_setup(a):
    vT, vT2 = 14, 15
    a(f's_and_b32 {sTT}, {sWave}, 1')
    a(f's_lshr_b32 {sKQ}, {sWave}, 1')
    a(f's_mul_i32 {sD8}, {sKQ}, {7 * 16 * 1024}')
    a(f's_lshl_b32 {sG}, {sT64}, 1')
    a(f's_add_u32 {sG}, {sG}, {sTT}')
    a(f's_mul_i32 {sG}, {sG}, 112')
    a(f's_mul_i32 {T[0]}, {sKQ}, 7')
    a(f's_add_u32 {sG}, {sG}, {T[0]}')
    a(f's_lshl_b32 {sG}, {sG}, 10')
    a(f's_add_u32 {sG}, {sG}, {GG}')
    a(f'v_and_b32 v{vT}, 15, v0')
    a(f'v_lshrrev_b32 v{vT}, 2, v{vT}')
    a(f'v_lshrrev_b32 v{vT2}, 5, v0')
    a(f'v_lshl_add_u32 v{vT2}, v{vT2}, 3, v{vT}')
    a(f's_lshl_b32 {T[0]}, {sKQ}, 5')
    a(f'v_add_u32 v{vT2}, {T[0]}, v{vT2}')
    a(f'v_lshlrev_b32 v{vAA}, 7, v{vT2}')
    a(f'v_bfe_u32 v{vT}, v{vT}, 1, 1')
    a(f'v_lshlrev_b32 v{vT}, 2, v{vT}')
    a(f'v_bfe_u32 v{vT2}, v0, 4, 1')
    a(f'v_lshlrev_b32 v{vT2}, 1, v{vT2}')
    a(f'v_bfe_u32 v8, v0, 1, 1')
    a(f'v_add_u32 v{vT2}, v{vT2}, v8')
    a(f'v_xor_b32 v9, v{vT2}, v{vT}')
    a(f'v_or_b32 v{vT2}, 4, v{vT2}')
    a(f'v_xor_b32 v10, v{vT2}, v{vT}')
    a(f'v_and_b32 v8, 1, v0')
    a(f'v_lshlrev_b32 v8, 3, v8')
    a(f'v_add_u32 v{vAA}, v{vAA}, v8')
    a(f'v_lshl_add_u32 v{vAA1}, v10, 4, v{vAA}')
    a(f'v_lshl_add_u32 v{vAA}, v9, 4, v{vAA}')
    a(f'v_lshrrev_b32 v{vT}, 3, v0')
    a(f'v_and_b32 v{vT2}, 7, v0')
    a(f'v_lshlrev_b32 v{vT2}, 4, v{vT2}')
    a(f'v_lshl_add_u32 v13, v{vT}, 12, v{vT2}')


def p4(a, dbg):
    a.comment('================ P4: down GEMM + residual')
    vT, vT2 = 14, 15
    ACCa, ACCb = 16, 32
    AF = 48
    NC = 14
    q = Q(a)
    for nn in range(12):
        q.add(('g', nn))
    dma_wd8(a, 7); dma_wd8(a, 8); q.add('wd78', 4)
    a(f's_lshl_b32 {T[0]}, {sDB}, 6')
    a(f's_lshl_b32 {T[1]}, {sWave}, 3')
    a(f's_add_u32 {T[0]}, {T[0]}, {T[1]}')
    a(f's_lshl_b32 {T[0]}, {T[0]}, 12')
    a(f's_lshl_b32 {T[1]}, {sT64}, 7')
    a(f's_add_u32 {T[0]}, {T[0]}, {T[1]}')
    a(f's_add_u32 {T[0]}, {T[0]}, {HT}')
    a(f's_lshl_b32 {T[1]}, {sWave}, 10')
    a(f's_add_u32 m0, {T[1]}, {RESID}')
    a('s_nop 0')
    a(f'buffer_load_dwordx4 v13, {SWS}, {T[0]} offen lds')
    q.add('res')
    G.stamp(a, 'P4start')

    def early_look(wv, cnt):
        L = a.newlabel('L_look')
        a(f's_cmp_eq_u32 {sWave}, {wv}')
        a(f's_cbranch_scc0 {L}')
        a(f's_lshr_b32 {T[5]}, {sT64}, 1')
        a(f's_lshl_b32 {T[5]}, {T[5]}, 8')
        a(f's_add_u32 {T[5]}, {T[5]}, {cnt}')
        a('v_mov_b32 v80, 0')
        a(f'buffer_load_dword v81, v80, {SWS}, {T[5]} offen sc1')
        a.label(L)
    early_look(7, CNT3B)
    g2_next = 12
    AFS = [48, 64]

    def a_reads(c):
        slot = c % NWD
        af = AFS[c & 1]
        a(f'v_add_u32 v12, {slot * WDSLOT}, v{vAA}')
        a(f'v_add_u32 v13, {slot * WDSLOT}, v{vAA1}')
        out = []
        for i in range(2):
            for dt, va in ((0, 12), (1, 13)):
                for rd in range(2):
                    off = i * 16 * 128 + rd * 4 * 128
                    out.append(f'ds_read_b64_tr_b16 {vr(af + 8 * i + 4 * dt + 2 * rd, 2)}, v{va} offset:{off}')
        return out
    for x in a_reads(0):
        a(x)
    for c in range(NC):
        if c in (2, 6):
            wv, cnt = (7, CNT3B) if c == 2 else (6, CNT3)
            if c == 6:
                q.wait('wd78')
            L7 = a.newlabel('L_p4poll')
            a(f's_cmp_eq_u32 {sWave}, {wv}')
            a(f's_cbranch_scc0 {L7}')
            a('s_waitcnt vmcnt(0)')
            a('v_cmp_gt_u32 vcc, 16, v81')
            a(f's_cbranch_vccz {L7}')
            a(f's_lshr_b32 {T[5]}, {sT64}, 1')
            a(f's_lshl_b32 {T[5]}, {T[5]}, 8')
            a(f's_add_u32 {T[5]}, {T[5]}, {cnt}')
            poll_ge(a, T[5], 1, 256, 16, 'v82', 'v83', 'b3')
            a.label(L7)
            a('s_barrier')
            G.stamp(a, 'f3b' if c == 2 else 'f3')
        if c == 8:
            q.wait('wdr1')
            a('s_barrier')
        if c == 10:
            q.wait('wdr2')
            a('s_barrier')
        tag = ('g', 2 * c + 1)
        if q.has(tag):
            q.wait(tag)
        if c == 0:
            G.stamp(a, 'g0')
        nxt = a_reads(c + 1) if c + 1 < NC else []
        af = AFS[c & 1]
        a('s_waitcnt lgkmcnt(0)')
        fill = list(nxt)
        post = []
        mf = []
        for i in range(2):
            b = G1R + 4 * (2 * c + i)
            cA = '0' if (c == 0 and i == 0) else vr(ACCa, 16)
            cB = '0' if (c == 0 and i == 0) else vr(ACCb, 16)
            mf.append(f'v_mfma_f32_32x32x16_bf16 {vr(ACCa, 16)}, {vr(af + 8 * i, 4)}, {vr(b, 4)}, {cA}')
            mf.append(f'v_mfma_f32_32x32x16_bf16 {vr(ACCb, 16)}, {vr(af + 8 * i + 4, 4)}, {vr(b, 4)}, {cB}')
        a(mf[0])
        for x in fill[:4]:
            a(x)
        a(mf[1])
        for x in fill[4:]:
            a(x)
        a(mf[2])
        ng = {2: 3, 3: 3, 4: 2, 6: 4, 7: 4}.get(c, 0)
        for k_ in range(ng):
            if k_ == (ng + 1) // 2:
                a(mf[3]); mf[3] = None
            g_load(a, g2_next); q.add(('g', g2_next)); g2_next += 1
        if mf[3] is not None:
            a(mf[3])
        if c == 4:
            early_look(6, CNT3)
        if c == 3:
            for c2 in (9, 10):
                dma_wd8(a, c2)
                q.add('wdr1', 2)
        if c == 7:
            for c2 in (11, 12, 13):
                dma_wd8(a, c2)
                q.add('wdr2', 2)
    assert g2_next == 28
    G.stamp(a, 'P4loop'); G.stamp(a, '@kP4loop')
    a('s_barrier')
    a(f's_lshl_b32 {T[0]}, {sTT}, 2')
    a(f's_add_u32 {T[0]}, {T[0]}, {sKQ}')
    a(f's_lshl_b32 {T[0]}, {T[0]}, 13')
    a(f's_add_u32 {T[0]}, {T[0]}, {RED}')
    a(f'v_add_u32 v{vT}, {T[0]}, v{vL}')
    for u in range(4):
        for hb in range(2):
            a(f'ds_write_b128 v{vT}, {vr(ACCa + 8 * u + 4 * hb, 4)} offset:{u * 2048 + hb * 1024}')
    a(f'v_and_b32 v{vT2}, 15, v0')
    a(f'v_lshrrev_b32 v8, 2, v{vT2}')
    a(f'v_lshrrev_b32 v9, 5, v0')
    a(f'v_lshl_add_u32 v8, v9, 2, v8')
    a(f's_lshl_b32 {T[0]}, {sKQ}, 4')
    a(f'v_add_u32 v8, {T[0]}, v8')
    a(f'v_lshlrev_b32 v8, 7, v8')
    a(f'v_bfe_u32 v9, v0, 4, 1')
    a(f'v_lshlrev_b32 v9, 5, v9')
    a(f'v_add_u32 v8, v8, v9')
    a(f'v_and_b32 v9, 3, v0')
    a(f'v_lshl_add_u32 v8, v9, 3, v8')
    a(f's_lshl_b32 {T[0]}, {sTT}, 6')
    a(f's_add_u32 {T[0]}, {T[0]}, {RESID}')
    a(f'v_add_u32 v8, {T[0]}, v8')
    srd(a, SB, P_OUT, 2048 * 1024)
    a(f'v_and_b32 v9, 31, v0')
    a(f'v_lshlrev_b32 v9, 10, v9')
    a(f'v_lshrrev_b32 v10, 5, v0')
    a(f'v_lshl_add_u32 v9, v10, 4, v9')
    a(f's_lshl_b32 {T[2]}, {sT64}, 1')
    a(f's_add_u32 {T[2]}, {T[2]}, {sTT}')
    a(f's_lshl_b32 {T[2]}, {T[2]}, 15')
    a(f's_lshl_b32 {T[1]}, {sDB}, 7')
    a(f's_add_u32 {T[2]}, {T[2]}, {T[1]}')
    a(f's_lshl_b32 {T[1]}, {sKQ}, 5')
    a(f's_add_u32 {T[2]}, {T[2]}, {T[1]}')
    a(f's_lshl_b32 {T[0]}, {sTT}, 15')
    a(f's_lshl_b32 {T[1]}, {sKQ}, 11')
    a(f's_add_u32 {T[0]}, {T[0]}, {T[1]}')
    a(f's_add_u32 {T[0]}, {T[0]}, {RED}')
    a(f'v_add_u32 v{vT}, {T[0]}, v{vL}')
    a('s_waitcnt lgkmcnt(0)')
    a('s_barrier')
    R = 64
    for src in range(4):
        for hb in range(2):
            a(f'ds_read_b128 {vr(R + 8 * src + 4 * hb, 4)}, v{vT} offset:{src * 8192 + hb * 1024}')
    RS = 100
    a(f'ds_read_b64_tr_b16 {vr(RS, 2)}, v8')
    a(f'ds_read_b64_tr_b16 {vr(RS + 2, 2)}, v8 offset:1024')
    a('s_waitcnt lgkmcnt(0)')
    for i in range(8):
        a(f'v_add_f32 v{R + i}, v{R + i}, v{R + 8 + i}')
        a(f'v_add_f32 v{R + 16 + i}, v{R + 16 + i}, v{R + 24 + i}')
    for i in range(4):
        a(f'v_lshlrev_b32 v{R + 8 + 2 * i}, 16, v{RS + i}')
        a(f'v_and_b32 v{R + 9 + 2 * i}, 0xffff0000, v{RS + i}')
    for i in range(8):
        a(f'v_add_f32 v{R + i}, v{R + i}, v{R + 16 + i}')
    for i in range(8):
        a(f'v_add_f32 v{R + i}, v{R + i}, v{R + 8 + i}')
    for i in range(4):
        a(f'v_cvt_pk_bf16_f32 v{104 + i}, v{R + 2 * i}, v{R + 2 * i + 1}')
    a(f'v_permlane32_swap_b32 v104, v106')
    a(f'v_permlane32_swap_b32 v105, v107')
    a(f'buffer_store_dwordx4 v[104:107], v9, {SB}, {T[2]} offen')
    G.stamp(a, 'end'); G.stamp(a, '@kend')
```

```python
import sys
from asmlib import Asm

KNAME = 'sequential_preLN__ssm_conv_s4d__geglu_ffn__prompt_kernel'

CNT2, CNT3, CNT3A, CNT3B, CNTW = 0x41000, 0x42000, 0x43000, 0x44000, 0x45000
EPOCH = 0x0000
PREPF = 0x1000
STATS = 0x4000
CSP = 0x8000
HT = 0x100000
WP = 0x300000
GG = 0x700000
DBGK = 0xE00000
WS_SIZE = 0x1000000

LDS_SIZE = 163840
TROW = 544
TAB_E = 19264
TAB_G = TAB_E
TAB_CH = TAB_E + 64 * TROW
KC = 115712
KCS = 4160
STG_G = 149248
STG_U = STG_G + 7168 + 128
UB = 0
UBS = 4608
PART = 9216
XB = 41984
MISC = 163712

HRING = 0
NRING = 6
WSLOT = [50176, 82944, 115712, 0]
CSL = 148992
SXCH = 151552
WDSLOT = 16384
NWD = 9
RESID = 147456
RED = 81920


def eoff(r):
    return 576 * r + 32 * (r >> 2) + 32 * (r >> 4)


assert eoff(32) + 512 == TAB_E and 2 * TAB_CH <= KC and STG_U + 7168 <= MISC

sW, sWave = 's2', 's3'
SWS = 's[4:7]'
SA, SB, SC = 's[8:11]', 's[12:15]', 's[16:19]'
P_X, P_LA, P_AI, P_CR, P_CI, P_LDT, P_D, P_BX, P_WG, P_WU, P_WD, P_OUT, P_DBG, P_WS = [20 + 2 * i for i in range(14)]
sX, sY, sCP, sTB, sFB, sT64, sDB = 's48', 's49', 's50', 's51', 's52', 's53', 's54'
T = [f's{n}' for n in range(55, 80)]
sEX = 's[90:91]'
sLDT, sDSK = 's80', 's81'
sIt = 's82'
sSpin = 's83'
sTAG = 's84'

LOG2E = 0x3fb8aa3b
INV2PI = 0x3e22f983


def v(n):
    return f'v{n}'


def vr(n, c):
    return f'v[{n}:{n + c - 1}]'


def srd(a, dst, ptr, size):
    n = int(dst[2:dst.index(':')])
    a(f's_mov_b32 s{n}, s{ptr}')
    a(f's_mov_b32 s{n + 1}, s{ptr + 1}')
    a(f's_mov_b32 s{n + 2}, {size}')
    a(f's_mov_b32 s{n + 3}, 0x20000')


SPIN_MAX = 30000
CODE_QUARTER = 9216
STAMPS = {'on': False, 'names': []}
STAMP_REGS = [85, 86, 87, 88, 89, 92, 93, 94, 95, 96, 97, 98, 99]


def stamp(a, name):
    if not STAMPS['on']:
        return
    if STAMPS.get('only') and name.lstrip('@') not in STAMPS['only']:
        return
    i = len(STAMPS['names'])
    STAMPS['names'].append(name)
    a('s_memtime s[100:101]' if name.startswith('@') else 's_memrealtime s[100:101]')
    a('s_waitcnt lgkmcnt(0)')
    a(f's_mov_b32 s{STAMP_REGS[i]}, s100')


def stampval(a, name, sreg):
    if not STAMPS['on']:
        return
    if STAMPS.get('only') and name.lstrip('#') not in STAMPS['only']:
        return
    i = len(STAMPS['names'])
    STAMPS['names'].append(name)
    a(f's_mov_b32 s{STAMP_REGS[i]}, {sreg}')


def dump_stamps(a):
    if not STAMPS['on']:
        return
    n = len(STAMPS['names'])
    a('v_mov_b32 v2, 0')
    for i in range(n):
        a(f'v_mov_b32 v3, s{STAMP_REGS[i]}')
        a(f'v_cmp_eq_u32 vcc, {i}, v0')
        a('s_nop 1')
        a('v_cndmask_b32 v2, v2, v3, vcc')
    a(f's_lshl_b32 {T[0]}, {sW}, 3')
    a(f's_add_u32 {T[0]}, {T[0]}, {sWave}')
    a(f's_lshl_b32 {T[0]}, {T[0]}, 6')
    a(f's_add_u32 {T[0]}, {T[0]}, {DBGK}')
    a('v_lshlrev_b32 v3, 2, v0')
    a(f's_mov_b64 {sEX}, exec')
    a('s_mov_b64 exec, 0xffff')
    a(f'buffer_store_dword v2, v3, {SWS}, {T[0]} offen')
    a(f's_mov_b64 exec, {sEX}')


def poll_ge(a, off, nlanes, stride, target, vtmp, vtmp2, name, sleep=1):
    L = a.newlabel('L_poll_' + name)
    Ld = a.newlabel('L_polld_' + name)
    a(f'v_min_u32 {vtmp2}, {nlanes - 1}, v0')
    a(f's_mov_b32 {T[0]}, {stride}')
    a(f'v_mul_lo_u32 {vtmp2}, {vtmp2}, {T[0]}')
    if isinstance(off, int):
        a(f's_mov_b32 {T[1]}, {off}')
    else:
        a(f's_mov_b32 {T[1]}, {off}')
    a(f's_mov_b32 {sSpin}, 0')
    a.label(L)
    a(f'buffer_load_dword {vtmp}, {vtmp2}, {SWS}, {T[1]} offen sc1')
    a(f's_add_u32 {sSpin}, {sSpin}, 1')
    a(f's_waitcnt vmcnt(0)')
    a(f'v_cmp_gt_u32 vcc, {target}, {vtmp}')
    a(f's_cmp_ge_u32 {sSpin}, {SPIN_MAX}')
    a(f's_cbranch_scc1 {Ld}')
    a(f's_cbranch_vccz {Ld}')
    a(f's_sleep {sleep}')
    a(f's_branch {L}')
    a.label(Ld)


def arrive(a, off_sgpr_or_int, vtmp, vtmp2):
    a(f'v_mov_b32 {vtmp}, 1')
    a(f'v_mov_b32 {vtmp2}, 0')
    a(f's_mov_b64 {sEX}, exec')
    a(f's_mov_b64 exec, 1')
    a(f'buffer_atomic_add {vtmp}, {vtmp2}, {SWS}, {off_sgpr_or_int} offen')
    a(f's_mov_b64 exec, {sEX}')


def entry(a):
    a(f's_cmp_ge_u32 s2, 256')
    a(f's_cbranch_scc1 L_end')
    a('s_load_dwordx16 s[20:35], s[0:1], 0')
    a('s_load_dwordx8 s[36:43], s[0:1], 64')
    a('s_load_dwordx4 s[44:47], s[0:1], 96')
    a('v_lshrrev_b32 v2, 6, v0')
    a('v_mov_b32 v1, v0')
    a('v_and_b32 v0, 63, v0')
    a(f'v_readfirstlane_b32 {sWave}, v2')
    a(f's_and_b32 {sX}, s2, 7')
    a(f's_lshr_b32 {sY}, s2, 3')
    a(f's_lshl_b32 {sCP}, {sX}, 5')
    a(f's_add_u32 {sCP}, {sCP}, {sY}')
    a(f's_and_b32 {T[0]}, {sX}, 3')
    a(f's_lshl_b32 {T[0]}, {T[0]}, 2')
    a(f's_and_b32 {T[1]}, {sY}, 3')
    a(f's_add_u32 {sTB}, {T[0]}, {T[1]}')
    a(f's_lshr_b32 {T[0]}, {sX}, 2')
    a(f's_lshl_b32 {T[0]}, {T[0]}, 3')
    a(f's_lshr_b32 {sDB}, {sY}, 2')
    a(f's_add_u32 {sFB}, {T[0]}, {sDB}')
    a(f's_lshl_b32 {T[0]}, {sX}, 2')
    a(f's_add_u32 {sT64}, {T[0]}, {T[1]}')
    a('s_waitcnt lgkmcnt(0)')
    srd(a, SWS, P_WS, WS_SIZE)
    stamp(a, 'entry')
    stamp(a, '@c0')


PAIRC = MISC + 64


def p12(a, dbg):
    LU = a.newlabel('L_Upath')
    LS2 = a.newlabel('L_S2')
    a(f's_lshl_b32 {T[0]}, {sCP}, 2')
    a(f's_load_dword {sLDT}, s[{P_LDT}:{P_LDT + 1}], {T[0]}')
    a(f's_load_dword {sDSK}, s[{P_D}:{P_D + 1}], {T[0]}')
    a(f's_load_dword {sTAG}, s[{P_WS}:{P_WS + 1}], {EPOCH}')
    a(f's_cmp_ge_u32 {sWave}, 4')
    a(f's_cbranch_scc1 {LU}')
    kpath(a, dbg)
    a(f's_branch {LS2}')
    a.label(LU)
    upath(a, dbg)
    a.label(LS2)
    a('s_waitcnt lgkmcnt(0)')
    a('s_barrier')
    stamp(a, 'S3')
    p12_rest(a, dbg)


def kpath(a, dbg):
    XR = [4, 8]
    PR = 12
    t0, t1, t2, t3, t4 = 16, 17, 18, 19, 20
    Lnz = a.newlabel('L_nozero')
    a(f's_or_b32 {T[1]}, {sW}, {sWave}')
    a(f's_cmp_eq_u32 {T[1]}, 0')
    a(f's_cbranch_scc0 {Lnz}')
    a(f'v_lshlrev_b32 v{t0}, 8, v0')
    a(f'v_mov_b32 v{t1}, 0')
    a(f's_mov_b32 {T[1]}, {CNT2}')
    a(f'buffer_store_dword v{t1}, v{t0}, {SWS}, {T[1]} offen sc1')
    a(f'v_and_b32 v{t0}, 15, v0')
    a(f'v_lshlrev_b32 v{t0}, 8, v{t0}')
    a(f's_mov_b32 {T[1]}, {CNTW}')
    a(f'buffer_store_dword v{t1}, v{t0}, {SWS}, {T[1]} offen sc1')
    a.label(Lnz)
    srd(a, SA, P_X, 2048 * 1024)
    a(f's_lshl_b32 {T[1]}, {sW}, 2')
    a(f's_add_u32 {T[1]}, {T[1]}, {sWave}')
    a(f's_lshl_b32 {T[1]}, {T[1]}, 11')
    a(f'v_lshlrev_b32 v{t0}, 4, v0')
    a(f'buffer_load_dwordx4 {vr(XR[0], 4)}, v{t0}, {SA}, {T[1]} offen')
    a(f'buffer_load_dwordx4 {vr(XR[1], 4)}, v{t0}, {SA}, {T[1]} offen offset:1024')
    a(f's_lshr_b32 {T[2]}, {sWave}, 1')
    a(f's_lshl_b32 {T[3]}, {sCP}, 1')
    a(f's_add_u32 {T[3]}, {T[3]}, {T[2]}')
    a(f's_lshl_b32 {T[3]}, {T[3]}, 8')
    a(f's_and_b32 {T[4]}, {sWave}, 1')
    a(f's_lshl_b32 {T[4]}, {T[4]}, 7')
    a(f's_add_u32 {T[3]}, {T[3]}, {T[4]}')
    a(f'v_lshlrev_b32 v{t1}, 1, v0')
    for i, p in enumerate((P_LA, P_AI, P_CR, P_CI)):
        srd(a, SB, p, 512 * 128 * 2)
        a(f'buffer_load_ushort v{PR + i}, v{t1}, {SB}, {T[3]} offen')
    a(f'v_mov_b32 v{t2}, {PAIRC}')
    a(f'v_mov_b32 v{t3}, 0')
    a(f'v_mov_b32 v{t4}, 0')
    for o in (0, 4, 8, 12, 16, 20, 24, 28, 32):
        a(f'ds_write_b32 v{t2}, v{t3} offset:{o}')
    a('s_waitcnt lgkmcnt(0)')
    a('s_barrier')
    a(f's_and_b32 {T[19]}, {sW}, 15')
    a(f's_mul_i32 {T[19]}, {T[19]}, {32 * 3584}')
    a(f's_lshr_b32 {T[17]}, {sW}, 4')
    a(f's_mul_i32 {T[17]}, {T[17]}, 224')
    a(f's_add_u32 {T[19]}, {T[19]}, {T[17]}')
    Lq2 = a.newlabel('L_q2')
    for qq in range(2):
        if qq == 1:
            a(f's_cmp_eq_u32 {sWave}, 3')
            a(f's_cbranch_scc1 {Lq2}')
        a(f's_lshl_b32 {T[16]}, {sWave}, 6')
        if qq:
            a(f's_add_u32 {T[16]}, {T[16]}, 256')
        a(f'v_add_u32 v30, {T[16]}, v0')
        a(f's_mov_b32 {T[18]}, 4682')
        a(f'v_mul_lo_u32 v31, v30, {T[18]}')
        a(f'v_lshrrev_b32 v31, 16, v31')
        a(f'v_mul_u32_u24 v32, 14, v31')
        a(f'v_sub_u32 v32, v30, v32')
        a(f's_mov_b32 {T[18]}, 3584')
        a(f'v_mul_lo_u32 v31, v31, {T[18]}')
        a(f'v_lshl_add_u32 v31, v32, 4, v31')
        a(f's_lshl_b32 {T[17]}, {T[16]}, 4')
        srd(a, SB, P_WG, 512 * 3584)
        a(f's_add_u32 m0, {T[17]}, {STG_G}')
        a('s_nop 0')
        a(f'buffer_load_dwordx4 v31, {SB}, {T[19]} offen lds')
        srd(a, SB, P_WU, 512 * 3584)
        a(f's_add_u32 m0, {T[17]}, {STG_U}')
        a('s_nop 0')
        a(f'buffer_load_dwordx4 v31, {SB}, {T[19]} offen lds')
    a.label(Lq2)

    a(f's_mul_i32 {sTAG}, {sTAG}, 1664525')
    a(f's_add_u32 {sTAG}, {sTAG}, 1013904223')
    Lw_ = a.newlabel('L_w3')
    Lwd_ = a.newlabel('L_w3d')
    a(f's_cmp_eq_u32 {sWave}, 3')
    a(f's_cbranch_scc1 {Lw_}')
    a('s_waitcnt vmcnt(8)')
    a(f's_branch {Lwd_}')
    a.label(Lw_)
    a('s_waitcnt vmcnt(6)')
    a.label(Lwd_)
    stamp(a, 'xrow')
    S, Q, ONE = [16, 18], [17, 19], 20
    a(f'v_mov_b32 v{ONE}, 0x3f803f80')
    for r in range(2):
        a(f'v_mov_b32 v{S[r]}, 0')
        a(f'v_mov_b32 v{Q[r]}, 0')
    for i in range(4):
        for r in range(2):
            a(f'v_dot2_f32_bf16 v{S[r]}, v{XR[r] + i}, v{ONE}, v{S[r]}')
            a(f'v_dot2_f32_bf16 v{Q[r]}, v{XR[r] + i}, v{XR[r] + i}, v{Q[r]}')
    for m in ('row_shr:1 row_mask:0xf', 'row_shr:2 row_mask:0xf', 'row_shr:4 row_mask:0xf', 'row_shr:8 row_mask:0xf',
              'row_bcast:15 row_mask:0xa', 'row_bcast:31 row_mask:0xc'):
        for r in range(2):
            a(f'v_add_f32_dpp v{S[r]}, v{S[r]}, v{S[r]} {m} bank_mask:0xf')
            a(f'v_add_f32_dpp v{Q[r]}, v{Q[r]}, v{Q[r]} {m} bank_mask:0xf')
    ln_finish2(a, S, Q, [21, 22])
    GRN = 24
    a(f'v_cvt_pk_bf16_f32 v{GRN}, v{S[0]}, v{Q[0]}')
    a(f'v_cvt_pk_bf16_f32 v{GRN + 2}, v{S[1]}, v{Q[1]}')
    a(f'v_mov_b32 v{GRN + 1}, {sTAG}')
    a(f'v_mov_b32 v{GRN + 3}, {sTAG}')
    a(f's_lshl_b32 {T[1]}, {sW}, 2')
    a(f's_add_u32 {T[1]}, {T[1]}, {sWave}')
    a(f's_lshl_b32 {T[1]}, {T[1]}, 4')
    a(f's_add_u32 {T[1]}, {T[1]}, {STATS}')
    a(f'v_mov_b32 v21, 0')
    a(f's_mov_b64 {sEX}, exec')
    a(f's_mov_b32 exec_lo, 0')
    a(f's_mov_b32 exec_hi, 0x80000000')
    a(f'buffer_store_dwordx4 {vr(GRN, 4)}, v21, {SWS}, {T[1]} offen sc1')
    a(f's_mov_b64 exec, {sEX}')
    a(f'v_mov_b32 v30, {PAIRC + 12}')
    a('v_mov_b32 v31, 1')
    a(f's_mov_b64 {sEX}, exec')
    a('s_mov_b64 exec, 1')
    a('ds_add_u32 v30, v31')
    a(f's_mov_b64 exec, {sEX}')
    stamp(a, 'pub')
    Lw_ = a.newlabel('L_w3')
    Lwd_ = a.newlabel('L_w3d')
    a(f's_cmp_eq_u32 {sWave}, 3')
    a(f's_cbranch_scc1 {Lw_}')
    a('s_waitcnt vmcnt(5)')
    a(f's_branch {Lwd_}')
    a.label(Lw_)
    a('s_waitcnt vmcnt(3)')
    a.label(Lwd_)
    stamp(a, 'par')

    LAR, AIM, CR, CI = PR, PR + 1, PR + 2, PR + 3
    DT, AL, TH = 16, 17, 18
    for i in range(4):
        a(f'v_lshlrev_b32 v{PR + i}, 16, v{PR + i}')
    a(f's_lshl_b32 {T[3]}, {sLDT}, 16')
    a(f's_and_b32 {T[4]}, {sLDT}, 0xffff0000')
    a(f's_cmp_eq_u32 {T[2]}, 0')
    a(f's_cselect_b32 {T[3]}, {T[3]}, {T[4]}')
    a(f'v_mov_b32 v{DT}, {LOG2E}')
    a(f'v_mul_f32 v{LAR}, v{LAR}, v{DT}')
    a(f'v_mul_f32 v{DT}, {T[3]}, v{DT}')
    a(f'v_exp_f32 v{LAR}, v{LAR}')
    a(f'v_exp_f32 v{DT}, v{DT}')
    a(f'v_cvt_pk_bf16_f32 v{19}, v{LAR}, v{DT}')
    a(f'v_lshlrev_b32 v{LAR}, 16, v19')
    a(f'v_and_b32 v{DT}, 0xffff0000, v19')
    a(f'v_mul_f32 v{AL}, v{LAR}, v{DT}')
    a(f'v_mul_f32 v{TH}, v{AIM}, v{DT}')
    a(f'v_mul_f32 v{AL}, {hex(LOG2E | 0x80000000)}, v{AL}')
    a(f'v_mul_f32 v{TH}, {hex(INV2PI)}, v{TH}')
    a(f'v_add_f32 v{DT}, v{DT}, v{DT}')
    a(f'v_mul_f32 v{CR}, v{CR}, v{DT}')
    a(f'v_mul_f32 v{CI}, v{CI}, v{DT}')
    WG, WGN, WE, WEN = 20, 22, 24, 26
    ZG0, ZG1 = [28, 30], [32, 34]
    ZE0, ZE1 = [36, 38], [40, 42]
    MM = [44, 45, 46, 47]
    AA = [48, 49, 50, 51]
    spec = [(WG, '0x42000000', True), (WE, '1.0', False), (ZE1[0], '0x41800000', False), (ZG1[1], '0x44800000', True)]
    for k, (d, p, neg) in enumerate(spec):
        a(f'v_mul_f32 v{MM[k]}, {p}, v{AL}')
        a(f'v_mul_f32 v{AA[k]}, {p}, v{TH}')
    for k, (d, p, neg) in enumerate(spec):
        a(f'v_exp_f32 v{MM[k]}, v{MM[k]}')
        a(f'v_fract_f32 v{AA[k]}, v{AA[k]}')
    for k, (d, p, neg) in enumerate(spec):
        a(f'v_cos_f32 v{d}, v{AA[k]}')
        a(f'v_sin_f32 v{d + 1}, v{AA[k]}')
    for k, (d, p, neg) in enumerate(spec):
        a(f'v_mul_f32 v{d}, v{d}, v{MM[k]}')
        if neg:
            a(f'v_mul_f32_e64 v{d + 1}, -v{d + 1}, v{MM[k]}')
        else:
            a(f'v_mul_f32 v{d + 1}, v{d + 1}, v{MM[k]}')
    for (w, wn) in ((WG, WGN), (WE, WEN)):
        a(f'v_sub_f32 v{wn}, 0, v{w + 1}')
        a(f'v_mov_b32 v{wn + 1}, v{w}')
    a(f'v_mul_f32 v{ZG1[0]}, v{CR}, v{ZG1[1]}')
    a(f'v_mul_f32 v{ZG1[0] + 1}, v{CR}, v{ZG1[1] + 1}')
    a(f'v_fmac_f32 v{ZG1[0]}, v{CI}, v{ZG1[1] + 1}')
    a(f'v_fma_f32 v{ZG1[0] + 1}, -v{CI}, v{ZG1[1]}, v{ZG1[0] + 1}')
    a(f'v_mov_b32 v{ZG0[0]}, v{CR}')
    a(f'v_sub_f32 v{ZG0[0] + 1}, 0, v{CI}')
    a(f'v_mov_b32 v{ZE0[0]}, 1.0')
    a(f'v_mov_b32 v{ZE0[0] + 1}, 0')
    AE, AG = 52, 53
    a(f's_mul_i32 {T[8]}, {T[2]}, {TAB_CH}')
    a(f's_and_b32 {T[9]}, {sWave}, 1')
    a(f's_lshl_b32 {T[9]}, {T[9]}, 8')
    a(f's_add_u32 {T[9]}, {T[8]}, {T[9]}')
    PK = [54, 55, 56, 57]
    TM = [58, 60, 62, 64]

    def cs_a(z, wn, k):
        return [f'v_pk_mul_f32 {vr(TM[k], 2)}, {vr(z, 2)}, {vr(wn, 2)} op_sel:[1,0] op_sel_hi:[1,1]',
                f'v_cvt_pk_bf16_f32 v{PK[k]}, v{z}, v{z + 1}']

    def cs_b(z, zn, w, off, k):
        return [f'v_pk_fma_f32 {vr(zn, 2)}, {vr(z, 2)}, {vr(w, 2)}, {vr(TM[k], 2)} op_sel:[0,0,0] op_sel_hi:[0,1,1]',
                f'ds_write_addtid_b32 v{PK[k]} offset:{off}']
    a(f's_mov_b32 m0, {T[9]}')
    for it in range(4):
        for i in range(8):
            ga = TAB_G + (8 * it + i) * TROW
            chains = [(ZG0[i & 1], ZG0[(i + 1) & 1], WG, WGN, ga),
                      (ZG1[i & 1], ZG1[(i + 1) & 1], WG, WGN, ga + 32 * TROW)]
            e = i >> 1
            if i & 1 == 0:
                chains.append((ZE0[e & 1], ZE0[(e + 1) & 1], WE, WEN, eoff(4 * it + e)))
            else:
                chains.append((ZE1[e & 1], ZE1[(e + 1) & 1], WE, WEN, eoff(16 + 4 * it + e)))
            pa = [cs_a(z, wn, k) for k, (z, zn, w, wn, off) in enumerate(chains)]
            pb = [cs_b(z, zn, w, off, k) for k, (z, zn, w, wn, off) in enumerate(chains)]
            for grp in (pa, pb):
                for n_ in range(2):
                    for c_ in grp:
                        a(c_[n_])
    a(f'v_cvt_pk_bf16_f32 v{PK[0]}, v{ZE1[0]}, v{ZE1[0] + 1}')
    a(f'ds_write_addtid_b32 v{PK[0]} offset:{eoff(32)}')
    stamp(a, 'tabdone')
    a('s_waitcnt vmcnt(1)')
    a(f's_lshl_b32 {T[9]}, {T[2]}, 2')
    a(f's_add_u32 {T[9]}, {T[9]}, {PAIRC}')
    a(f'v_mov_b32 v16, {T[9]}')
    a(f'v_mov_b32 v17, 1')
    a('s_waitcnt lgkmcnt(0)')
    a(f's_mov_b64 {sEX}, exec')
    a('s_mov_b64 exec, 1')
    a('ds_add_u32 v16, v17')
    a(f's_mov_b64 exec, {sEX}')
    Lsp = a.newlabel('L_pair')
    Lspd = a.newlabel('L_paird')
    a(f's_mov_b32 {sSpin}, 0')
    a.label(Lsp)
    a('ds_read_b32 v17, v16')
    a(f's_add_u32 {sSpin}, {sSpin}, 1')
    a('s_waitcnt lgkmcnt(0)')
    a('v_cmp_gt_u32 vcc, 2, v17')
    a(f's_cmp_ge_u32 {sSpin}, {SPIN_MAX * 8}')
    a(f's_cbranch_scc1 {Lspd}')
    a(f's_cbranch_vccnz {Lsp}')
    a.label(Lspd)
    stamp(a, 'S1')

    AL15, GG_ = 16, 17
    a(f'v_and_b32 v{AL15}, 15, v0')
    a(f'v_lshrrev_b32 v{GG_}, 4, v0')
    BG = 18
    a(f'v_mul_u32_u24 v{BG}, {TROW}, v{AL15}')
    a(f'v_lshl_add_u32 v{BG}, v{GG_}, 4, v{BG}')
    a(f's_add_u32 {T[9]}, {T[8]}, {TAB_G}')
    a(f'v_add_u32 v{BG}, {T[9]}, v{BG}')
    KA = 19
    a(f's_mul_i32 {T[9]}, {T[2]}, {4 * KCS}')
    a(f's_add_u32 {T[9]}, {T[9]}, {KC + 4088 - 32}')
    a(f'v_lshlrev_b32 v{KA}, 6, v{AL15}')
    a(f'v_lshl_add_u32 v{KA}, v{GG_}, 3, v{KA}')
    a(f'v_sub_u32 v{KA}, {T[9]}, v{KA}')
    GF = [32, 64]
    EF0, EF1 = 96, 128
    ACC = 160
    EA0, EA1 = 20, 21

    def rho_addr(j):
        base = 128 << j
        seq = []
        for rt, dst in enumerate((EA0, EA1)):
            tmp = 22 + rt
            seq.append([
                f'v_add_u32 v{dst}, {base + 16 * rt}, v{AL15}',
                f'v_cvt_f32_u32 v{dst}, v{dst}',
                f'v_cvt_pk_bf16_f32 v{dst}, v{dst}, v{dst}',
                f'v_lshlrev_b32 v{dst}, 16, v{dst}',
                f'v_cvt_u32_f32 v{dst}, v{dst}',
                f'v_subrev_u32 v{dst}, {base}, v{dst}',
                f'v_lshrrev_b32 v{tmp}, 2, v{dst}',
                f'v_lshrrev_b32 v{tmp + 2}, 4, v{dst}',
                f'v_mul_u32_u24 v{dst}, 576, v{dst}',
                f'v_add_u32 v{tmp}, v{tmp}, v{tmp + 2}',
                f'v_lshl_add_u32 v{dst}, v{tmp}, 5, v{dst}',
                f'v_lshl_add_u32 v{dst}, v{GG_}, 4, v{dst}',
                f'v_add_u32 v{dst}, {T[8]}, v{dst}'])
        for x, y in zip(*seq):
            a(x)
            a(y)

    def load_g(slot, vv):
        for s in range(8):
            a(f'ds_read_b128 {vr(GF[slot] + 4 * s, 4)}, v{BG} offset:{vv * 16 * TROW + 64 * s}')

    def kchain(tiles):
        def mm(k):
            for (gs, acc) in tiles:
                c0 = '0' if k == 0 else vr(acc, 4)
                c1 = '0' if k == 0 else vr(acc + 4, 4)
                a(f'v_mfma_f32_16x16x32_bf16 {vr(acc, 4)}, {vr(EF0 + 4 * k, 4)}, {vr(GF[gs] + 4 * k, 4)}, {c0}')
                a(f'v_mfma_f32_16x16x32_bf16 {vr(acc + 4, 4)}, {vr(EF1 + 4 * k, 4)}, {vr(GF[gs] + 4 * k, 4)}, {c1}')
        for s in range(8):
            a(f'ds_read_b128 {vr(EF0 + 4 * s, 4)}, v{EA0} offset:{64 * s}')
            a(f'ds_read_b128 {vr(EF1 + 4 * s, 4)}, v{EA1} offset:{64 * s}')
            if s >= 3:
                a(f's_waitcnt lgkmcnt(6)')
                mm(s - 3)
        for k in (5, 6, 7):
            a(f's_waitcnt lgkmcnt({2 * (7 - k)})')
            mm(k)

    def kr_write(acc, vv):
        for rt in range(2):
            b = acc + 4 * rt
            a(f'v_cvt_pk_bf16_f32 v{24 + 2 * rt}, v{b + 3}, v{b + 2}')
            a(f'v_cvt_pk_bf16_f32 v{25 + 2 * rt}, v{b + 1}, v{b}')
        if vv:
            a(f'v_subrev_u32 v28, {1024 * vv}, v{KA}')
            ka = 28
        else:
            ka = KA
        a(f'ds_write_b64 v{ka}, v[24:25] offset:32')
        a(f'ds_write_b64 v{ka}, v[26:27]')
    Lp1 = a.newlabel('L_kpart1')
    Lpe = a.newlabel('L_kparte')
    a(f's_and_b32 {T[5]}, {sWave}, 1')
    a(f's_cmp_eq_u32 {T[5]}, 0')
    a(f's_cbranch_scc0 {Lp1}')
    load_g(0, 0)
    rho_addr(0)
    kchain([(0, ACC)])
    rho_addr(1)
    kchain([(0, ACC + 8)])
    a(f'v_cmp_gt_u32 vcc, 8, v{AL15}')
    for i in range(8):
        a(f'v_cndmask_b32 v{ACC + i}, v{ACC + 8 + i}, v{ACC + i}, vcc')
    kr_write(ACC, 0)
    a(f's_branch {Lpe}')
    a.label(Lp1)
    load_g(0, 1)
    rho_addr(2)
    kchain([(0, ACC)])
    load_g(0, 2)
    load_g(1, 3)
    rho_addr(3)
    kr_write(ACC, 1)
    kchain([(0, ACC + 8), (1, ACC + 16)])
    kr_write(ACC + 8, 2)
    kr_write(ACC + 16, 3)
    a.label(Lpe)
    a(f's_mul_i32 {T[9]}, {T[2]}, {4 * KCS}')
    a(f's_mul_i32 {T[11]}, {T[5]}, {2 * KCS}')
    a(f's_add_u32 {T[9]}, {T[9]}, {T[11]}')
    a(f's_add_u32 {T[9]}, {T[9]}, {KC + 4096}')
    a(f'v_lshl_add_u32 v28, v{AL15}, 2, {T[9]}')
    a(f'v_mov_b32 v29, 0')
    a(f'ds_write_b32 v28, v29')
    a(f'ds_write_b32 v28, v29 offset:{KCS}')
    stamp(a, 'C2')
    a(f'v_mov_b32 v16, {PAIRC + 28}')
    a(f's_lshl_b32 {T[9]}, {T[2]}, 2')
    a(f's_add_u32 {T[9]}, {T[9]}, {PAIRC}')
    a(f'v_mov_b32 v18, {T[9]}')
    a(f'v_mov_b32 v17, 1')
    a('s_waitcnt lgkmcnt(0)')
    a(f's_mov_b64 {sEX}, exec')
    a('s_mov_b64 exec, 1')
    a('ds_add_u32 v16, v17')
    a('ds_add_u32 v18, v17')
    a(f's_mov_b64 exec, {sEX}')
    lds_spin(a, 'v18', 'v17', 'v_cmp_gt_u32 vcc, 4', 'L_krpair', sleep=False)
    a(f's_mul_i32 {T[9]}, {T[2]}, {4 * KCS}')
    a(f's_add_u32 {T[9]}, {T[9]}, {KC}')
    a(f's_and_b32 {T[11]}, {sWave}, 1')
    a(f's_lshl_b32 {T[11]}, {T[11]}, 10')
    a(f's_add_u32 {T[9]}, {T[9]}, {T[11]}')
    a(f'v_lshl_add_u32 v16, v0, 4, {T[9]}')
    D = [20, 28]
    for r in range(2):
        a(f'ds_read_b128 {vr(D[r], 4)}, v16 offset:{2048 * r}')
        a(f'ds_read_b64 {vr(D[r] + 4, 2)}, v16 offset:{2048 * r + 16}')
    for r in range(2):
        a(f's_waitcnt lgkmcnt({2 if r == 0 else 3})')
        C1, C2, C3 = 36 + 12 * r, 40 + 12 * r, 44 + 12 * r
        for k in range(4):
            a(f'v_alignbit_b32 v{C1 + k}, v{D[r] + k + 1}, v{D[r] + k}, 16')
            a(f'v_mov_b32 v{C2 + k}, v{D[r] + k + 1}')
            a(f'v_alignbit_b32 v{C3 + k}, v{D[r] + k + 2}, v{D[r] + k + 1}, 16')
        a(f'ds_write_b128 v16, {vr(C1, 4)} offset:{KCS + 2048 * r}')
        a(f'ds_write_b128 v16, {vr(C2, 4)} offset:{2 * KCS + 2048 * r}')
        a(f'ds_write_b128 v16, {vr(C3, 4)} offset:{3 * KCS + 2048 * r}')
    if dbg == 'K':
        a('s_waitcnt lgkmcnt(0)')
        a(f's_lshl_b32 {T[9]}, {sCP}, 13')
        a(f's_lshl_b32 {T[11]}, {T[2]}, 12')
        a(f's_add_u32 {T[9]}, {T[9]}, {T[11]}')
        a(f's_add_u32 {T[9]}, {T[9]}, {DBGK}')
        a(f's_and_b32 {T[11]}, {sWave}, 1')
        a(f's_lshl_b32 {T[11]}, {T[11]}, 10')
        a(f's_add_u32 {T[9]}, {T[9]}, {T[11]}')
        a(f'v_lshlrev_b32 v17, 4, v0')
        a(f'buffer_store_dwordx4 {vr(D[0], 4)}, v17, {SWS}, {T[9]} offen')
        a(f'buffer_store_dwordx4 {vr(D[1], 4)}, v17, {SWS}, {T[9]} offen offset:2048')
    stamp(a, 'C3')


XG = [12, 16]
UP = [68, 76]


def lds_spin(a, vaddr, vtmp, cmp_, label, sleep=True):
    L = a.newlabel(label)
    Ld = a.newlabel(label + 'd')
    a(f's_mov_b32 {sSpin}, 0')
    a.label(L)
    a(f'ds_read_b32 {vtmp}, {vaddr}')
    a(f's_add_u32 {sSpin}, {sSpin}, 1')
    a('s_waitcnt lgkmcnt(0)')
    a(f'{cmp_}, {vtmp}')
    a(f's_cmp_ge_u32 {sSpin}, {SPIN_MAX * 64}')
    a(f's_cbranch_scc1 {Ld}')
    a(f's_cbranch_vccz {Ld}')
    if sleep:
        a('s_sleep 1')
    a(f's_branch {L}')
    a.label(Ld)


def upath(a, dbg):
    t0, t1, t2, t3, t4 = 4, 5, 6, 7, 8
    sUV = T[15]
    a('s_setprio 1')
    a(f's_sub_u32 {sUV}, {sWave}, 4')
    srd(a, SA, P_X, 2048 * 1024)
    a('s_barrier')
    Ln4 = a.newlabel('L_nowarm')
    a(f's_cmp_eq_u32 {sUV}, 0')
    a(f's_cbranch_scc0 {Ln4}')
    a(f'v_lshlrev_b32 v30, 10, v0')
    a(f's_lshl_b32 {T[7]}, {sY}, 16')
    a(f's_lshl_b32 {T[8]}, {sX}, 7')
    a(f's_add_u32 {T[7]}, {T[7]}, {T[8]}')
    a(f'buffer_load_dword v31, v30, {SA}, {T[7]} offen')
    a.label(Ln4)
    Lnc_ = a.newlabel('L_nocode')
    a(f's_cmp_eq_u32 {sUV}, 1')
    a(f's_cbranch_scc0 {Lnc_}')
    a('s_getpc_b64 s[16:17]')
    a.label('L_pcref')
    a(f's_sub_u32 s16, s16, L_pcref-{KNAME}')
    a('s_subb_u32 s17, s17, 0')
    a(f's_mov_b32 s18, L_end-{KNAME}')
    a('s_mov_b32 s19, 0x20000')
    a(f's_and_b32 {T[8]}, {sY}, 3')
    a(f's_mul_i32 {T[8]}, {T[8]}, {CODE_QUARTER}')
    a('v_lshlrev_b32 v30, 7, v0')
    for i_ in range(2):
        a(f'buffer_load_dword v31, v30, {SC}, {T[8]} offen')
        if i_ == 0:
            a(f's_add_u32 {T[8]}, {T[8]}, 8192')
    a.label(Lnc_)
    Lnto = a.newlabel('L_notouch0')
    a(f's_cmp_eq_u32 {sUV}, 3')
    a(f's_cbranch_scc0 {Lnto}')
    a('v_mov_b32 v30, 0')
    a(f's_lshl_b32 {T[8]}, {sW}, 6')
    a(f's_add_u32 {T[8]}, {T[8]}, {STATS}')
    a(f'buffer_load_dword v31, v30, {SWS}, {T[8]} offen sc1')
    a.label(Lnto)
    sR = [T[13], T[14]]
    a(f'v_lshlrev_b32 v{t2}, 12, v0')
    for k in range(2):
        a(f's_lshl_b32 {sR[k]}, {sUV}, 1')
        a(f's_add_u32 {sR[k]}, {sR[k]}, {sY}')
        if k:
            a(f's_add_u32 {sR[k]}, {sR[k]}, 1')
        a(f's_and_b32 {sR[k]}, {sR[k]}, 7')
    for k in range(2):
        a(f's_lshl_b32 {T[8 + k]}, {sR[k]}, 18')
        a(f's_lshl_b32 {T[10]}, {sCP}, 2')
        a(f's_add_u32 {T[8 + k]}, {T[8 + k]}, {T[10]}')
    GR = [20, 28]
    sGA = [T[11], T[12]]
    for k in range(2):
        a(f's_lshl_b32 {sGA[k]}, {sR[k]}, 11')
        a(f's_add_u32 {sGA[k]}, {sGA[k]}, {STATS}')
    a(f'v_lshlrev_b32 v9, 5, v0')
    a('s_waitcnt lgkmcnt(0)')
    a(f's_mul_i32 {sTAG}, {sTAG}, 1664525')
    a(f's_add_u32 {sTAG}, {sTAG}, 1013904223')
    a(f'v_mov_b32 v22, {PAIRC + 12}')
    lds_spin(a, 'v22', 'v23', 'v_cmp_gt_u32 vcc, 4', 'L_pubwait')
    stamp(a, 'gstart')

    def gran_loads(pol=' sc1'):
        for k in range(2):
            a(f'buffer_load_dwordx4 {vr(GR[k], 4)}, v9, {SWS}, {sGA[k]} offen{pol}')
            a(f'buffer_load_dwordx4 {vr(GR[k] + 4, 4)}, v9, {SWS}, {sGA[k]} offen offset:16{pol}')
    for k in range(2):
        for r in range(4):
            a(f'buffer_load_dword v{XG[k] + r}, v{t2}, {SA}, {T[8 + k]} offen offset:{1024 * r}')
    gran_loads('')
    stamp(a, 'gissue')
    a('s_waitcnt vmcnt(4)')
    stamp(a, 'gdone')
    a(f's_mov_b32 {T[4]}, 0x05040100')
    a(f's_mov_b32 {T[5]}, 0x07060302')
    for k in range(2):
        X_, XP = XG[k], UP[k] + 4
        a(f'v_perm_b32 v{XP}, v{X_ + 1}, v{X_}, {T[4]}')
        a(f'v_perm_b32 v{XP + 1}, v{X_ + 3}, v{X_ + 2}, {T[4]}')
        a(f'v_perm_b32 v{XP + 2}, v{X_ + 1}, v{X_}, {T[5]}')
        a(f'v_perm_b32 v{XP + 3}, v{X_ + 3}, v{X_ + 2}, {T[5]}')
    Lchk = a.newlabel('L_gchk')
    Lok = a.newlabel('L_gok')
    a(f's_mov_b32 {sSpin}, 0')
    a.label(Lchk)
    a('s_waitcnt vmcnt(0)')
    for k in range(2):
        for r in range(4):
            a(f'v_xor_b32 v{36 + 4 * k + r}, {sTAG}, v{GR[k] + 2 * r + 1}')
    a('v_or3_b32 v36, v36, v37, v38')
    a('v_or3_b32 v39, v39, v40, v41')
    a('v_or3_b32 v42, v42, v43, v36')
    a('v_or_b32 v36, v39, v42')
    a('v_cmp_ne_u32 vcc, 0, v36')
    a(f's_add_u32 {sSpin}, {sSpin}, 1')
    a(f's_cmp_ge_u32 {sSpin}, {SPIN_MAX}')
    a(f's_cbranch_scc1 {Lok}')
    a(f's_cbranch_vccz {Lok}')
    gran_loads()
    a(f's_branch {Lchk}')
    a.label(Lok)
    stampval(a, '#gspin', sSpin)
    stamp(a, 'gran')
    for k in range(2):
        Mv, Rv = 36, 40
        for r in range(4):
            a(f'v_and_b32 v{Rv + r}, 0xffff0000, v{GR[k] + 2 * r}')
            a(f'v_lshlrev_b32 v{Mv + r}, 16, v{GR[k] + 2 * r}')
            a(f'v_rcp_f32 v{Rv + r}, v{Rv + r}')
        E0, E1 = 52, 60
        for r in range(4):
            a(f'v_lshlrev_b32 v{E0 + r}, 16, v{XG[k] + r}')
            a(f'v_and_b32 v{E1 + r}, 0xffff0000, v{XG[k] + r}')
        for r in range(4):
            a(f'v_sub_f32 v{E0 + r}, v{E0 + r}, v{Mv + r}')
            a(f'v_sub_f32 v{E1 + r}, v{E1 + r}, v{Mv + r}')
        for E in (E0, E1):
            a(f'v_cvt_pk_bf16_f32 v{E + 4}, v{E}, v{E + 1}')
            a(f'v_cvt_pk_bf16_f32 v{E + 5}, v{E + 2}, v{E + 3}')
        for E in (E0, E1):
            a(f'v_lshlrev_b32 v{E}, 16, v{E + 4}')
            a(f'v_and_b32 v{E + 1}, 0xffff0000, v{E + 4}')
            a(f'v_lshlrev_b32 v{E + 2}, 16, v{E + 5}')
            a(f'v_and_b32 v{E + 3}, 0xffff0000, v{E + 5}')
        for r in range(4):
            a(f'v_mul_f32 v{E0 + r}, v{E0 + r}, v{Rv + r}')
            a(f'v_mul_f32 v{E1 + r}, v{E1 + r}, v{Rv + r}')
        for ch, E in enumerate((E0, E1)):
            a(f'v_cvt_pk_bf16_f32 v{UP[k] + 2 * ch}, v{E}, v{E + 1}')
            a(f'v_cvt_pk_bf16_f32 v{UP[k] + 2 * ch + 1}, v{E + 2}, v{E + 3}')
    stamp(a, 'udone')
    a(f'v_mov_b32 v22, {PAIRC + 28}')
    lds_spin(a, 'v22', 'v23', 'v_cmp_gt_u32 vcc, 4', 'L_c2wait', sleep=False)
    for k in range(2):
        a(f's_lshl_b32 {T[6]}, {T[13 + k]}, 9')
        a(f'v_lshl_add_u32 v9, v0, 3, {T[6]}')
        a(f'ds_write_b64 v9, {vr(UP[k], 2)} offset:{UB + 512}')
        a(f'ds_write_b64 v9, {vr(UP[k] + 2, 2)} offset:{UB + UBS + 512}')
        a(f'ds_write_b64 v9, {vr(UP[k] + 4, 2)} offset:{XB}')
        a(f'ds_write_b64 v9, {vr(UP[k] + 6, 2)} offset:{XB + 4096}')
    a(f's_and_b32 {T[7]}, {sWave}, 1')
    a(f's_mul_i32 {T[7]}, {T[7]}, {UBS}')
    a(f'v_lshl_add_u32 v10, v0, 3, {T[7]}')
    a(f'v_mov_b32 v4, 0')
    a(f'v_mov_b32 v5, 0')
    a(f'ds_write_b64 v10, v[4:5] offset:{UB}')
    a('s_setprio 0')


def p12_rest(a, dbg):
    a.comment('---- stage E: causal convolution on waves 0..3, weight prep on waves 4..7')
    Lnc = a.newlabel('L_noconv')
    Lce = a.newlabel('L_convend')
    a(f's_cmp_ge_u32 {sWave}, 4')
    a(f's_cbranch_scc1 {Lnc}')
    VA, VB = 2, 3
    ACC = 4
    AF = [36, 100]
    BF = [68, 132]
    a(f's_lshr_b32 {T[2]}, {sWave}, 1')
    a(f's_and_b32 {T[3]}, {sWave}, 1')
    a(f'v_and_b32 v164, 15, v0')
    a(f'v_lshrrev_b32 v165, 4, v0')
    a(f's_lshl_b32 {T[5]}, {T[3]}, 8')
    a(f'v_lshlrev_b32 v166, 5, v164')
    a(f'v_lshl_add_u32 v166, v165, 4, v166')
    a(f's_mul_i32 {T[4]}, {T[2]}, {UBS}')
    a(f's_sub_u32 {T[4]}, {T[4]}, {T[5]}')
    a(f's_add_u32 {T[4]}, {T[4]}, {UB + 480 - 192}')
    a(f'v_add_u32 v{VB}, {T[4]}, v166')
    a(f'v_and_b32 v166, 3, v164')
    a(f'v_sub_u32 v166, 3, v166')
    a(f'v_mul_u32_u24 v166, {KCS}, v166')
    a(f'v_lshrrev_b32 v167, 2, v164')
    a(f'v_lshlrev_b32 v167, 3, v167')
    a(f'v_sub_u32 v166, v166, v167')
    a(f'v_lshl_add_u32 v166, v165, 4, v166')
    a(f's_mul_i32 {T[4]}, {T[2]}, {4 * KCS}')
    a(f's_sub_u32 {T[4]}, {T[4]}, {T[5]}')
    a(f's_add_u32 {T[4]}, {T[4]}, {KC + 280}')
    a(f'v_add_u32 v{VA}, {T[4]}, v166')

    def conv_loads(q0i):
        s = q0i & 1
        out = []
        for k in range(8):
            offa = 512 * (7 - k) + 64 * (3 - q0i)
            offb = 512 * k + 64 * (3 - q0i)
            out.append(f'ds_read_b128 {vr(BF[s] + 4 * k, 4)}, v{VB} offset:{offb}')
            out.append(f'ds_read_b64 {vr(AF[s] + 4 * k, 2)}, v{VA} offset:{offa}')
            out.append(f'ds_read_b64 {vr(AF[s] + 4 * k + 2, 2)}, v{VA} offset:{offa + 8}')
        return out
    mf = []
    for ct in range(8):
        for q1 in range(ct + 1):
            mf.append((max(q1, ct - q1), ct, q1))
    mf.sort()
    loads = [(q, x) for q in range(4) for x in conv_loads(q)]
    issued = 0
    known = 0
    for q in range(4):
        s = q & 1
        for idx, (lvl, ct, q1) in enumerate(mf):
            need = 24 * q + 3 * (lvl + 1)
            if q == 0 and idx == 0:
                while issued < 15:
                    a(loads[issued][1]); issued += 1
            while issued < need:
                a(loads[issued][1]); issued += 1
            if known < need:
                assert issued - need <= 15
                a(f's_waitcnt lgkmcnt({issued - need})')
                known = need
            first = (q == 0 and (lvl, ct, q1) == min(m for m in mf if m[1] == ct))
            c = '0' if first else vr(ACC + 4 * ct, 4)
            a(f'v_mfma_f32_16x16x32_bf16 {vr(ACC + 4 * ct, 4)}, {vr(AF[s] + 4 * q1, 4)}, {vr(BF[s] + 4 * (ct - q1), 4)}, {c}')
            if issued < len(loads) and issued - known < 15 and loads[issued][0] <= q + 1:
                a(loads[issued][1]); issued += 1
    stamp(a, 'convd')
    a(f's_lshl_b32 {T[4]}, {sWave}, 13')
    a(f's_add_u32 {T[4]}, {T[4]}, {PART}')
    a(f'v_lshl_add_u32 v{VA}, v0, 4, {T[4]}')
    for ct in range(8):
        a(f'ds_write_b128 v{VA}, {vr(ACC + 4 * ct, 4)} offset:{1024 * ct}')
    a(f's_branch {Lce}')
    a.label(Lnc)
    a('s_setprio 2')
    wprep(a)
    a('s_setprio 0')
    stamp(a, 'prepd')
    a(f'v_mov_b32 v40, {PAIRC + 8}')
    a(f'v_mov_b32 v41, 1')
    a('s_waitcnt vmcnt(0)')
    a(f's_mov_b64 {sEX}, exec')
    a('s_mov_b64 exec, 1')
    a('ds_add_rtn_u32 v42, v40, v41')
    a('s_waitcnt lgkmcnt(0)')
    a(f'v_readfirstlane_b32 {T[1]}, v42')
    a(f's_cmp_eq_u32 {T[1]}, 3')
    Lnl2 = a.newlabel('L_notlast')
    a(f's_cbranch_scc0 {Lnl2}')
    a(f's_and_b32 {T[1]}, {sW}, 15')
    a(f's_lshl_b32 {T[1]}, {T[1]}, 8')
    a(f's_add_u32 {T[1]}, {T[1]}, {CNTW}')
    a(f'v_mov_b32 v40, 1')
    a(f'v_mov_b32 v41, 0')
    a(f'buffer_atomic_add v40, v41, {SWS}, {T[1]} offen')
    a.label(Lnl2)
    a(f's_mov_b64 exec, {sEX}')
    Lnt = a.newlabel('L_notouch')
    a(f's_cmp_eq_u32 {sWave}, 7')
    a(f's_cbranch_scc0 {Lnt}')
    srd(a, SB, P_WD, 1792 * 1024)
    a(f's_mul_i32 {T[5]}, {sW}, 7168')
    a(f'v_lshlrev_b32 v10, 4, v0')
    for i in range(7):
        if i == 4:
            a(f's_add_u32 {T[5]}, {T[5]}, 4096')
        a(f'buffer_load_dwordx4 v[200:203], v10, {SB}, {T[5]} offen offset:{1024 * (i & 3)}')
    a.label(Lnt)
    a.label(Lce)
    a('s_waitcnt lgkmcnt(0)')
    a('s_barrier')
    stamp(a, 'S4')

    a(f's_lshr_b32 {T[2]}, {sWave}, 2')
    a(f's_and_b32 {T[3]}, {sWave}, 3')
    a(f's_lshl_b32 {T[4]}, {T[2]}, 14')
    a(f's_lshl_b32 {T[5]}, {T[3]}, 11')
    a(f's_add_u32 {T[4]}, {T[4]}, {T[5]}')
    a(f's_add_u32 {T[4]}, {T[4]}, {PART}')
    a(f'v_lshl_add_u32 v2, v0, 4, {T[4]}')
    for i in range(2):
        a(f'ds_read_b128 {vr(4 + 8 * i, 4)}, v2 offset:{1024 * i}')
        a(f'ds_read_b128 {vr(8 + 8 * i, 4)}, v2 offset:{1024 * i + 8192}')
    a(f'v_and_b32 v20, 15, v0')
    a(f'v_lshrrev_b32 v21, 4, v0')
    a(f'v_lshlrev_b32 v20, 5, v20')
    a(f'v_lshl_add_u32 v20, v21, 3, v20')
    a(f's_lshl_b32 {T[5]}, {T[3]}, 10')
    a(f'v_add_u32 v20, {T[5]}, v20')
    a(f's_mul_i32 {T[6]}, {T[2]}, {UBS}')
    a(f's_add_u32 {T[6]}, {T[6]}, {UB + 512}')
    a(f'v_add_u32 v21, {T[6]}, v20')
    a(f's_lshl_b32 {T[6]}, {T[2]}, 12')
    a(f's_add_u32 {T[6]}, {T[6]}, {XB}')
    a(f'v_add_u32 v22, {T[6]}, v20')
    for i in range(2):
        a(f'ds_read_b64 {vr(24 + 4 * i, 2)}, v21 offset:{512 * i}')
        a(f'ds_read_b64 {vr(26 + 4 * i, 2)}, v22 offset:{512 * i}')
    a(f's_lshl_b32 {T[7]}, {sDSK}, 16')
    a(f's_and_b32 {T[8]}, {sDSK}, 0xffff0000')
    a(f's_cmp_eq_u32 {T[2]}, 0')
    a(f's_cselect_b32 {T[7]}, {T[7]}, {T[8]}')
    a(f's_lshl_b32 {T[8]}, {sCP}, 1')
    a(f's_add_u32 {T[8]}, {T[8]}, {T[2]}')
    a(f's_lshl_b32 {T[8]}, {T[8]}, 12')
    a(f's_add_u32 {T[8]}, {T[8]}, {HT}')
    a('s_waitcnt lgkmcnt(0)')
    Es = [32, 44]
    for i in range(2):
        Y, Y2 = 4 + 8 * i, 8 + 8 * i
        for k in range(4):
            a(f'v_add_f32 v{Y + k}, v{Y + k}, v{Y2 + k}')
    for i in range(2):
        Uu, Xx, E = 24 + 4 * i, 26 + 4 * i, Es[i]
        for k in range(2):
            a(f'v_lshlrev_b32 v{E + 2 * k}, 16, v{Xx + k}')
            a(f'v_and_b32 v{E + 2 * k + 1}, 0xffff0000, v{Xx + k}')
            a(f'v_lshlrev_b32 v{E + 4 + 2 * k}, 16, v{Uu + k}')
            a(f'v_and_b32 v{E + 4 + 2 * k + 1}, 0xffff0000, v{Uu + k}')
    for i in range(2):
        Y, E = 4 + 8 * i, Es[i]
        for k in range(4):
            a(f'v_fmac_f32 v{Y + k}, {T[7]}, v{E + 4 + k}')
    for i in range(2):
        Y, E = 4 + 8 * i, Es[i]
        for k in range(4):
            a(f'v_add_f32 v{Y + k}, v{Y + k}, v{E + k}')
    for i in range(2):
        Y = 4 + 8 * i
        a(f'v_cvt_pk_bf16_f32 v{56 + 2 * i}, v{Y}, v{Y + 1}')
        a(f'v_cvt_pk_bf16_f32 v{57 + 2 * i}, v{Y + 2}, v{Y + 3}')
    a(f'v_permlane16_swap_b32 v56, v58')
    a(f'v_permlane16_swap_b32 v57, v59')
    a(f'v_and_b32 v20, 15, v0')
    a(f'v_lshlrev_b32 v20, 5, v20')
    a(f'v_lshrrev_b32 v21, 5, v0')
    a(f'v_lshl_add_u32 v20, v21, 4, v20')
    a(f'v_bfe_u32 v21, v0, 4, 1')
    a(f'v_lshl_add_u32 v20, v21, 9, v20')
    a(f'v_add_u32 v20, {T[5]}, v20')
    store_h(a, T[8])
    Lw4 = a.newlabel('L_wlook')
    a(f's_cmp_eq_u32 {sWave}, 4')
    a(f's_cbranch_scc0 {Lw4}')
    poll_ge(a, CNTW, 16, 256, 16, 'v16', 'v17', 'w', sleep=4)
    stampval(a, '#wspin', sSpin)
    a.label(Lw4)
    a('s_waitcnt vmcnt(0)')
    a('s_barrier')
    stamp(a, 'S5')


def wprefetch(a):
    Lo = a.newlabel('L_pfo')
    a(f's_cmp_eq_u32 {sWave}, 4')
    a(f's_cbranch_scc0 {Lo}')
    poll_ge(a, CNTW, 16, 256, 16, 'v16', 'v17', 'w', sleep=6)
    stampval(a, '#wspin', sSpin)
    a.label(Lo)
    stamp(a, 'pfok')


def store_h(a, soff):
    a(f'buffer_store_dwordx4 v[56:59], v20, {SWS}, {soff} offen sc1')


def wprep(a):
    AL15, GG_ = 84, 85
    a(f'v_and_b32 v{AL15}, 15, v0')
    a(f'v_lshrrev_b32 v{GG_}, 4, v0')
    a(f'v_lshrrev_b32 v99, 2, v{AL15}')
    a(f'v_lshrrev_b32 v100, 1, v{GG_}')
    a(f'v_lshl_add_u32 v99, v100, 3, v99')
    a(f'v_mul_u32_u24 v99, 224, v99')
    a(f'v_and_b32 v100, 3, v0')
    a(f'v_lshl_add_u32 v99, v100, 3, v99')
    a(f'v_and_b32 v100, 1, v{GG_}')
    a(f'v_mul_u32_u24 v100, {STG_U - STG_G}, v100')
    a(f'v_add_u32 v99, v99, v100')
    sJ0 = T[16]
    a(f's_sub_u32 {sJ0}, {sWave}, 4')
    a(f's_lshl_b32 {sJ0}, {sJ0}, 1')
    a(f's_lshl_b32 {T[17]}, {sJ0}, 5')
    a(f's_add_u32 {T[17]}, {T[17]}, {STG_G}')
    a(f'v_add_u32 v98, {T[17]}, v99')
    a(f'v_lshlrev_b32 v108, 4, v0')
    a(f'v_lshlrev_b32 v112, 2, v0')
    a(f'v_mov_b32 v152, 0x3f803f80')
    a(f'v_mov_b32 v153, 0x3f803f80')
    a(f's_lshr_b32 {T[17]}, {sW}, 4')
    a(f's_mul_i32 {T[17]}, {T[17]}, 7')
    a(f's_add_u32 {T[17]}, {T[17]}, {sJ0}')
    a(f's_lshl_b32 {T[17]}, {T[17]}, 5')
    a(f's_and_b32 {T[18]}, {sW}, 15')
    a(f's_lshl_b32 {T[18]}, {T[18]}, 1')
    a(f's_add_u32 {T[17]}, {T[17]}, {T[18]}')
    a(f's_lshl_b32 {T[17]}, {T[17]}, 10')
    a(f's_add_u32 {T[17]}, {T[17]}, {WP}')
    a(f's_mul_i32 {T[19]}, {sW}, 896')
    a(f's_lshl_b32 {T[18]}, {sJ0}, 7')
    a(f's_add_u32 {T[19]}, {T[19]}, {T[18]}')
    a(f's_add_u32 {T[19]}, {T[19]}, {CSP}')
    Ld = a.newlabel('L_prepdone')
    for jj in range(2):
        PF = 116 + 8 * jj
        if jj == 1:
            a(f's_cmp_eq_u32 {sWave}, 7')
            a(f's_cbranch_scc1 {Ld}_r')
        for kk in range(2):
            for rd in range(2):
                a(f'ds_read_b64_tr_b16 {vr(PF + 4 * kk + 2 * rd, 2)}, v98 offset:{(16 * kk + 4 * rd) * 224 + 32 * jj}')
    a.label(Ld + '_r')
    a('s_waitcnt lgkmcnt(0)')
    for jj in range(2):
        PF = 116 + 8 * jj
        if jj == 1:
            a(f's_cmp_eq_u32 {sWave}, 7')
            a(f's_cbranch_scc1 {Ld}')
        a(f's_add_u32 {T[18]}, {T[17]}, {32 * 1024 * jj}')
        a(f'buffer_store_dwordx4 {vr(PF, 4)}, v108, {SWS}, {T[18]} offen sc1')
        a(f'buffer_store_dwordx4 {vr(PF + 4, 4)}, v108, {SWS}, {T[18]} offen offset:1024 sc1')
        SM = 140 + 4 * jj
        for i in range(4):
            a(f'v_mfma_f32_4x4x4_16b_bf16 {vr(SM, 4)}, v[152:153], {vr(PF + 2 * i, 2)}, {"0" if i == 0 else vr(SM, 4)}')
        a(f'v_mov_b32 v110, v{SM}')
        a(f'v_mov_b32 v111, v{SM}')
        a(f'v_permlane32_swap_b32 v110, v111')
        a(f'v_add_f32 v110, v110, v111')
        a(f's_add_u32 {T[18]}, {T[19]}, {128 * jj}')
        a(f's_mov_b64 {sEX}, exec')
        a('s_mov_b32 exec_hi, 0')
        a(f'buffer_store_dword v110, v112, {SWS}, {T[18]} offen sc1')
        a(f's_mov_b64 exec, {sEX}')
    a.label(Ld)


def ln_finish2(a, S, Q, t):
    def each(fmt):
        for r in range(2):
            a(fmt.format(S=S[r], Q=Q[r], t=t[r]))
    each('v_mul_f32 v{S}, 0x3b000000, v{S}')
    each('v_mul_f32 v{Q}, 0x3b000000, v{Q}')
    each('v_fma_f32 v{Q}, -v{S}, v{S}, v{Q}')
    each('v_max_f32 v{Q}, 0, v{Q}')
    each('v_cvt_pk_bf16_f32 v{t}, v{Q}, v{Q}')
    each('v_lshlrev_b32 v{t}, 16, v{t}')
    each('v_add_f32 v{t}, 0x3727c5ac, v{t}')
    each('v_cvt_pk_bf16_f32 v{t}, v{t}, v{t}')
    each('v_lshlrev_b32 v{t}, 16, v{t}')
    each('v_sqrt_f32 v{t}, v{t}')
    each('v_cvt_pk_bf16_f32 v{t}, v{t}, v{t}')
    each('v_lshlrev_b32 v{Q}, 16, v{t}')


def ln_finish(a, S, Q, t3, t4):
    a(f'v_mul_f32 v{S}, 0x3b000000, v{S}')
    a(f'v_mul_f32 v{Q}, 0x3b000000, v{Q}')
    a(f'v_fma_f32 v{Q}, -v{S}, v{S}, v{Q}')
    a(f'v_max_f32 v{Q}, 0, v{Q}')
    a(f'v_cvt_pk_bf16_f32 v{t3}, v{Q}, v{Q}')
    a(f'v_lshlrev_b32 v{t3}, 16, v{t3}')
    a(f'v_add_f32 v{t3}, 0x3727c5ac, v{t3}')
    a(f'v_cvt_pk_bf16_f32 v{t3}, v{t3}, v{t3}')
    a(f'v_lshlrev_b32 v{t3}, 16, v{t3}')
    a(f'v_sqrt_f32 v{t3}, v{t3}')
    a(f'v_cvt_pk_bf16_f32 v{t4}, v{t3}, v{t3}')
    a(f'v_lshlrev_b32 v{Q}, 16, v{t4}')


HEADER = """; Fused pre-LN S4D convolution + pre-LN GEGLU FFN, one persistent launch (256 workgroups x 512 threads).
; d_in order: A_u, log_A_real, A_imag, C_real, C_imag, log_dt, D_skip, B_x, w_gate, w_up, w_down ; d_out, d_debug, d_ws
; @launch grid=(256,1,1) block=(512,1,1) lds=%d
.amdgcn_target "amdgcn-amd-amdhsa--gfx950"
.text
.globl %s
.p2align 8
.type %s,@function
""" % (LDS_SIZE, KNAME, KNAME)

FOOTER = """.section .rodata,"a"
.p2align 6
.amdhsa_kernel %s
  .amdhsa_next_free_vgpr 256
  .amdhsa_next_free_sgpr 102
  .amdhsa_accum_offset 256
  .amdhsa_group_segment_fixed_size 0
  .amdhsa_kernarg_size 112
  .amdhsa_user_sgpr_count 2
  .amdhsa_user_sgpr_kernarg_segment_ptr 1
  .amdhsa_system_sgpr_workgroup_id_x 1
.end_amdhsa_kernel
""" % KNAME


def build(upto='all', dbg=None):
    a = Asm()
    STAMPS['on'] = (dbg is not None and dbg.startswith('T'))
    STAMPS['only'] = set(dbg[2:].split(',')) if (dbg and len(dbg) > 2) else None
    STAMPS['names'] = []
    a.label(KNAME)
    entry(a)
    p12(a, dbg)
    if upto in ('p3', 'all'):
        import gen34
        gen34.p3(a, dbg)
        if upto == 'all':
            gen34.p4(a, dbg)
    dump_stamps(a)
    a.label('L_end')
    a('s_endpgm')
    n = a.fix_hazards()
    return HEADER + a.text() + FOOTER, n


if __name__ == '__main__':
    upto = sys.argv[1] if len(sys.argv) > 1 else 'all'
    dbg = sys.argv[2] if len(sys.argv) > 2 and sys.argv[2] != '-' else None
    out = sys.argv[3] if len(sys.argv) > 3 else 'out.s'
    txt, n = build(upto, dbg)
    open(out, 'w').write(txt)
    if dbg and dbg.startswith('T'):
        open(out + '.stamps', 'w').write(' '.join(STAMPS['names']))
    print(f'wrote {out}: {len(txt)} bytes, {txt.count(chr(10))} lines, {n} nops inserted')
```

```python
from gen import *
from asmlib import Asm
import gen as G
import math
import struct


def f2h(x):
    return hex(struct.unpack('<I', struct.pack('<f', x))[0])


K1 = f2h(-2.0 * math.sqrt(2.0 / math.pi) * math.log2(math.e))
K2 = f2h(-2.0 * math.sqrt(2.0 / math.pi) * math.log2(math.e) * 0.044715)

H = 128
ACC0 = 16
ACC1 = 32
WF = 48
WF0 = 48
CS = 64
TMP = 80
CSLD = 96
vWD = 112
vHA = 2
vWA = 3
vM, vR = 4, 5
vC1, vC2, vS2S = 6, 113, 114
vL16 = 7
vS1, vS2, vQ1, vQ2 = 8, 9, 10, 11
vCSA = 12
vHD = 13
vT0, vT1 = 14, 15

sGrp, sTq = T[20], T[21]
sWB = T[22]
sGB = T[23]
SWD = SA


class Q:
    def __init__(self, a):
        self.a = a
        self.q = []

    def add(self, tag, n=1):
        self.q += [tag] * n

    def has(self, tag):
        return tag in self.q

    def wait(self, tag, lgkm=False):
        last = max(i for i, t in enumerate(self.q) if t == tag)
        n = len(self.q) - 1 - last
        self.a(f's_waitcnt vmcnt({n})' + (' lgkmcnt(0)' if lgkm else ''))
        del self.q[:last + 1]


def dma_w8(a, j, slot):
    a(f's_lshl_b32 {T[1]}, {sWave}, 12')
    a(f's_add_u32 {T[0]}, {sWB}, {T[1]}')
    a(f's_add_u32 {T[0]}, {T[0]}, {j * 32768}')
    a(f's_add_u32 m0, {T[1]}, {G.WSLOT[slot]}')
    a('s_nop 0')
    for i in range(4):
        a(f'buffer_load_dwordx4 v{vL16}, {SWS}, {T[0]} offen offset:{1024 * i} lds')


def dma_w4(a, j, slot):
    a(f's_lshl_b32 {T[1]}, {sTq}, 13')
    a(f's_add_u32 {T[0]}, {sWB}, {T[1]}')
    a(f's_add_u32 {T[0]}, {T[0]}, {j * 32768}')
    a(f's_add_u32 m0, {T[1]}, {G.WSLOT[slot]}')
    a('s_nop 0')
    for i in range(4):
        a(f'buffer_load_dwordx4 v{vL16}, {SWS}, {T[0]} offen offset:{1024 * i} lds')
    a(f's_add_u32 m0, m0, 4096')
    a(f's_add_u32 {T[0]}, {T[0]}, 4096')
    for i in range(4):
        a(f'buffer_load_dwordx4 v{vL16}, {SWS}, {T[0]} offen offset:{1024 * i} lds')


def dma_h(a, s):
    a(f's_lshl_b32 {T[1]}, {sWave}, 10')
    a(f's_add_u32 m0, {T[1]}, {HRING + (s % NRING) * 8192}')
    a(f's_mov_b32 {T[0]}, {HT + s * 32 * 4096}')
    a(f'buffer_load_dwordx4 v{vHD}, {SWS}, {T[0]} offen lds')


def dma_wd4(a, c):
    a(f's_lshl_b32 {T[1]}, {sTq}, 12')
    a(f's_add_u32 m0, {T[1]}, {(c % NWD) * WDSLOT}')
    a(f's_lshl_b32 {T[0]}, {sTq}, 15')
    a(f's_add_u32 {T[0]}, {T[0]}, {c * 128 * 1024}')
    for i in range(4):
        if i:
            a(f's_add_u32 m0, m0, 1024')
            a(f's_add_u32 {T[0]}, {T[0]}, 8192')
        a(f'buffer_load_dwordx4 v{vWD}, {SWD}, {T[0]} offen lds')


def dma_wd8(a, c):
    a(f's_bitcmp1_b32 {sWave}, 0')
    a(f's_mov_b32 {T[0]}, {16 * 1024 * kconst(2 * c)}')
    a(f's_cselect_b32 {T[0]}, {16 * 1024 * kconst(2 * c + 1)}, {T[0]}')
    a(f's_add_u32 {T[0]}, {T[0]}, {sD8}')
    a(f's_lshl_b32 {T[1]}, {sWave}, 11')
    a(f's_add_u32 m0, {T[1]}, {(c % NWD) * WDSLOT}')
    a('s_nop 0')
    a(f'buffer_load_dwordx4 v{vWD}, {SWD}, {T[0]} offen lds')
    a(f's_add_u32 m0, m0, 1024')
    a(f's_add_u32 {T[0]}, {T[0]}, 8192')
    a(f'buffer_load_dwordx4 v{vWD}, {SWD}, {T[0]} offen lds')


sWq, sMq, sDq, sM4q = T[16], T[17], T[18], T[19]
sTT, sKQ, sG, sD8 = 's16', 's17', 's18', 's19'


def kconst(nn):
    if nn < 12:
        return 28 * (nn // 3) + nn % 3
    if nn < 20:
        return 28 * ((nn - 12) // 2) + 3 + (nn - 12) % 2
    return 28 * ((nn - 20) // 2) + 5 + (nn - 20) % 2


def w_pieces(j, slot):
    return [[f's_add_u32 m0, {sMq}, {G.WSLOT[slot] + 1024 * i}',
             f's_add_u32 {T[0]}, {sWq}, {j * 32768 + 1024 * i}',
             f'buffer_load_dwordx4 v{vL16}, {SWS}, {T[0]} offen lds'] for i in range(8)]


def wd_pieces(c):
    return [[f's_add_u32 m0, {sM4q}, {(c % NWD) * WDSLOT + 1024 * i}',
             f's_add_u32 {T[0]}, {sDq}, {(16 * kconst(2 * c + (i >> 1)) + 8 * (i & 1)) * 1024}',
             f'buffer_load_dwordx4 v{vWD}, {SWD}, {T[0]} offen lds'] for i in range(4)]


def mfma_phase(a, acc, slot, pieces=(), first=1, last=30, extra=(), pre=(), ring=8, depth=6):
    n = 32
    extra = list(extra)
    nx = len(extra)
    at = {}
    if pieces:
        m = len(pieces)
        for idx, p in enumerate(pieces):
            k = first + (idx * (last - first)) // max(m - 1, 1) if m > 1 else first
            at.setdefault(k, []).append(p)
    a(f'v_add_u32 v{vWA}, {G.WSLOT[slot]}, v{vL16}')
    a('s_setprio 1')
    for x in pre:
        a(x)
    for k in range(depth):
        a(f'ds_read_b128 {vr(WF + 4 * (k % ring), 4)}, v{vWA} offset:{1024 * k}')
    for k in range(n):
        if k + depth < n:
            a(f'ds_read_b128 {vr(WF + 4 * ((k + depth) % ring), 4)}, v{vWA} offset:{1024 * (k + depth)}')
            a(f's_waitcnt lgkmcnt({depth})')
        else:
            a(f's_waitcnt lgkmcnt({n - 1 - k})')
        c = '0' if k == 0 else vr(acc, 16)
        a(f'v_mfma_f32_32x32x16_bf16 {vr(acc, 16)}, {vr(WF + 4 * (k % ring), 4)}, {vr(H + 4 * k, 4)}, {c}')
        for p in at.get(k, []):
            for x in p:
                a(x)
        if k >= 1:
            want = min(nx, (nx * k + 29) // 30)
            while nx - len(extra) < want:
                a(extra.pop(0))
    a('s_setprio 0')


def epi_reads(j, cs):
    return [f'ds_read_b128 {vr(cs + 4 * i, 4)}, v{vCSA} offset:{128 * j + 32 * i}' for i in range(4)]


def epi_body(acc, cs, waits=True):
    o = []
    Z = TMP
    for i in range(4):
        if waits:
            o.append(f's_waitcnt lgkmcnt({3 - i})')
        for k in range(4):
            o.append(f'v_fmac_f32 v{acc + 4 * i + k}, v{vM}, v{cs + 4 * i + k}')
        if i < 2:
            for k in range(4):
                o.append(f'v_mul_f32 v{Z + 4 * i + k}, v{acc + 4 * i + k}, v{acc + 4 * i + k}')
    for i in range(8):
        o.append(f'v_fma_f32 v{Z + i}, v{Z + i}, v{vC2}, v{vC1}')
    for i in range(8):
        o.append(f'v_mul_f32 v{Z + i}, v{Z + i}, v{acc + i}')
    for i in range(8):
        o.append(f'v_exp_f32 v{Z + i}, v{Z + i}')
        o.append(f'v_mul_f32 v{acc + i}, v{acc + i}, v{acc + 8 + i}')
    for i in range(8):
        o.append(f'v_fma_f32 v{Z + i}, v{Z + i}, v{vS2S}, v{vS2S}')
    for i in range(8):
        o.append(f'v_rcp_f32 v{Z + i}, v{Z + i}')
    P = TMP + 8
    for i in range(4):
        o.append(f'v_mul_f32 v{acc + 2 * i}, v{acc + 2 * i}, v{Z + 2 * i}')
        o.append(f'v_mul_f32 v{acc + 2 * i + 1}, v{acc + 2 * i + 1}, v{Z + 2 * i + 1}')
        o.append(f'v_cvt_pk_bf16_f32 v{P + i}, v{acc + 2 * i}, v{acc + 2 * i + 1}')
    o.append(f'v_permlane32_swap_b32 v{P}, v{P + 2}')
    o.append(f'v_permlane32_swap_b32 v{P + 1}, v{P + 3}')
    return o


def epi_store(a, j):
    a(f's_add_u32 {T[3]}, {sGB}, {1024 * j}')
    a(f'buffer_store_dwordx4 {vr(TMP + 8, 4)}, v{vL16}, {SWS}, {T[3]} offen sc1')


def epilogue(a, acc, j):
    for x in epi_reads(j, CS):
        a(x)
    for x in epi_body(acc, CS):
        a(x)
    epi_store(a, j)


def stats_final(a):
    ln_finish(a, vS1, vQ1, vT0, vT1)
    a(f'v_cvt_pk_bf16_f32 v{vT0}, v{vS1}, v{vS1}')
    a(f'v_rcp_f32 v{vR}, v{vQ1}')
    a(f'v_lshlrev_b32 v{vT0}, 16, v{vT0}')
    a(f'v_sub_f32 v{vM}, 0, v{vT0}')
    a(f'v_mul_f32 v{vS2S}, v{vQ1}, v{vQ1}')
    a(f'v_mul_f32 v{vC1}, {K1}, v{vR}')
    a(f'v_mul_f32 v{vC2}, v{vR}, v{vR}')
    a(f'v_mul_f32 v{vC2}, v{vC2}, v{vR}')
    a(f'v_mul_f32 v{vC2}, {K2}, v{vC2}')


def p3(a, dbg):
    a.comment('================ P3: LN2 + gate/up GEMM + GEGLU')
    Lb2 = a.newlabel('L_arr2')
    a(f's_cmp_eq_u32 {sWave}, 7')
    a(f's_cbranch_scc0 {Lb2}')
    a(f's_and_b32 {T[1]}, {sW}, 15')
    a(f's_lshl_b32 {T[1]}, {T[1]}, 8')
    a(f's_add_u32 {T[1]}, {T[1]}, {CNT2}')
    arrive(a, T[1], 'v16', 'v17')
    a.label(Lb2)
    a(f's_lshr_b32 {sGrp}, {sWave}, 2')
    a(f's_and_b32 {sTq}, {sWave}, 3')
    a(f's_mul_i32 {sWB}, {sFB}, {7 * 32768}')
    a(f's_add_u32 {sWB}, {sWB}, {WP}')
    a(f's_lshl_b32 {T[0]}, {sTB}, 2')
    a(f's_add_u32 {T[0]}, {T[0]}, {sTq}')
    a(f's_mul_i32 {T[0]}, {T[0]}, 112')
    a(f's_mul_i32 {T[1]}, {sFB}, 7')
    a(f's_add_u32 {T[0]}, {T[0]}, {T[1]}')
    a(f's_lshl_b32 {T[0]}, {T[0]}, 10')
    a(f's_add_u32 {sGB}, {T[0]}, {GG}')
    a(f'v_lshlrev_b32 v{vL16}, 4, v0')
    a(f'v_lshrrev_b32 v{vT0}, 4, v0')
    a(f'v_and_b32 v{vT1}, 15, v0')
    a(f'v_lshlrev_b32 v{vHD}, 2, v{vT0}')
    a(f'v_xor_b32 v{vHD}, v{vHD}, v{vT1}')
    a(f'v_lshlrev_b32 v{vHD}, 4, v{vHD}')
    a(f's_lshl_b32 {T[0]}, {sWave}, 2')
    a(f'v_add_u32 v{vT0}, {T[0]}, v{vT0}')
    a(f'v_lshl_add_u32 v{vHD}, v{vT0}, 12, v{vHD}')
    a(f's_lshl_b32 {T[0]}, {sTB}, 8')
    a(f'v_add_u32 v{vHD}, {T[0]}, v{vHD}')
    a(f'v_lshrrev_b32 v{TMP}, 2, v{vT1}')
    a(f'v_lshrrev_b32 v{TMP + 1}, 5, v0')
    a(f'v_lshl_add_u32 v{TMP + 1}, v{TMP + 1}, 3, v{TMP}')
    a(f'v_lshlrev_b32 v{vHA}, 8, v{TMP + 1}')
    a(f'v_xor_b32 v{TMP}, {sTq}, v{TMP}')
    a(f'v_lshlrev_b32 v{TMP}, 2, v{TMP}')
    a(f'v_bfe_u32 v{TMP + 1}, v0, 4, 1')
    a(f'v_lshl_add_u32 v{TMP}, v{TMP + 1}, 1, v{TMP}')
    a(f'v_bfe_u32 v{TMP + 1}, v0, 1, 1')
    a(f'v_add_u32 v{TMP}, v{TMP}, v{TMP + 1}')
    a(f'v_lshl_add_u32 v{vHA}, v{TMP}, 4, v{vHA}')
    a(f'v_and_b32 v{TMP}, 1, v0')
    a(f'v_lshl_add_u32 v{vHA}, v{TMP}, 3, v{vHA}')
    a(f's_mul_i32 {T[0]}, {sGrp}, {G.WSLOT[1] - G.WSLOT[0]}')
    a(f's_add_u32 {T[0]}, {T[0]}, {G.WSLOT[0]}')
    a(f'v_add_u32 v{vWA}, {T[0]}, v{vL16}')
    a(f'v_lshrrev_b32 v{vT0}, 5, v0')
    a(f'v_lshlrev_b32 v{vT0}, 4, v{vT0}')
    a(f'v_add_u32 v{vCSA}, {CSL}, v{vT0}')
    for r_ in (vS1, vS2, vQ1, vQ2):
        a(f'v_mov_b32 v{r_}, 0')
    srd(a, SWD, P_WD, 1792 * 1024)
    a(f'v_lshrrev_b32 v{vT0}, 3, v0')
    a(f'v_bfe_u32 v{vT1}, v0, 4, 1')
    a(f'v_lshlrev_b32 v{vT1}, 2, v{vT1}')
    a(f'v_and_b32 v{vWD}, 7, v0')
    a(f'v_xor_b32 v{vWD}, v{vWD}, v{vT1}')
    a(f'v_lshlrev_b32 v{vWD}, 4, v{vWD}')
    a(f'v_lshl_add_u32 v{vWD}, v{vT0}, 10, v{vWD}')
    a(f's_lshl_b32 {T[1]}, {sDB}, 7')
    a(f'v_add_u32 v{vWD}, {T[1]}, v{vWD}')
    a(f's_lshl_b32 {sMq}, {sTq}, 13')
    a(f's_add_u32 {sWq}, {sWB}, {sMq}')
    a(f's_lshl_b32 {sM4q}, {sTq}, 12')
    a(f's_mul_i32 {sDq}, {sTq}, {7 * 16 * 1024}')
    L7 = a.newlabel('L_p3w7')
    LS6 = a.newlabel('L_S6')
    a('s_barrier')
    a(f's_cmp_eq_u32 {sWave}, 7')
    a(f's_cbranch_scc1 {L7}')
    a(f's_cmp_ge_u32 {sWave}, 4')
    a(f's_cbranch_scc1 {LS6}')
    a(f's_lshl_b32 {T[1]}, {sWave}, 14')
    a(f's_add_u32 {T[0]}, {sWB}, {T[1]}')
    a(f's_add_u32 m0, {T[1]}, {G.WSLOT[0]}')
    for g4 in range(4):
        if g4:
            a('s_add_u32 m0, m0, 4096')
            a(f's_add_u32 {T[0]}, {T[0]}, 4096')
        else:
            a('s_nop 0')
        for i_ in range(4):
            a(f'buffer_load_dwordx4 v{vL16}, {SWS}, {T[0]} offen offset:{1024 * i_} lds')
    a(f's_mul_i32 {T[0]}, {sFB}, {16 * 896}')
    a(f's_add_u32 {T[0]}, {T[0]}, {CSP}')
    a(f'v_lshlrev_b32 v{vT0}, 2, v1')
    a(f'v_min_u32 v{vT0}, {223 * 4}, v{vT0}')
    for q in range(16):
        if q:
            a(f's_add_u32 {T[0]}, {T[0]}, 896')
        a(f'buffer_load_dword v{CSLD + q}, v{vT0}, {SWS}, {T[0]} offen')
    a(f's_branch {LS6}')
    a.label(L7)
    poll_ge(a, CNT2, 16, 256, 16, 'v16', 'v17', 'b2', sleep=4)
    a(f's_and_b32 {T[1]}, {sFB}, 7')
    a(f's_lshl_b32 {T[1]}, {T[1]}, 18')
    a(f's_lshl_b32 {T[0]}, {sTB}, 8')
    a(f's_add_u32 {T[0]}, {T[0]}, {T[1]}')
    a(f's_add_u32 {T[0]}, {T[0]}, {HT}')
    a(f'v_lshlrev_b32 v20, 12, v0')
    a(f'buffer_load_dword v21, v20, {SWS}, {T[0]} offen')
    a(f'buffer_load_dword v21, v20, {SWS}, {T[0]} offen offset:128')
    Lne = a.newlabel('L_noep')
    a(f's_cmp_eq_u32 {sW}, 0')
    a(f's_cbranch_scc0 {Lne}')
    a(f'v_mov_b32 v16, {sTAG}')
    a(f'v_mov_b32 v17, 0')
    a(f's_mov_b32 {T[1]}, {EPOCH}')
    a(f's_mov_b64 {sEX}, exec')
    a('s_mov_b64 exec, 1')
    a(f'buffer_store_dword v16, v17, {SWS}, {T[1]} offen sc1')
    a(f's_mov_b64 exec, {sEX}')
    a.label(Lne)
    a.label(LS6)
    a('s_barrier')
    G.stamp(a, 'S6'); G.stamp(a, '@kS6')
    for s in range(NRING - 1):
        dma_h(a, s)
    SUMR, GRM, ONES = 116, 120, 124

    def phase0(g):
        a(f'v_mov_b32 v{ONES}, 0x3f803f80')
        a(f'v_mov_b32 v{ONES + 1}, 0x3f803f80')

        def compute_slice(s, fill=()):
            fill = list(fill)
            for kk in range(2):
                k = 2 * s + kk
                c = '0' if k == 0 else vr(ACC0, 16)
                hs = vr(H + 4 * k + 2 * g, 2)
                a(f'v_mfma_f32_32x32x16_bf16 {vr(ACC0, 16)}, {vr(WF0 + 8 * (s & 1) + 4 * kk, 4)}, {vr(H + 4 * k, 4)}, {c}')
                while fill:
                    a(fill.pop(0))
                a(f'v_mfma_f32_4x4x4_16b_bf16 {vr(SUMR, 4)}, {vr(ONES, 2)}, {hs}, {"0" if k == 0 else vr(SUMR, 4)}')
                a(f'v_mfma_f32_4x4x4_16b_bf16 {vr(GRM, 4)}, {hs}, {hs}, {"0" if k == 0 else vr(GRM, 4)}')
            for x in fill:
                a(x)
        q0 = Q(a)
        for s in range(NRING - 1):
            q0.add(('h', s))
        for s in range(16):
            if s in (7, 8) and g == 0:
                G.stamp(a, f'@a{s}')
            q0.wait(('h', s), lgkm=True)
            if s in (7, 8) and g == 0:
                G.stamp(a, f'@b{s}')
            a('s_barrier')
            if s in (7, 8) and g == 0:
                G.stamp(a, f'@c{s}')
            if g == 0:
                if s == 0:
                    G.stamp(a, 'h0'); G.stamp(a, '@kh0')
                if s in (4, 8, 12):
                    G.stamp(a, f'h{s}')
            base = (s % NRING) * 8192 + HRING
            rds = []
            for kk in range(2):
                k = 2 * s + kk
                rds.append(f'ds_read_b64_tr_b16 {vr(H + 4 * k, 2)}, v{vHA} offset:{base + kk * 4096}')
                rds.append(f'ds_read_b64_tr_b16 {vr(H + 4 * k + 2, 2)}, v{vHA} offset:{base + kk * 4096 + 1024}')
                rds.append(f'ds_read_b128 {vr(WF0 + 8 * (s & 1) + 4 * kk, 4)}, v{vWA} offset:{1024 * k}')
            if s > 0:
                compute_slice(s - 1, rds)
            else:
                for x in rds:
                    a(x)
            if s + NRING - 1 < 16:
                dma_h(a, s + NRING - 1); q0.add(('h', s + NRING - 1))
            if s == 3:
                dma_w8(a, 2, 2); q0.add('W2', 4)
            if s == 0 and g == 0:
                for st in (8, 4, 2, 1):
                    for q in range(st):
                        a(f'v_add_f32 v{CSLD + q}, v{CSLD + q}, v{CSLD + q + st}')
                a(f'v_lshlrev_b32 v{vT0}, 2, v1')
                a(f'v_min_u32 v{vT0}, {223 * 4}, v{vT0}')
                a(f'v_add_u32 v{vT0}, {CSL}, v{vT0}')
                a(f'ds_write_b32 v{vT0}, v{CSLD}')
        a('s_waitcnt lgkmcnt(0)')
        compute_slice(15)
        if g == 0:
            G.stamp(a, 'ph0'); G.stamp(a, '@kph0'); G.stamp(a, '@x0')
        a(f'v_and_b32 v{vT0}, 3, v0')
        a(f'v_cmp_eq_u32 vcc, 1, v{vT0}')
        a(f'v_cndmask_b32 v{vQ1}, v{GRM}, v{GRM + 1}, vcc')
        a(f'v_cmp_eq_u32 vcc, 2, v{vT0}')
        a(f'v_cndmask_b32 v{vQ1}, v{vQ1}, v{GRM + 2}, vcc')
        a(f'v_cmp_eq_u32 vcc, 3, v{vT0}')
        a(f'v_cndmask_b32 v{vQ1}, v{vQ1}, v{GRM + 3}, vcc')
        a(f'v_mov_b32 v{vS1}, v{SUMR}')
        a(f'v_mov_b32 v{vS2}, v{SUMR}')
        a(f'v_mov_b32 v{vQ2}, v{vQ1}')
        a(f'v_permlane32_swap_b32 v{vS1}, v{vS2}')
        a(f'v_permlane32_swap_b32 v{vQ1}, v{vQ2}')
        a(f'v_add_f32 v{vS1}, v{vS1}, v{vS2}')
        a(f'v_add_f32 v{vS2}, v{vQ1}, v{vQ2}')
        a(f's_lshl_b32 {T[0]}, {sWave}, 9')
        a(f's_add_u32 {T[0]}, {T[0]}, {SXCH}')
        a(f'v_lshl_add_u32 v{vT0}, v0, 3, {T[0]}')
        a(f'ds_write_b64 v{vT0}, {vr(vS1, 2)}')
        assert SXCH % 4096 == 0
        a(f'v_xor_b32 v{vT0}, 2048, v{vT0}')
        a('s_waitcnt lgkmcnt(0)')
        if g == 0:
            G.stamp(a, '@x1')
        a('s_barrier')
        if g == 0:
            G.stamp(a, '@x2')

    def finish_stats():
        a(f'ds_read_b64 {vr(vQ1, 2)}, v{vT0}')
        a('s_waitcnt lgkmcnt(0)')
        a(f'v_add_f32 v{vS1}, v{vS1}, v{vQ1}')
        a(f'v_add_f32 v{vQ1}, v{vS2}, v{vQ2}')
        stats_final(a)
    LB = a.newlabel('L_grpB')
    LJ = a.newlabel('L_join')
    a(f's_cmp_eq_u32 {sGrp}, 0')
    a(f's_cbranch_scc0 {LB}')
    phase0(0)
    q = Q(a)
    tmp = Asm()
    tmp(f'v_add_f32 v{vS1}, v{vS1}, v{vQ1}')
    tmp(f'v_add_f32 v{vQ1}, v{vS2}, v{vQ2}')
    stats_final(tmp)
    pre = [f'ds_read_b64 {vr(vQ1, 2)}, v{vT0}']
    mfma_phase(a, ACC1, 2, w_pieces(3, 3) + w_pieces(4, 0), first=0, last=30, extra=tmp.lines, pre=pre)
    q.add('W3', 8); q.add('W4', 8)
    G.stamp(a, '@x3')
    q.wait('W3')
    G.stamp(a, '@x4')
    a('s_barrier')
    G.stamp(a, 'p1'); G.stamp(a, '@kp1'); G.stamp(a, '@x5')
    epilogue(a, ACC0, 0); q.add('st')
    epilogue(a, ACC1, 2); q.add('st')
    q.wait('W4')
    a('s_barrier')
    G.stamp(a, 'p2'); G.stamp(a, '@kp2')
    mfma_phase(a, ACC0, 0, wd_pieces(0) + wd_pieces(1) + wd_pieces(2)); q.add('wd', 12)
    q.wait('st')
    a('s_barrier')
    G.stamp(a, 'p3'); G.stamp(a, '@kp3')
    La = a.newlabel('L_arr3a')
    a(f's_cmp_eq_u32 {sWave}, 0')
    a(f's_cbranch_scc0 {La}')
    a(f's_lshl_b32 {T[1]}, {sTB}, 8')
    a(f's_add_u32 {T[1]}, {T[1]}, {CNT3A}')
    arrive(a, T[1], f'v{vT0}', f'v{vT1}')
    a.label(La)
    epilogue(a, ACC0, 4); q.add('st')
    p4_setup(a)
    a('s_barrier')
    G.stamp(a, 'p4'); G.stamp(a, '@kp4')
    mfma_phase(a, ACC0, 2, wd_pieces(5) + wd_pieces(6)); q.add('wd', 8)
    q.wait('st')
    a('s_barrier')
    G.stamp(a, 'p5'); G.stamp(a, '@kp5')
    epilogue(a, ACC0, 6)
    load_g1(a)
    a(f's_branch {LJ}')
    a.label(LB)
    phase0(1)
    q = Q(a)
    finish_stats()
    epilogue(a, ACC0, 1); q.add('st')
    a('s_barrier')
    mfma_phase(a, ACC0, 3, w_pieces(5, 1) + w_pieces(6, 2)); q.add('W5', 8); q.add('W6', 8)
    a('s_barrier')
    epilogue(a, ACC0, 3); q.add('st')
    p4_setup(a)
    q.wait('W5')
    a('s_barrier')
    mfma_phase(a, ACC0, 1, wd_pieces(3) + wd_pieces(4)); q.add('wd', 8)
    q.wait('W6')
    a('s_barrier')
    L7a = a.newlabel('L_p7a')
    L7b = a.newlabel('L_p7b')
    a(f's_lshr_b32 {T[5]}, {sT64}, 1')
    a(f's_lshl_b32 {T[5]}, {T[5]}, 8')
    a(f's_add_u32 {T[5]}, {T[5]}, {CNT3A}')
    a(f's_cmp_eq_u32 {sWave}, 7')
    a(f's_cbranch_scc0 {L7a}')
    a(f'v_mov_b32 v116, 0')
    a(f'buffer_load_dword v117, v116, {SWS}, {T[5]} offen sc1')
    a.label(L7a)
    epilogue(a, ACC0, 5)
    a(f's_cmp_eq_u32 {sWave}, 7')
    a(f's_cbranch_scc0 {L7b}')
    a('s_waitcnt vmcnt(1)')
    a(f'v_cmp_gt_u32 vcc, 16, v117')
    a(f's_cbranch_vccz {L7b}')
    poll_ge(a, T[5], 1, 256, 16, 'v117', 'v116', 'b3a')
    a.label(L7b)
    a('s_waitcnt vmcnt(9)')
    a('s_barrier')
    Lb = a.newlabel('L_arr3b')
    a(f's_cmp_eq_u32 {sWave}, 4')
    a(f's_cbranch_scc0 {Lb}')
    a(f's_lshl_b32 {T[1]}, {sTB}, 8')
    a(f's_add_u32 {T[1]}, {T[1]}, {CNT3B}')
    arrive(a, T[1], f'v{vT0}', f'v{vT1}')
    a.label(Lb)
    load_g1(a)
    a.label(LJ)
    G.stamp(a, 'P3end'); G.stamp(a, '@kP3end')
    a('s_waitcnt vmcnt(12)')
    a('s_barrier')
    G.stamp(a, 'drain3')
    Lb3 = a.newlabel('L_b3')
    a(f's_cmp_eq_u32 {sWave}, 0')
    a(f's_cbranch_scc0 {Lb3}')
    a(f's_lshl_b32 {T[1]}, {sTB}, 8')
    a(f's_add_u32 {T[1]}, {T[1]}, {CNT3}')
    arrive(a, T[1], f'v{vT0}', f'v{vT1}')
    a.label(Lb3)


G1R, G2R = 128, 176
vL, vAA, vAA1 = 7, 2, 11
vRW, vRR, vRS, vOUT = 92, [93, 94, 95], 96, 97


def g_load(a, nn):
    reg = G1R + 4 * nn
    a(f's_add_u32 {T[0]}, {sG}, {kconst(nn) * 1024}')
    a(f'buffer_load_dwordx4 {vr(reg, 4)}, v{vL}, {SWS}, {T[0]} offen')


def load_g1(a):
    for nn in range(12):
        g_load(a, nn)


def p4_setup(a):
    vT, vT2 = 14, 15
    a(f's_and_b32 {sTT}, {sWave}, 1')
    a(f's_lshr_b32 {sKQ}, {sWave}, 1')
    a(f's_mul_i32 {sD8}, {sKQ}, {7 * 16 * 1024}')
    a(f's_lshl_b32 {sG}, {sT64}, 1')
    a(f's_add_u32 {sG}, {sG}, {sTT}')
    a(f's_mul_i32 {sG}, {sG}, 112')
    a(f's_mul_i32 {T[0]}, {sKQ}, 7')
    a(f's_add_u32 {sG}, {sG}, {T[0]}')
    a(f's_lshl_b32 {sG}, {sG}, 10')
    a(f's_add_u32 {sG}, {sG}, {GG}')
    a(f'v_and_b32 v{vT}, 15, v0')
    a(f'v_lshrrev_b32 v{vT}, 2, v{vT}')
    a(f'v_lshrrev_b32 v{vT2}, 5, v0')
    a(f'v_lshl_add_u32 v{vT2}, v{vT2}, 3, v{vT}')
    a(f's_lshl_b32 {T[0]}, {sKQ}, 5')
    a(f'v_add_u32 v{vT2}, {T[0]}, v{vT2}')
    a(f'v_lshlrev_b32 v{vAA}, 7, v{vT2}')
    a(f'v_bfe_u32 v{vT}, v{vT}, 1, 1')
    a(f'v_lshlrev_b32 v{vT}, 2, v{vT}')
    a(f'v_bfe_u32 v{vT2}, v0, 4, 1')
    a(f'v_lshlrev_b32 v{vT2}, 1, v{vT2}')
    a(f'v_bfe_u32 v8, v0, 1, 1')
    a(f'v_add_u32 v{vT2}, v{vT2}, v8')
    a(f'v_xor_b32 v9, v{vT2}, v{vT}')
    a(f'v_or_b32 v{vT2}, 4, v{vT2}')
    a(f'v_xor_b32 v10, v{vT2}, v{vT}')
    a(f'v_and_b32 v8, 1, v0')
    a(f'v_lshlrev_b32 v8, 3, v8')
    a(f'v_add_u32 v{vAA}, v{vAA}, v8')
    a(f'v_lshl_add_u32 v{vAA1}, v10, 4, v{vAA}')
    a(f'v_lshl_add_u32 v{vAA}, v9, 4, v{vAA}')
    a(f'v_lshrrev_b32 v{vT}, 3, v0')
    a(f'v_and_b32 v{vT2}, 7, v0')
    a(f'v_lshlrev_b32 v{vT2}, 4, v{vT2}')
    a(f'v_lshl_add_u32 v13, v{vT}, 12, v{vT2}')

    a(f's_lshl_b32 {T[0]}, {sTT}, 2')
    a(f's_add_u32 {T[0]}, {T[0]}, {sKQ}')
    a(f's_lshl_b32 {T[0]}, {T[0]}, 13')
    a(f's_add_u32 {T[0]}, {T[0]}, {RED}')
    a(f'v_add_u32 v{vRW}, {T[0]}, v{vL}')
    for n_ in range(3):
        a(f's_add_u32 {T[0]}, {sKQ}, {n_ + 1}')
        a(f's_and_b32 {T[0]}, {T[0]}, 3')
        a(f's_lshl_b32 {T[0]}, {T[0]}, 13')
        a(f's_lshl_b32 {T[1]}, {sTT}, 15')
        a(f's_add_u32 {T[0]}, {T[0]}, {T[1]}')
        a(f's_lshl_b32 {T[1]}, {sKQ}, 11')
        a(f's_add_u32 {T[0]}, {T[0]}, {T[1]}')
        a(f's_add_u32 {T[0]}, {T[0]}, {RED}')
        a(f'v_add_u32 v{vRR[n_]}, {T[0]}, v{vL}')
    a(f'v_and_b32 v{vT2}, 15, v0')
    a(f'v_lshrrev_b32 v8, 2, v{vT2}')
    a(f'v_lshrrev_b32 v9, 5, v0')
    a(f'v_lshl_add_u32 v8, v9, 2, v8')
    a(f's_lshl_b32 {T[0]}, {sKQ}, 4')
    a(f'v_add_u32 v8, {T[0]}, v8')
    a(f'v_lshlrev_b32 v8, 7, v8')
    a(f'v_bfe_u32 v9, v0, 4, 1')
    a(f'v_lshlrev_b32 v9, 5, v9')
    a(f'v_add_u32 v8, v8, v9')
    a(f'v_and_b32 v9, 3, v0')
    a(f'v_lshl_add_u32 v8, v9, 3, v8')
    a(f's_lshl_b32 {T[0]}, {sTT}, 6')
    a(f's_add_u32 {T[0]}, {T[0]}, {RESID}')
    a(f'v_add_u32 v{vRS}, {T[0]}, v8')
    srd(a, SB, P_OUT, 2048 * 1024)
    a(f'v_and_b32 v9, 31, v0')
    a(f'v_lshlrev_b32 v9, 10, v9')
    a(f'v_lshrrev_b32 v10, 5, v0')
    a(f'v_lshl_add_u32 v{vOUT}, v10, 4, v9')
    a(f's_lshl_b32 {T[2]}, {sT64}, 1')
    a(f's_add_u32 {T[2]}, {T[2]}, {sTT}')
    a(f's_lshl_b32 {T[2]}, {T[2]}, 15')
    a(f's_lshl_b32 {T[1]}, {sDB}, 7')
    a(f's_add_u32 {T[2]}, {T[2]}, {T[1]}')
    a(f's_lshl_b32 {T[1]}, {sKQ}, 5')
    a(f's_add_u32 {T[2]}, {T[2]}, {T[1]}')


def p4(a, dbg):
    a.comment('================ P4: down GEMM + residual')
    vT, vT2 = 14, 15
    ACCa, ACCb = 16, 32
    AF = 48
    NC = 14
    q = Q(a)
    for nn in range(12):
        q.add(('g', nn))
    dma_wd8(a, 7); dma_wd8(a, 8); q.add('wd78', 4)
    a(f's_lshl_b32 {T[0]}, {sDB}, 6')
    a(f's_lshl_b32 {T[1]}, {sWave}, 3')
    a(f's_add_u32 {T[0]}, {T[0]}, {T[1]}')
    a(f's_lshl_b32 {T[0]}, {T[0]}, 12')
    a(f's_lshl_b32 {T[1]}, {sT64}, 7')
    a(f's_add_u32 {T[0]}, {T[0]}, {T[1]}')
    a(f's_add_u32 {T[0]}, {T[0]}, {HT}')
    a(f's_lshl_b32 {T[1]}, {sWave}, 10')
    a(f's_add_u32 m0, {T[1]}, {RESID}')
    a('s_nop 0')
    a(f'buffer_load_dwordx4 v13, {SWS}, {T[0]} offen lds')
    q.add('res')
    G.stamp(a, 'P4start')

    def early_look(wv, cnt):
        L = a.newlabel('L_look')
        a(f's_cmp_eq_u32 {sWave}, {wv}')
        a(f's_cbranch_scc0 {L}')
        a(f's_lshr_b32 {T[5]}, {sT64}, 1')
        a(f's_lshl_b32 {T[5]}, {T[5]}, 8')
        a(f's_add_u32 {T[5]}, {T[5]}, {cnt}')
        a('v_mov_b32 v80, 0')
        a(f'buffer_load_dword v81, v80, {SWS}, {T[5]} offen sc1')
        a.label(L)
    early_look(7, CNT3B)
    g2_next = 12
    AFS = [48, 64]

    def a_reads(c):
        slot = c % NWD
        af = AFS[c & 1]
        a(f'v_add_u32 v12, {slot * WDSLOT}, v{vAA}')
        a(f'v_add_u32 v13, {slot * WDSLOT}, v{vAA1}')
        out = []
        for i in range(2):
            for dt, va in ((0, 12), (1, 13)):
                for rd in range(2):
                    off = i * 16 * 128 + rd * 4 * 128
                    out.append(f'ds_read_b64_tr_b16 {vr(af + 8 * i + 4 * dt + 2 * rd, 2)}, v{va} offset:{off}')
        return out
    for x in a_reads(0):
        a(x)
    for c in range(NC):
        if c in (2, 6):
            wv, cnt = (7, CNT3B) if c == 2 else (6, CNT3)
            if c == 6:
                q.wait('wd78')
            L7 = a.newlabel('L_p4poll')
            a(f's_cmp_eq_u32 {sWave}, {wv}')
            a(f's_cbranch_scc0 {L7}')
            a('s_waitcnt vmcnt(0)')
            a('v_cmp_gt_u32 vcc, 16, v81')
            a(f's_cbranch_vccz {L7}')
            a(f's_lshr_b32 {T[5]}, {sT64}, 1')
            a(f's_lshl_b32 {T[5]}, {T[5]}, 8')
            a(f's_add_u32 {T[5]}, {T[5]}, {cnt}')
            poll_ge(a, T[5], 1, 256, 16, 'v82', 'v83', 'b3')
            a.label(L7)
            a('s_barrier')
            G.stamp(a, 'f3b' if c == 2 else 'f3')
        if c == 8:
            q.wait('wdr1')
            a('s_barrier')
        if c == 10:
            q.wait('wdr2')
            a('s_barrier')
        tag = ('g', 2 * c + 1)
        if q.has(tag):
            q.wait(tag)
        if c == 0:
            G.stamp(a, 'g0')
        nxt = a_reads(c + 1) if c + 1 < NC else []
        af = AFS[c & 1]
        a('s_waitcnt lgkmcnt(0)')
        fill = list(nxt)
        post = []
        mf = []
        for i in range(2):
            b = G1R + 4 * (2 * c + i)
            cA = '0' if (c == 0 and i == 0) else vr(ACCa, 16)
            cB = '0' if (c == 0 and i == 0) else vr(ACCb, 16)
            mf.append(f'v_mfma_f32_32x32x16_bf16 {vr(ACCa, 16)}, {vr(af + 8 * i, 4)}, {vr(b, 4)}, {cA}')
            mf.append(f'v_mfma_f32_32x32x16_bf16 {vr(ACCb, 16)}, {vr(af + 8 * i + 4, 4)}, {vr(b, 4)}, {cB}')
        a(mf[0])
        for x in fill[:4]:
            a(x)
        a(mf[1])
        for x in fill[4:]:
            a(x)
        a(mf[2])
        ng = {2: 3, 3: 3, 4: 2, 6: 4, 7: 4}.get(c, 0)
        for k_ in range(ng):
            if k_ == (ng + 1) // 2:
                a(mf[3]); mf[3] = None
            g_load(a, g2_next); q.add(('g', g2_next)); g2_next += 1
        if mf[3] is not None:
            a(mf[3])
        if c == 4:
            early_look(6, CNT3)
        if c == 3:
            for c2 in (9, 10):
                dma_wd8(a, c2)
                q.add('wdr1', 2)
        if c == 7:
            for c2 in (11, 12, 13):
                dma_wd8(a, c2)
                q.add('wdr2', 2)
    assert g2_next == 28
    G.stamp(a, 'P4loop'); G.stamp(a, '@kP4loop')
    OWN = 84
    for u in range(4):
        Lo_ = a.newlabel('L_own')
        Ln_ = a.newlabel('L_ownd')
        a(f's_cmp_eq_u32 {sKQ}, {u}')
        a(f's_cbranch_scc1 {Lo_}')
        for hb in range(2):
            a(f'ds_write_b128 v{vRW}, {vr(ACCa + 8 * u + 4 * hb, 4)} offset:{u * 2048 + hb * 1024}')
        a(f's_branch {Ln_}')
        a.label(Lo_)
        for k_ in range(8):
            a(f'v_mov_b32 v{OWN + k_}, v{ACCa + 8 * u + k_}')
        a.label(Ln_)
    RS = 100
    a(f'ds_read_b64_tr_b16 {vr(RS, 2)}, v{vRS}')
    a(f'ds_read_b64_tr_b16 {vr(RS + 2, 2)}, v{vRS} offset:1024')
    a('s_waitcnt lgkmcnt(0)')
    a('s_barrier')
    R = 48
    for n_, va in enumerate(vRR):
        for hb in range(2):
            a(f'ds_read_b128 {vr(R + 8 * n_ + 4 * hb, 4)}, v{va} offset:{hb * 1024}')
    for i in range(4):
        a(f'v_lshlrev_b32 v{72 + 2 * i}, 16, v{RS + i}')
        a(f'v_and_b32 v{73 + 2 * i}, 0xffff0000, v{RS + i}')
    for i in range(8):
        a(f'v_add_f32 v{OWN + i}, v{OWN + i}, v{72 + i}')
    a('s_waitcnt lgkmcnt(2)')
    for i in range(8):
        a(f'v_add_f32 v{R + i}, v{R + i}, v{R + 8 + i}')
    for i in range(8):
        a(f'v_add_f32 v{OWN + i}, v{OWN + i}, v{R + i}')
    a('s_waitcnt lgkmcnt(0)')
    for i in range(8):
        a(f'v_add_f32 v{OWN + i}, v{OWN + i}, v{R + 16 + i}')
    for i in range(4):
        a(f'v_cvt_pk_bf16_f32 v{104 + i}, v{OWN + 2 * i}, v{OWN + 2 * i + 1}')
    a(f'v_permlane32_swap_b32 v104, v106')
    a(f'v_permlane32_swap_b32 v105, v107')
    a(f'buffer_store_dwordx4 v[104:107], v{vOUT}, {SB}, {T[2]} offen')
    G.stamp(a, 'end'); G.stamp(a, '@kend')
```

```python
from gen import *
from asmlib import Asm
import gen as G
import math
import struct


def f2h(x):
    return hex(struct.unpack('<I', struct.pack('<f', x))[0])


K1 = f2h(-2.0 * math.sqrt(2.0 / math.pi) * math.log2(math.e))
K2 = f2h(-2.0 * math.sqrt(2.0 / math.pi) * math.log2(math.e) * 0.044715)

H = 128
ACC0 = 16
ACC1 = 32
WF = 48
WF0 = 48
CS = 64
TMP = 80
CSLD = 96
vWD = 112
vHA = 2
vWA = 3
vM, vR = 4, 5
vC1, vC2, vS2S = 6, 113, 114
vL16 = 7
vS1, vS2, vQ1, vQ2 = 8, 9, 10, 11
vCSA = 12
vHD = 13
vT0, vT1 = 14, 15

sGrp, sTq = T[20], T[21]
sWB = T[22]
sGB = T[23]
SWD = SA


class Q:
    def __init__(self, a):
        self.a = a
        self.q = []

    def add(self, tag, n=1):
        self.q += [tag] * n

    def has(self, tag):
        return tag in self.q

    def wait(self, tag, lgkm=False):
        last = max(i for i, t in enumerate(self.q) if t == tag)
        n = len(self.q) - 1 - last
        self.a(f's_waitcnt vmcnt({n})' + (' lgkmcnt(0)' if lgkm else ''))
        del self.q[:last + 1]


def dma_w8(a, j, slot):
    a(f's_lshl_b32 {T[1]}, {sWave}, 12')
    a(f's_add_u32 {T[0]}, {sWB}, {T[1]}')
    a(f's_add_u32 {T[0]}, {T[0]}, {j * 32768}')
    a(f's_add_u32 m0, {T[1]}, {G.WSLOT[slot]}')
    a('s_nop 0')
    for i in range(4):
        a(f'buffer_load_dwordx4 v{vL16}, {SWS}, {T[0]} offen offset:{1024 * i} lds')


def dma_w4(a, j, slot):
    a(f's_lshl_b32 {T[1]}, {sTq}, 13')
    a(f's_add_u32 {T[0]}, {sWB}, {T[1]}')
    a(f's_add_u32 {T[0]}, {T[0]}, {j * 32768}')
    a(f's_add_u32 m0, {T[1]}, {G.WSLOT[slot]}')
    a('s_nop 0')
    for i in range(4):
        a(f'buffer_load_dwordx4 v{vL16}, {SWS}, {T[0]} offen offset:{1024 * i} lds')
    a(f's_add_u32 m0, m0, 4096')
    a(f's_add_u32 {T[0]}, {T[0]}, 4096')
    for i in range(4):
        a(f'buffer_load_dwordx4 v{vL16}, {SWS}, {T[0]} offen offset:{1024 * i} lds')


def dma_h(a, s):
    a(f's_lshl_b32 {T[1]}, {sWave}, 10')
    a(f's_add_u32 m0, {T[1]}, {HRING + (s % NRING) * 8192}')
    a(f's_mov_b32 {T[0]}, {HT + s * 32 * 4096}')
    a(f'buffer_load_dwordx4 v{vHD}, {SWS}, {T[0]} offen lds')


def dma_wd4(a, c):
    a(f's_lshl_b32 {T[1]}, {sTq}, 12')
    a(f's_add_u32 m0, {T[1]}, {(c % NWD) * WDSLOT}')
    a(f's_lshl_b32 {T[0]}, {sTq}, 15')
    a(f's_add_u32 {T[0]}, {T[0]}, {c * 128 * 1024}')
    for i in range(4):
        if i:
            a(f's_add_u32 m0, m0, 1024')
            a(f's_add_u32 {T[0]}, {T[0]}, 8192')
        a(f'buffer_load_dwordx4 v{vWD}, {SWD}, {T[0]} offen lds')


def dma_wd8(a, c):
    a(f's_bitcmp1_b32 {sWave}, 0')
    a(f's_mov_b32 {T[0]}, {16 * 1024 * kconst(2 * c)}')
    a(f's_cselect_b32 {T[0]}, {16 * 1024 * kconst(2 * c + 1)}, {T[0]}')
    a(f's_add_u32 {T[0]}, {T[0]}, {sD8}')
    a(f's_lshl_b32 {T[1]}, {sWave}, 11')
    a(f's_add_u32 m0, {T[1]}, {(c % NWD) * WDSLOT}')
    a('s_nop 0')
    a(f'buffer_load_dwordx4 v{vWD}, {SWD}, {T[0]} offen lds')
    a(f's_add_u32 m0, m0, 1024')
    a(f's_add_u32 {T[0]}, {T[0]}, 8192')
    a(f'buffer_load_dwordx4 v{vWD}, {SWD}, {T[0]} offen lds')


sWq, sMq, sDq, sM4q = T[16], T[17], T[18], T[19]
sTT, sKQ, sG, sD8 = 's16', 's17', 's18', 's19'


def kconst(nn):
    if nn < 12:
        return 28 * (nn // 3) + nn % 3
    if nn < 20:
        return 28 * ((nn - 12) // 2) + 3 + (nn - 12) % 2
    return 28 * ((nn - 20) // 2) + 5 + (nn - 20) % 2


def w_pieces(j, slot):
    return [[f's_add_u32 m0, {sMq}, {G.WSLOT[slot] + 1024 * i}',
             f's_add_u32 {T[0]}, {sWq}, {j * 32768 + 1024 * i}',
             f'buffer_load_dwordx4 v{vL16}, {SWS}, {T[0]} offen lds'] for i in range(8)]


def wd_pieces(c):
    return [[f's_add_u32 m0, {sM4q}, {(c % NWD) * WDSLOT + 1024 * i}',
             f's_add_u32 {T[0]}, {sDq}, {(16 * kconst(2 * c + (i >> 1)) + 8 * (i & 1)) * 1024}',
             f'buffer_load_dwordx4 v{vWD}, {SWD}, {T[0]} offen lds'] for i in range(4)]


def mfma_phase(a, acc, slot, pieces=(), first=1, last=30, extra=(), pre=(), ring=8, depth=6):
    n = 32
    extra = list(extra)
    nx = len(extra)
    at = {}
    if pieces:
        m = len(pieces)
        for idx, p in enumerate(pieces):
            k = first + (idx * (last - first)) // max(m - 1, 1) if m > 1 else first
            at.setdefault(k, []).append(p)
    a(f'v_add_u32 v{vWA}, {G.WSLOT[slot]}, v{vL16}')
    a('s_setprio 1')
    for x in pre:
        a(x)
    for k in range(depth):
        a(f'ds_read_b128 {vr(WF + 4 * (k % ring), 4)}, v{vWA} offset:{1024 * k}')
    for k in range(n):
        if k + depth < n:
            a(f'ds_read_b128 {vr(WF + 4 * ((k + depth) % ring), 4)}, v{vWA} offset:{1024 * (k + depth)}')
            a(f's_waitcnt lgkmcnt({depth})')
        else:
            a(f's_waitcnt lgkmcnt({n - 1 - k})')
        c = '0' if k == 0 else vr(acc, 16)
        a(f'v_mfma_f32_32x32x16_bf16 {vr(acc, 16)}, {vr(WF + 4 * (k % ring), 4)}, {vr(H + 4 * k, 4)}, {c}')
        for p in at.get(k, []):
            for x in p:
                a(x)
        if k >= 1:
            want = min(nx, (nx * k + 29) // 30)
            while nx - len(extra) < want:
                a(extra.pop(0))
    a('s_setprio 0')


def epi_reads(j, cs):
    return [f'ds_read_b128 {vr(cs + 4 * i, 4)}, v{vCSA} offset:{128 * j + 32 * i}' for i in range(4)]


def epi_body(acc, cs, waits=True):
    o = []
    Z = TMP
    for i in range(4):
        if waits:
            o.append(f's_waitcnt lgkmcnt({3 - i})')
        for k in range(4):
            o.append(f'v_fmac_f32 v{acc + 4 * i + k}, v{vM}, v{cs + 4 * i + k}')
        if i < 2:
            for k in range(4):
                o.append(f'v_mul_f32 v{Z + 4 * i + k}, v{acc + 4 * i + k}, v{acc + 4 * i + k}')
    for i in range(8):
        o.append(f'v_fma_f32 v{Z + i}, v{Z + i}, v{vC2}, v{vC1}')
    for i in range(8):
        o.append(f'v_mul_f32 v{Z + i}, v{Z + i}, v{acc + i}')
    for i in range(8):
        o.append(f'v_exp_f32 v{Z + i}, v{Z + i}')
        o.append(f'v_mul_f32 v{acc + i}, v{acc + i}, v{acc + 8 + i}')
    for i in range(8):
        o.append(f'v_fma_f32 v{Z + i}, v{Z + i}, v{vS2S}, v{vS2S}')
    for i in range(8):
        o.append(f'v_rcp_f32 v{Z + i}, v{Z + i}')
    P = TMP + 8
    for i in range(4):
        o.append(f'v_mul_f32 v{acc + 2 * i}, v{acc + 2 * i}, v{Z + 2 * i}')
        o.append(f'v_mul_f32 v{acc + 2 * i + 1}, v{acc + 2 * i + 1}, v{Z + 2 * i + 1}')
        o.append(f'v_cvt_pk_bf16_f32 v{P + i}, v{acc + 2 * i}, v{acc + 2 * i + 1}')
    o.append(f'v_permlane32_swap_b32 v{P}, v{P + 2}')
    o.append(f'v_permlane32_swap_b32 v{P + 1}, v{P + 3}')
    return o


def epi_store(a, j):
    a(f's_add_u32 {T[3]}, {sGB}, {1024 * j}')
    a(f'buffer_store_dwordx4 {vr(TMP + 8, 4)}, v{vL16}, {SWS}, {T[3]} offen sc1')


def epilogue(a, acc, j):
    for x in epi_reads(j, CS):
        a(x)
    for x in epi_body(acc, CS):
        a(x)
    epi_store(a, j)


def stats_final(a):
    ln_finish(a, vS1, vQ1, vT0, vT1)
    a(f'v_cvt_pk_bf16_f32 v{vT0}, v{vS1}, v{vS1}')
    a(f'v_rcp_f32 v{vR}, v{vQ1}')
    a(f'v_lshlrev_b32 v{vT0}, 16, v{vT0}')
    a(f'v_sub_f32 v{vM}, 0, v{vT0}')
    a(f'v_mul_f32 v{vS2S}, v{vQ1}, v{vQ1}')
    a(f'v_mul_f32 v{vC1}, {K1}, v{vR}')
    a(f'v_mul_f32 v{vC2}, v{vR}, v{vR}')
    a(f'v_mul_f32 v{vC2}, v{vC2}, v{vR}')
    a(f'v_mul_f32 v{vC2}, {K2}, v{vC2}')


def p3(a, dbg):
    a.comment('================ P3: LN2 + gate/up GEMM + GEGLU')
    Lb2 = a.newlabel('L_arr2')
    a(f's_cmp_eq_u32 {sWave}, 7')
    a(f's_cbranch_scc0 {Lb2}')
    a(f's_and_b32 {T[1]}, {sW}, 15')
    a(f's_lshl_b32 {T[1]}, {T[1]}, 8')
    a(f's_add_u32 {T[1]}, {T[1]}, {CNT2}')
    arrive(a, T[1], 'v16', 'v17')
    a.label(Lb2)
    a(f's_lshr_b32 {sGrp}, {sWave}, 2')
    a(f's_and_b32 {sTq}, {sWave}, 3')
    a(f's_mul_i32 {sWB}, {sFB}, {7 * 32768}')
    a(f's_add_u32 {sWB}, {sWB}, {WP}')
    a(f's_lshl_b32 {T[0]}, {sTB}, 2')
    a(f's_add_u32 {T[0]}, {T[0]}, {sTq}')
    a(f's_mul_i32 {T[0]}, {T[0]}, 112')
    a(f's_mul_i32 {T[1]}, {sFB}, 7')
    a(f's_add_u32 {T[0]}, {T[0]}, {T[1]}')
    a(f's_lshl_b32 {T[0]}, {T[0]}, 10')
    a(f's_add_u32 {sGB}, {T[0]}, {GG}')
    a(f'v_lshlrev_b32 v{vL16}, 4, v0')
    a(f'v_lshrrev_b32 v{vT0}, 4, v0')
    a(f'v_and_b32 v{vT1}, 15, v0')
    a(f'v_lshlrev_b32 v{vHD}, 2, v{vT0}')
    a(f'v_xor_b32 v{vHD}, v{vHD}, v{vT1}')
    a(f'v_lshlrev_b32 v{vHD}, 4, v{vHD}')
    a(f's_lshl_b32 {T[0]}, {sWave}, 2')
    a(f'v_add_u32 v{vT0}, {T[0]}, v{vT0}')
    a(f'v_lshl_add_u32 v{vHD}, v{vT0}, 12, v{vHD}')
    a(f's_lshl_b32 {T[0]}, {sTB}, 8')
    a(f'v_add_u32 v{vHD}, {T[0]}, v{vHD}')
    a(f'v_lshrrev_b32 v{TMP}, 2, v{vT1}')
    a(f'v_lshrrev_b32 v{TMP + 1}, 5, v0')
    a(f'v_lshl_add_u32 v{TMP + 1}, v{TMP + 1}, 3, v{TMP}')
    a(f'v_lshlrev_b32 v{vHA}, 8, v{TMP + 1}')
    a(f'v_xor_b32 v{TMP}, {sTq}, v{TMP}')
    a(f'v_lshlrev_b32 v{TMP}, 2, v{TMP}')
    a(f'v_bfe_u32 v{TMP + 1}, v0, 4, 1')
    a(f'v_lshl_add_u32 v{TMP}, v{TMP + 1}, 1, v{TMP}')
    a(f'v_bfe_u32 v{TMP + 1}, v0, 1, 1')
    a(f'v_add_u32 v{TMP}, v{TMP}, v{TMP + 1}')
    a(f'v_lshl_add_u32 v{vHA}, v{TMP}, 4, v{vHA}')
    a(f'v_and_b32 v{TMP}, 1, v0')
    a(f'v_lshl_add_u32 v{vHA}, v{TMP}, 3, v{vHA}')
    a(f's_mul_i32 {T[0]}, {sGrp}, {G.WSLOT[1] - G.WSLOT[0]}')
    a(f's_add_u32 {T[0]}, {T[0]}, {G.WSLOT[0]}')
    a(f'v_add_u32 v{vWA}, {T[0]}, v{vL16}')
    a(f'v_lshrrev_b32 v{vT0}, 5, v0')
    a(f'v_lshlrev_b32 v{vT0}, 4, v{vT0}')
    a(f'v_add_u32 v{vCSA}, {CSL}, v{vT0}')
    for r_ in (vS1, vS2, vQ1, vQ2):
        a(f'v_mov_b32 v{r_}, 0')
    srd(a, SWD, P_WD, 1792 * 1024)
    a(f'v_lshrrev_b32 v{vT0}, 3, v0')
    a(f'v_bfe_u32 v{vT1}, v0, 4, 1')
    a(f'v_lshlrev_b32 v{vT1}, 2, v{vT1}')
    a(f'v_and_b32 v{vWD}, 7, v0')
    a(f'v_xor_b32 v{vWD}, v{vWD}, v{vT1}')
    a(f'v_lshlrev_b32 v{vWD}, 4, v{vWD}')
    a(f'v_lshl_add_u32 v{vWD}, v{vT0}, 10, v{vWD}')
    a(f's_lshl_b32 {T[1]}, {sDB}, 7')
    a(f'v_add_u32 v{vWD}, {T[1]}, v{vWD}')
    a(f's_lshl_b32 {sMq}, {sTq}, 13')
    a(f's_add_u32 {sWq}, {sWB}, {sMq}')
    a(f's_lshl_b32 {sM4q}, {sTq}, 12')
    a(f's_mul_i32 {sDq}, {sTq}, {7 * 16 * 1024}')
    L7 = a.newlabel('L_p3w7')
    LS6 = a.newlabel('L_S6')
    a('s_barrier')
    a(f's_cmp_eq_u32 {sWave}, 7')
    a(f's_cbranch_scc1 {L7}')
    a(f's_cmp_ge_u32 {sWave}, 4')
    a(f's_cbranch_scc1 {LS6}')
    a(f's_lshl_b32 {T[1]}, {sWave}, 14')
    a(f's_add_u32 {T[0]}, {sWB}, {T[1]}')
    a(f's_add_u32 m0, {T[1]}, {G.WSLOT[0]}')
    for g4 in range(4):
        if g4:
            a('s_add_u32 m0, m0, 4096')
            a(f's_add_u32 {T[0]}, {T[0]}, 4096')
        else:
            a('s_nop 0')
        for i_ in range(4):
            a(f'buffer_load_dwordx4 v{vL16}, {SWS}, {T[0]} offen offset:{1024 * i_} lds')
    a(f's_mul_i32 {T[0]}, {sFB}, {16 * 896}')
    a(f's_add_u32 {T[0]}, {T[0]}, {CSP}')
    a(f'v_lshlrev_b32 v{vT0}, 2, v1')
    a(f'v_min_u32 v{vT0}, {223 * 4}, v{vT0}')
    for q in range(16):
        if q:
            a(f's_add_u32 {T[0]}, {T[0]}, 896')
        a(f'buffer_load_dword v{CSLD + q}, v{vT0}, {SWS}, {T[0]} offen')
    a(f's_branch {LS6}')
    a.label(L7)
    poll_ge(a, CNT2, 16, 256, 16, 'v16', 'v17', 'b2', sleep=4)
    a(f's_and_b32 {T[1]}, {sFB}, 7')
    a(f's_lshl_b32 {T[1]}, {T[1]}, 18')
    a(f's_lshl_b32 {T[0]}, {sTB}, 8')
    a(f's_add_u32 {T[0]}, {T[0]}, {T[1]}')
    a(f's_add_u32 {T[0]}, {T[0]}, {HT}')
    a(f'v_lshlrev_b32 v20, 12, v0')
    a(f'buffer_load_dword v21, v20, {SWS}, {T[0]} offen')
    a(f'buffer_load_dword v21, v20, {SWS}, {T[0]} offen offset:128')
    Lne = a.newlabel('L_noep')
    a(f's_cmp_eq_u32 {sW}, 0')
    a(f's_cbranch_scc0 {Lne}')
    a(f'v_mov_b32 v16, {sTAG}')
    a(f'v_mov_b32 v17, 0')
    a(f's_mov_b32 {T[1]}, {EPOCH}')
    a(f's_mov_b64 {sEX}, exec')
    a('s_mov_b64 exec, 1')
    a(f'buffer_store_dword v16, v17, {SWS}, {T[1]} offen sc1')
    a(f's_mov_b64 exec, {sEX}')
    a.label(Lne)
    a.label(LS6)
    a('s_barrier')
    G.stamp(a, 'S6'); G.stamp(a, '@kS6')
    for s in range(NRING - 1):
        dma_h(a, s)
    SUMR, GRM, ONES = 116, 120, 124

    def phase0(g):
        a(f'v_mov_b32 v{ONES}, 0x3f803f80')
        a(f'v_mov_b32 v{ONES + 1}, 0x3f803f80')

        def compute_slice(s, fill=()):
            fill = list(fill)
            for kk in range(2):
                k = 2 * s + kk
                c = '0' if k == 0 else vr(ACC0, 16)
                hs = vr(H + 4 * k + 2 * g, 2)
                a(f'v_mfma_f32_32x32x16_bf16 {vr(ACC0, 16)}, {vr(WF0 + 8 * (s & 1) + 4 * kk, 4)}, {vr(H + 4 * k, 4)}, {c}')
                while fill:
                    a(fill.pop(0))
                a(f'v_mfma_f32_4x4x4_16b_bf16 {vr(SUMR, 4)}, {vr(ONES, 2)}, {hs}, {"0" if k == 0 else vr(SUMR, 4)}')
                a(f'v_mfma_f32_4x4x4_16b_bf16 {vr(GRM, 4)}, {hs}, {hs}, {"0" if k == 0 else vr(GRM, 4)}')
            for x in fill:
                a(x)
        q0 = Q(a)
        for s in range(NRING - 1):
            q0.add(('h', s))
        for s in range(16):
            if s in (7, 8) and g == 0:
                G.stamp(a, f'@a{s}')
            q0.wait(('h', s), lgkm=True)
            if s in (7, 8) and g == 0:
                G.stamp(a, f'@b{s}')
            a('s_barrier')
            if s in (7, 8) and g == 0:
                G.stamp(a, f'@c{s}')
            if g == 0:
                if s == 0:
                    G.stamp(a, 'h0'); G.stamp(a, '@kh0')
                if s in (4, 8, 12):
                    G.stamp(a, f'h{s}')
            base = (s % NRING) * 8192 + HRING
            rds = []
            for kk in range(2):
                k = 2 * s + kk
                rds.append(f'ds_read_b64_tr_b16 {vr(H + 4 * k, 2)}, v{vHA} offset:{base + kk * 4096}')
                rds.append(f'ds_read_b64_tr_b16 {vr(H + 4 * k + 2, 2)}, v{vHA} offset:{base + kk * 4096 + 1024}')
                rds.append(f'ds_read_b128 {vr(WF0 + 8 * (s & 1) + 4 * kk, 4)}, v{vWA} offset:{1024 * k}')
            if s > 0:
                compute_slice(s - 1, rds)
            else:
                for x in rds:
                    a(x)
            if s + NRING - 1 < 16:
                dma_h(a, s + NRING - 1); q0.add(('h', s + NRING - 1))
            if s == 3:
                dma_w8(a, 2, 2); q0.add('W2', 4)
            if s == 0 and g == 0:
                for st in (8, 4, 2, 1):
                    for q in range(st):
                        a(f'v_add_f32 v{CSLD + q}, v{CSLD + q}, v{CSLD + q + st}')
                a(f'v_lshlrev_b32 v{vT0}, 2, v1')
                a(f'v_min_u32 v{vT0}, {223 * 4}, v{vT0}')
                a(f'v_add_u32 v{vT0}, {CSL}, v{vT0}')
                a(f'ds_write_b32 v{vT0}, v{CSLD}')
        a('s_waitcnt lgkmcnt(0)')
        compute_slice(15)
        if g == 0:
            G.stamp(a, 'ph0'); G.stamp(a, '@kph0'); G.stamp(a, '@x0')
        def tail(x):
            x(f'v_and_b32 v{vT0}, 3, v0')
            x(f'v_cmp_eq_u32 vcc, 1, v{vT0}')
            x(f'v_cndmask_b32 v{vQ1}, v{GRM}, v{GRM + 1}, vcc')
            x(f'v_cmp_eq_u32 vcc, 2, v{vT0}')
            x(f'v_cndmask_b32 v{vQ1}, v{vQ1}, v{GRM + 2}, vcc')
            x(f'v_cmp_eq_u32 vcc, 3, v{vT0}')
            x(f'v_cndmask_b32 v{vQ1}, v{vQ1}, v{GRM + 3}, vcc')
            x(f'v_mov_b32 v{vS1}, v{SUMR}')
            x(f'v_mov_b32 v{vS2}, v{SUMR}')
            x(f'v_mov_b32 v{vQ2}, v{vQ1}')
            x(f'v_permlane32_swap_b32 v{vS1}, v{vS2}')
            x(f'v_permlane32_swap_b32 v{vQ1}, v{vQ2}')
            x(f'v_add_f32 v{vS1}, v{vS1}, v{vS2}')
            x(f'v_add_f32 v{vS2}, v{vQ1}, v{vQ2}')
            x(f's_lshl_b32 {T[4]}, {sWave}, 9')
            x(f's_add_u32 {T[4]}, {T[4]}, {SXCH}')
            x(f'v_lshl_add_u32 v{vT0}, v0, 3, {T[4]}')
            x(f'ds_write_b64 v{vT0}, {vr(vS1, 2)}')
            x(f'v_xor_b32 v{vT0}, 2048, v{vT0}')
        assert SXCH % 4096 == 0
        if g == 0:
            tmp = Asm()
            tail(tmp)
            return tmp.lines
        tail(a)
        a('s_waitcnt lgkmcnt(0)')
        a('s_barrier')

    def finish_stats():
        a(f'ds_read_b64 {vr(vQ1, 2)}, v{vT0}')
        a('s_waitcnt lgkmcnt(0)')
        a(f'v_add_f32 v{vS1}, v{vS1}, v{vQ1}')
        a(f'v_add_f32 v{vQ1}, v{vS2}, v{vQ2}')
        stats_final(a)
    LB = a.newlabel('L_grpB')
    LJ = a.newlabel('L_join')
    a(f's_cmp_eq_u32 {sGrp}, 0')
    a(f's_cbranch_scc0 {LB}')
    tailA = phase0(0)
    q = Q(a)
    tmp = Asm()
    tmp(f'v_add_f32 v{vS1}, v{vS1}, v{vQ1}')
    tmp(f'v_add_f32 v{vQ1}, v{vS2}, v{vQ2}')
    stats_final(tmp)
    fin = list(tmp.lines)
    pcs = w_pieces(3, 3) + w_pieces(4, 0)
    at = {}
    for idx, p in enumerate(pcs):
        at.setdefault(6 + (idx * 24) // 15, []).append(p)
    depth, ring, n = 6, 8, 32
    a(f'v_add_u32 v{vWA}, {G.WSLOT[2]}, v{vL16}')
    a('s_setprio 1')
    for k in range(depth):
        a(f'ds_read_b128 {vr(WF + 4 * (k % ring), 4)}, v{vWA} offset:{1024 * k}')
    for k in range(n):
        if k + depth < n:
            a(f'ds_read_b128 {vr(WF + 4 * ((k + depth) % ring), 4)}, v{vWA} offset:{1024 * (k + depth)}')
            a(f's_waitcnt lgkmcnt({depth})')
        else:
            a(f's_waitcnt lgkmcnt({n - 1 - k})')
        c = '0' if k == 0 else vr(ACC1, 16)
        a(f'v_mfma_f32_32x32x16_bf16 {vr(ACC1, 16)}, {vr(WF + 4 * (k % ring), 4)}, {vr(H + 4 * k, 4)}, {c}')
        if k <= 3:
            for _ in range(5):
                if tailA:
                    a(tailA.pop(0))
        if k == 5:
            assert not tailA
            a('s_waitcnt lgkmcnt(2)')
            a('s_barrier')
            a(f'ds_read_b64 {vr(vQ1, 2)}, v{vT0}')
        for p in at.get(k, []):
            for x in p:
                a(x)
        if k >= 12:
            for _ in range(2):
                if fin:
                    a(fin.pop(0))
    for x in fin:
        a(x)
    a('s_setprio 0')
    q.add('W3', 8); q.add('W4', 8)
    G.stamp(a, '@x3')
    q.wait('W3')
    G.stamp(a, '@x4')
    a('s_barrier')
    G.stamp(a, 'p1'); G.stamp(a, '@kp1'); G.stamp(a, '@x5')
    epilogue(a, ACC0, 0); q.add('st')
    epilogue(a, ACC1, 2); q.add('st')
    q.wait('W4')
    a('s_barrier')
    G.stamp(a, 'p2'); G.stamp(a, '@kp2')
    mfma_phase(a, ACC0, 0, wd_pieces(0) + wd_pieces(1) + wd_pieces(2)); q.add('wd', 12)
    q.wait('st')
    a('s_barrier')
    G.stamp(a, 'p3'); G.stamp(a, '@kp3')
    La = a.newlabel('L_arr3a')
    a(f's_cmp_eq_u32 {sWave}, 0')
    a(f's_cbranch_scc0 {La}')
    a(f's_lshl_b32 {T[1]}, {sTB}, 8')
    a(f's_add_u32 {T[1]}, {T[1]}, {CNT3A}')
    arrive(a, T[1], f'v{vT0}', f'v{vT1}')
    a.label(La)
    epilogue(a, ACC0, 4); q.add('st')
    p4_setup(a)
    a('s_barrier')
    G.stamp(a, 'p4'); G.stamp(a, '@kp4')
    mfma_phase(a, ACC0, 2, wd_pieces(5) + wd_pieces(6)); q.add('wd', 8)
    q.wait('st')
    a('s_barrier')
    G.stamp(a, 'p5'); G.stamp(a, '@kp5')
    epilogue(a, ACC0, 6)
    load_g1(a)
    a(f's_branch {LJ}')
    a.label(LB)
    phase0(1)
    q = Q(a)
    finish_stats()
    epilogue(a, ACC0, 1); q.add('st')
    a('s_barrier')
    mfma_phase(a, ACC0, 3, w_pieces(5, 1) + w_pieces(6, 2)); q.add('W5', 8); q.add('W6', 8)
    a('s_barrier')
    epilogue(a, ACC0, 3); q.add('st')
    p4_setup(a)
    q.wait('W5')
    a('s_barrier')
    mfma_phase(a, ACC0, 1, wd_pieces(3) + wd_pieces(4)); q.add('wd', 8)
    q.wait('W6')
    a('s_barrier')
    L7a = a.newlabel('L_p7a')
    L7b = a.newlabel('L_p7b')
    a(f's_lshr_b32 {T[5]}, {sT64}, 1')
    a(f's_lshl_b32 {T[5]}, {T[5]}, 8')
    a(f's_add_u32 {T[5]}, {T[5]}, {CNT3A}')
    a(f's_cmp_eq_u32 {sWave}, 7')
    a(f's_cbranch_scc0 {L7a}')
    a(f'v_mov_b32 v116, 0')
    a(f'buffer_load_dword v117, v116, {SWS}, {T[5]} offen sc1')
    a.label(L7a)
    epilogue(a, ACC0, 5)
    a(f's_cmp_eq_u32 {sWave}, 7')
    a(f's_cbranch_scc0 {L7b}')
    a('s_waitcnt vmcnt(1)')
    a(f'v_cmp_gt_u32 vcc, 16, v117')
    a(f's_cbranch_vccz {L7b}')
    poll_ge(a, T[5], 1, 256, 16, 'v117', 'v116', 'b3a')
    a.label(L7b)
    a('s_waitcnt vmcnt(9)')
    a('s_barrier')
    Lb = a.newlabel('L_arr3b')
    a(f's_cmp_eq_u32 {sWave}, 4')
    a(f's_cbranch_scc0 {Lb}')
    a(f's_lshl_b32 {T[1]}, {sTB}, 8')
    a(f's_add_u32 {T[1]}, {T[1]}, {CNT3B}')
    arrive(a, T[1], f'v{vT0}', f'v{vT1}')
    a.label(Lb)
    load_g1(a)
    a.label(LJ)
    G.stamp(a, 'P3end'); G.stamp(a, '@kP3end')
    a('s_waitcnt vmcnt(12)')
    a('s_barrier')
    G.stamp(a, 'drain3')
    Lb3 = a.newlabel('L_b3')
    a(f's_cmp_eq_u32 {sWave}, 0')
    a(f's_cbranch_scc0 {Lb3}')
    a(f's_lshl_b32 {T[1]}, {sTB}, 8')
    a(f's_add_u32 {T[1]}, {T[1]}, {CNT3}')
    arrive(a, T[1], f'v{vT0}', f'v{vT1}')
    a.label(Lb3)


G1R, G2R = 128, 176
vL, vAA, vAA1 = 7, 2, 11
vRW, vRR, vRS, vOUT = 92, [93, 94, 95], 96, 97


def g_load(a, nn):
    reg = G1R + 4 * nn
    a(f's_add_u32 {T[0]}, {sG}, {kconst(nn) * 1024}')
    a(f'buffer_load_dwordx4 {vr(reg, 4)}, v{vL}, {SWS}, {T[0]} offen')


def load_g1(a):
    for nn in range(12):
        g_load(a, nn)


def p4_setup(a):
    vT, vT2 = 14, 15
    a(f's_and_b32 {sTT}, {sWave}, 1')
    a(f's_lshr_b32 {sKQ}, {sWave}, 1')
    a(f's_mul_i32 {sD8}, {sKQ}, {7 * 16 * 1024}')
    a(f's_lshl_b32 {sG}, {sT64}, 1')
    a(f's_add_u32 {sG}, {sG}, {sTT}')
    a(f's_mul_i32 {sG}, {sG}, 112')
    a(f's_mul_i32 {T[0]}, {sKQ}, 7')
    a(f's_add_u32 {sG}, {sG}, {T[0]}')
    a(f's_lshl_b32 {sG}, {sG}, 10')
    a(f's_add_u32 {sG}, {sG}, {GG}')
    a(f'v_and_b32 v{vT}, 15, v0')
    a(f'v_lshrrev_b32 v{vT}, 2, v{vT}')
    a(f'v_lshrrev_b32 v{vT2}, 5, v0')
    a(f'v_lshl_add_u32 v{vT2}, v{vT2}, 3, v{vT}')
    a(f's_lshl_b32 {T[0]}, {sKQ}, 5')
    a(f'v_add_u32 v{vT2}, {T[0]}, v{vT2}')
    a(f'v_lshlrev_b32 v{vAA}, 7, v{vT2}')
    a(f'v_bfe_u32 v{vT}, v{vT}, 1, 1')
    a(f'v_lshlrev_b32 v{vT}, 2, v{vT}')
    a(f'v_bfe_u32 v{vT2}, v0, 4, 1')
    a(f'v_lshlrev_b32 v{vT2}, 1, v{vT2}')
    a(f'v_bfe_u32 v8, v0, 1, 1')
    a(f'v_add_u32 v{vT2}, v{vT2}, v8')
    a(f'v_xor_b32 v9, v{vT2}, v{vT}')
    a(f'v_or_b32 v{vT2}, 4, v{vT2}')
    a(f'v_xor_b32 v10, v{vT2}, v{vT}')
    a(f'v_and_b32 v8, 1, v0')
    a(f'v_lshlrev_b32 v8, 3, v8')
    a(f'v_add_u32 v{vAA}, v{vAA}, v8')
    a(f'v_lshl_add_u32 v{vAA1}, v10, 4, v{vAA}')
    a(f'v_lshl_add_u32 v{vAA}, v9, 4, v{vAA}')
    a(f'v_lshrrev_b32 v{vT}, 3, v0')
    a(f'v_and_b32 v{vT2}, 7, v0')
    a(f'v_lshlrev_b32 v{vT2}, 4, v{vT2}')
    a(f'v_lshl_add_u32 v13, v{vT}, 12, v{vT2}')


def p4_tail_setup(a):
    vT, vT2 = 14, 15
    a(f's_lshl_b32 {T[0]}, {sTT}, 2')
    a(f's_add_u32 {T[0]}, {T[0]}, {sKQ}')
    a(f's_lshl_b32 {T[0]}, {T[0]}, 13')
    a(f's_add_u32 {T[0]}, {T[0]}, {RED}')
    a(f'v_add_u32 v{vRW}, {T[0]}, v{vL}')
    for n_ in range(3):
        a(f's_add_u32 {T[0]}, {sKQ}, {n_ + 1}')
        a(f's_and_b32 {T[0]}, {T[0]}, 3')
        a(f's_lshl_b32 {T[0]}, {T[0]}, 13')
        a(f's_lshl_b32 {T[1]}, {sTT}, 15')
        a(f's_add_u32 {T[0]}, {T[0]}, {T[1]}')
        a(f's_lshl_b32 {T[1]}, {sKQ}, 11')
        a(f's_add_u32 {T[0]}, {T[0]}, {T[1]}')
        a(f's_add_u32 {T[0]}, {T[0]}, {RED}')
        a(f'v_add_u32 v{vRR[n_]}, {T[0]}, v{vL}')
    a(f'v_and_b32 v{vT2}, 15, v0')
    a(f'v_lshrrev_b32 v8, 2, v{vT2}')
    a(f'v_lshrrev_b32 v9, 5, v0')
    a(f'v_lshl_add_u32 v8, v9, 2, v8')
    a(f's_lshl_b32 {T[0]}, {sKQ}, 4')
    a(f'v_add_u32 v8, {T[0]}, v8')
    a(f'v_lshlrev_b32 v8, 7, v8')
    a(f'v_bfe_u32 v9, v0, 4, 1')
    a(f'v_lshlrev_b32 v9, 5, v9')
    a(f'v_add_u32 v8, v8, v9')
    a(f'v_and_b32 v9, 3, v0')
    a(f'v_lshl_add_u32 v8, v9, 3, v8')
    a(f's_lshl_b32 {T[0]}, {sTT}, 6')
    a(f's_add_u32 {T[0]}, {T[0]}, {RESID}')
    a(f'v_add_u32 v{vRS}, {T[0]}, v8')
    srd(a, SB, P_OUT, 2048 * 1024)
    a(f'v_and_b32 v9, 31, v0')
    a(f'v_lshlrev_b32 v9, 10, v9')
    a(f'v_lshrrev_b32 v10, 5, v0')
    a(f'v_lshl_add_u32 v{vOUT}, v10, 4, v9')
    a(f's_lshl_b32 {T[2]}, {sT64}, 1')
    a(f's_add_u32 {T[2]}, {T[2]}, {sTT}')
    a(f's_lshl_b32 {T[2]}, {T[2]}, 15')
    a(f's_lshl_b32 {T[1]}, {sDB}, 7')
    a(f's_add_u32 {T[2]}, {T[2]}, {T[1]}')
    a(f's_lshl_b32 {T[1]}, {sKQ}, 5')
    a(f's_add_u32 {T[2]}, {T[2]}, {T[1]}')


def p4(a, dbg):
    a.comment('================ P4: down GEMM + residual')
    vT, vT2 = 14, 15
    ACCa, ACCb = 16, 32
    AF = 48
    NC = 14
    q = Q(a)
    for nn in range(12):
        q.add(('g', nn))
    dma_wd8(a, 7); dma_wd8(a, 8); q.add('wd78', 4)
    a(f's_lshl_b32 {T[0]}, {sDB}, 6')
    a(f's_lshl_b32 {T[1]}, {sWave}, 3')
    a(f's_add_u32 {T[0]}, {T[0]}, {T[1]}')
    a(f's_lshl_b32 {T[0]}, {T[0]}, 12')
    a(f's_lshl_b32 {T[1]}, {sT64}, 7')
    a(f's_add_u32 {T[0]}, {T[0]}, {T[1]}')
    a(f's_add_u32 {T[0]}, {T[0]}, {HT}')
    a(f's_lshl_b32 {T[1]}, {sWave}, 10')
    a(f's_add_u32 m0, {T[1]}, {RESID}')
    a('s_nop 0')
    a(f'buffer_load_dwordx4 v13, {SWS}, {T[0]} offen lds')
    q.add('res')
    G.stamp(a, 'P4start')

    def early_look(wv, cnt):
        L = a.newlabel('L_look')
        a(f's_cmp_eq_u32 {sWave}, {wv}')
        a(f's_cbranch_scc0 {L}')
        a(f's_lshr_b32 {T[5]}, {sT64}, 1')
        a(f's_lshl_b32 {T[5]}, {T[5]}, 8')
        a(f's_add_u32 {T[5]}, {T[5]}, {cnt}')
        a('v_mov_b32 v80, 0')
        a(f'buffer_load_dword v81, v80, {SWS}, {T[5]} offen sc1')
        a.label(L)
    early_look(7, CNT3B)
    g2_next = 12
    AFS = [48, 64]

    def a_reads(c):
        slot = c % NWD
        af = AFS[c & 1]
        a(f'v_add_u32 v12, {slot * WDSLOT}, v{vAA}')
        a(f'v_add_u32 v13, {slot * WDSLOT}, v{vAA1}')
        out = []
        for i in range(2):
            for dt, va in ((0, 12), (1, 13)):
                for rd in range(2):
                    off = i * 16 * 128 + rd * 4 * 128
                    out.append(f'ds_read_b64_tr_b16 {vr(af + 8 * i + 4 * dt + 2 * rd, 2)}, v{va} offset:{off}')
        return out
    for x in a_reads(0):
        a(x)
    for c in range(NC):
        if c in (2, 6):
            wv, cnt = (7, CNT3B) if c == 2 else (6, CNT3)
            if c == 6:
                q.wait('wd78')
            L7 = a.newlabel('L_p4poll')
            a(f's_cmp_eq_u32 {sWave}, {wv}')
            a(f's_cbranch_scc0 {L7}')
            a('s_waitcnt vmcnt(0)')
            a('v_cmp_gt_u32 vcc, 16, v81')
            a(f's_cbranch_vccz {L7}')
            a(f's_lshr_b32 {T[5]}, {sT64}, 1')
            a(f's_lshl_b32 {T[5]}, {T[5]}, 8')
            a(f's_add_u32 {T[5]}, {T[5]}, {cnt}')
            poll_ge(a, T[5], 1, 256, 16, 'v82', 'v83', 'b3')
            a.label(L7)
            a('s_barrier')
            G.stamp(a, 'f3b' if c == 2 else 'f3')
        if c == 8:
            q.wait('wdr1')
            a('s_barrier')
        if c == 10:
            q.wait('wdr2')
            a('s_barrier')
        tag = ('g', 2 * c + 1)
        if q.has(tag):
            q.wait(tag)
        if c == 0:
            G.stamp(a, 'g0')
        nxt = a_reads(c + 1) if c + 1 < NC else []
        af = AFS[c & 1]
        a('s_waitcnt lgkmcnt(0)')
        fill = list(nxt)
        post = []
        mf = []
        for i in range(2):
            b = G1R + 4 * (2 * c + i)
            cA = '0' if (c == 0 and i == 0) else vr(ACCa, 16)
            cB = '0' if (c == 0 and i == 0) else vr(ACCb, 16)
            mf.append(f'v_mfma_f32_32x32x16_bf16 {vr(ACCa, 16)}, {vr(af + 8 * i, 4)}, {vr(b, 4)}, {cA}')
            mf.append(f'v_mfma_f32_32x32x16_bf16 {vr(ACCb, 16)}, {vr(af + 8 * i + 4, 4)}, {vr(b, 4)}, {cB}')
        a(mf[0])
        for x in fill[:4]:
            a(x)
        a(mf[1])
        for x in fill[4:]:
            a(x)
        a(mf[2])
        ng = {2: 3, 3: 3, 4: 2, 6: 4, 7: 4}.get(c, 0)
        for k_ in range(ng):
            if k_ == (ng + 1) // 2:
                a(mf[3]); mf[3] = None
            g_load(a, g2_next); q.add(('g', g2_next)); g2_next += 1
        if mf[3] is not None:
            a(mf[3])
        if c == 0:
            p4_tail_setup(a)
        if c == 4:
            early_look(6, CNT3)
        if c == 3:
            for c2 in (9, 10):
                dma_wd8(a, c2)
                q.add('wdr1', 2)
        if c == 7:
            for c2 in (11, 12, 13):
                dma_wd8(a, c2)
                q.add('wdr2', 2)
    assert g2_next == 28
    G.stamp(a, 'P4loop'); G.stamp(a, '@kP4loop')
    OWN = 84
    for u in range(4):
        Lo_ = a.newlabel('L_own')
        Ln_ = a.newlabel('L_ownd')
        a(f's_cmp_eq_u32 {sKQ}, {u}')
        a(f's_cbranch_scc1 {Lo_}')
        for hb in range(2):
            a(f'ds_write_b128 v{vRW}, {vr(ACCa + 8 * u + 4 * hb, 4)} offset:{u * 2048 + hb * 1024}')
        a(f's_branch {Ln_}')
        a.label(Lo_)
        for k_ in range(8):
            a(f'v_mov_b32 v{OWN + k_}, v{ACCa + 8 * u + k_}')
        a.label(Ln_)
    RS = 100
    a(f'ds_read_b64_tr_b16 {vr(RS, 2)}, v{vRS}')
    a(f'ds_read_b64_tr_b16 {vr(RS + 2, 2)}, v{vRS} offset:1024')
    a('s_waitcnt lgkmcnt(0)')
    a('s_barrier')
    R = 48
    for n_, va in enumerate(vRR):
        for hb in range(2):
            a(f'ds_read_b128 {vr(R + 8 * n_ + 4 * hb, 4)}, v{va} offset:{hb * 1024}')
    for i in range(4):
        a(f'v_lshlrev_b32 v{72 + 2 * i}, 16, v{RS + i}')
        a(f'v_and_b32 v{73 + 2 * i}, 0xffff0000, v{RS + i}')
    for i in range(8):
        a(f'v_add_f32 v{OWN + i}, v{OWN + i}, v{72 + i}')
    a('s_waitcnt lgkmcnt(2)')
    for i in range(8):
        a(f'v_add_f32 v{R + i}, v{R + i}, v{R + 8 + i}')
    for i in range(8):
        a(f'v_add_f32 v{OWN + i}, v{OWN + i}, v{R + i}')
    a('s_waitcnt lgkmcnt(0)')
    for i in range(8):
        a(f'v_add_f32 v{OWN + i}, v{OWN + i}, v{R + 16 + i}')
    for i in range(4):
        a(f'v_cvt_pk_bf16_f32 v{104 + i}, v{OWN + 2 * i}, v{OWN + 2 * i + 1}')
    a(f'v_permlane32_swap_b32 v104, v106')
    a(f'v_permlane32_swap_b32 v105, v107')
    a(f'buffer_store_dwordx4 v[104:107], v{vOUT}, {SB}, {T[2]} offen')
    G.stamp(a, 'end'); G.stamp(a, '@kend')
```

```python
import sys
from asmlib import Asm

KNAME = 'sequential_preLN__ssm_conv_s4d__geglu_ffn__prompt_kernel'

CNT2, CNT3, CNT3A, CNT3B, CNTW = 0x41000, 0x42000, 0x43000, 0x44000, 0x45000
EPOCH = 0x0000
PREPF = 0x1000
STATS = 0x4000
CSP = 0x8000
HT = 0x100000
WP = 0x300000
GG = 0x700000
DBGK = 0xE00000
WS_SIZE = 0x1000000

LDS_SIZE = 163840
TROW = 544
TAB_E = 19264
TAB_G = TAB_E
TAB_CH = TAB_E + 64 * TROW
KC = 115712
KCS = 4160
STG_G = 149248
STG_U = STG_G + 7168 + 128
UB = 0
UBS = 4608
PART = 9216
XB = 41984
MISC = 163712

HRING = 0
NRING = 6
WSLOT = [50176, 82944, 115712, 0]
CSL = 148992
SXCH = 151552
WDSLOT = 16384
NWD = 9
RESID = 147456
RED = 81920


def eoff(r):
    return 576 * r + 32 * (r >> 2) + 32 * (r >> 4)


assert eoff(32) + 512 == TAB_E and 2 * TAB_CH <= KC and STG_U + 7168 <= MISC

sW, sWave = 's2', 's3'
SWS = 's[4:7]'
SA, SB, SC = 's[8:11]', 's[12:15]', 's[16:19]'
P_X, P_LA, P_AI, P_CR, P_CI, P_LDT, P_D, P_BX, P_WG, P_WU, P_WD, P_OUT, P_DBG, P_WS = [20 + 2 * i for i in range(14)]
sX, sY, sCP, sTB, sFB, sT64, sDB = 's48', 's49', 's50', 's51', 's52', 's53', 's54'
T = [f's{n}' for n in range(55, 80)]
sEX = 's[90:91]'
sLDT, sDSK = 's80', 's81'
sIt = 's82'
sSpin = 's83'
sTAG = 's84'

LOG2E = 0x3fb8aa3b
INV2PI = 0x3e22f983


def v(n):
    return f'v{n}'


def vr(n, c):
    return f'v[{n}:{n + c - 1}]'


def srd(a, dst, ptr, size):
    n = int(dst[2:dst.index(':')])
    a(f's_mov_b32 s{n}, s{ptr}')
    a(f's_mov_b32 s{n + 1}, s{ptr + 1}')
    a(f's_mov_b32 s{n + 2}, {size}')
    a(f's_mov_b32 s{n + 3}, 0x20000')


SPIN_MAX = 30000
CODE_QUARTER = 9216
STAMPS = {'on': False, 'names': []}
STAMP_REGS = [85, 86, 87, 88, 89, 92, 93, 94, 95, 96, 97, 98, 99]


def stamp(a, name):
    if not STAMPS['on']:
        return
    if STAMPS.get('only') and name.lstrip('@') not in STAMPS['only']:
        return
    i = len(STAMPS['names'])
    STAMPS['names'].append(name)
    a('s_memtime s[100:101]' if name.startswith('@') else 's_memrealtime s[100:101]')
    a('s_waitcnt lgkmcnt(0)')
    a(f's_mov_b32 s{STAMP_REGS[i]}, s100')


def stampval(a, name, sreg):
    if not STAMPS['on']:
        return
    if STAMPS.get('only') and name.lstrip('#') not in STAMPS['only']:
        return
    i = len(STAMPS['names'])
    STAMPS['names'].append(name)
    a(f's_mov_b32 s{STAMP_REGS[i]}, {sreg}')


def dump_stamps_debug(a):
    n = len(STAMPS['names'])
    L = a.newlabel('L_nodbg')
    a(f's_cmp_eq_u32 {sWave}, 0')
    a(f's_cbranch_scc0 {L}')
    srd(a, SC, P_DBG, 256)
    a('v_mov_b32 v2, 0')
    for i in range(n):
        if i == 0:
            a(f's_not_b32 s{STAMP_REGS[0]}, s{STAMP_REGS[0]}')
        a(f'v_mov_b32 v3, s{STAMP_REGS[i]}')
        a(f'v_cmp_eq_u32 vcc, {i}, v0')
        a('s_nop 1')
        a('v_cndmask_b32 v2, v2, v3, vcc')
    a('v_lshlrev_b32 v3, 2, v0')
    a(f's_mov_b64 {sEX}, exec')
    a(f's_mov_b64 exec, {(1 << n) - 1}')
    a(f'buffer_atomic_umax v2, v3, {SC}, 0 offen')
    a(f's_mov_b64 exec, {sEX}')
    a.label(L)


def dump_stamps(a):
    if not STAMPS['on']:
        return
    if STAMPS.get('debug'):
        dump_stamps_debug(a)
        return
    n = len(STAMPS['names'])
    a('v_mov_b32 v2, 0')
    for i in range(n):
        a(f'v_mov_b32 v3, s{STAMP_REGS[i]}')
        a(f'v_cmp_eq_u32 vcc, {i}, v0')
        a('s_nop 1')
        a('v_cndmask_b32 v2, v2, v3, vcc')
    a(f's_lshl_b32 {T[0]}, {sW}, 3')
    a(f's_add_u32 {T[0]}, {T[0]}, {sWave}')
    a(f's_lshl_b32 {T[0]}, {T[0]}, 6')
    a(f's_add_u32 {T[0]}, {T[0]}, {DBGK}')
    a('v_lshlrev_b32 v3, 2, v0')
    a(f's_mov_b64 {sEX}, exec')
    a('s_mov_b64 exec, 0xffff')
    a(f'buffer_store_dword v2, v3, {SWS}, {T[0]} offen')
    a(f's_mov_b64 exec, {sEX}')


def poll_ge(a, off, nlanes, stride, target, vtmp, vtmp2, name, sleep=1):
    L = a.newlabel('L_poll_' + name)
    Ld = a.newlabel('L_polld_' + name)
    a(f'v_min_u32 {vtmp2}, {nlanes - 1}, v0')
    a(f's_mov_b32 {T[0]}, {stride}')
    a(f'v_mul_lo_u32 {vtmp2}, {vtmp2}, {T[0]}')
    if isinstance(off, int):
        a(f's_mov_b32 {T[1]}, {off}')
    else:
        a(f's_mov_b32 {T[1]}, {off}')
    a(f's_mov_b32 {sSpin}, 0')
    a.label(L)
    a(f'buffer_load_dword {vtmp}, {vtmp2}, {SWS}, {T[1]} offen sc1')
    a(f's_add_u32 {sSpin}, {sSpin}, 1')
    a(f's_waitcnt vmcnt(0)')
    a(f'v_cmp_gt_u32 vcc, {target}, {vtmp}')
    a(f's_cmp_ge_u32 {sSpin}, {SPIN_MAX}')
    a(f's_cbranch_scc1 {Ld}')
    a(f's_cbranch_vccz {Ld}')
    a(f's_sleep {sleep}')
    a(f's_branch {L}')
    a.label(Ld)


def arrive(a, off_sgpr_or_int, vtmp, vtmp2):
    a(f'v_mov_b32 {vtmp}, 1')
    a(f'v_mov_b32 {vtmp2}, 0')
    a(f's_mov_b64 {sEX}, exec')
    a(f's_mov_b64 exec, 1')
    a(f'buffer_atomic_add {vtmp}, {vtmp2}, {SWS}, {off_sgpr_or_int} offen')
    a(f's_mov_b64 exec, {sEX}')


def entry(a):
    a(f's_cmp_ge_u32 s2, 256')
    a(f's_cbranch_scc1 L_end')
    a('s_load_dwordx16 s[20:35], s[0:1], 0')
    a('s_load_dwordx8 s[36:43], s[0:1], 64')
    a('s_load_dwordx4 s[44:47], s[0:1], 96')
    a('v_lshrrev_b32 v2, 6, v0')
    a('v_mov_b32 v1, v0')
    a('v_and_b32 v0, 63, v0')
    a(f'v_readfirstlane_b32 {sWave}, v2')
    a(f's_and_b32 {sX}, s2, 7')
    a(f's_lshr_b32 {sY}, s2, 3')
    a(f's_lshl_b32 {sCP}, {sX}, 5')
    a(f's_add_u32 {sCP}, {sCP}, {sY}')
    a(f's_and_b32 {T[0]}, {sX}, 3')
    a(f's_lshl_b32 {T[0]}, {T[0]}, 2')
    a(f's_and_b32 {T[1]}, {sY}, 3')
    a(f's_add_u32 {sTB}, {T[0]}, {T[1]}')
    a(f's_lshr_b32 {T[0]}, {sX}, 2')
    a(f's_lshl_b32 {T[0]}, {T[0]}, 3')
    a(f's_lshr_b32 {sDB}, {sY}, 2')
    a(f's_add_u32 {sFB}, {T[0]}, {sDB}')
    a(f's_lshl_b32 {T[0]}, {sX}, 2')
    a(f's_add_u32 {sT64}, {T[0]}, {T[1]}')
    a('s_waitcnt lgkmcnt(0)')
    srd(a, SWS, P_WS, WS_SIZE)
    stamp(a, 'entry')
    stamp(a, '@c0')


PAIRC = MISC + 64


def p12(a, dbg):
    LU = a.newlabel('L_Upath')
    LS2 = a.newlabel('L_S2')
    a(f's_lshl_b32 {T[0]}, {sCP}, 2')
    a(f's_load_dword {sLDT}, s[{P_LDT}:{P_LDT + 1}], {T[0]}')
    a(f's_load_dword {sDSK}, s[{P_D}:{P_D + 1}], {T[0]}')
    a(f's_load_dword {sTAG}, s[{P_WS}:{P_WS + 1}], {EPOCH}')
    a(f's_cmp_ge_u32 {sWave}, 4')
    a(f's_cbranch_scc1 {LU}')
    kpath(a, dbg)
    a(f's_branch {LS2}')
    a.label(LU)
    upath(a, dbg)
    a.label(LS2)
    a('s_waitcnt lgkmcnt(0)')
    a('s_barrier')
    stamp(a, 'S3')
    p12_rest(a, dbg)


def kpath(a, dbg):
    XR = [4, 8]
    PR = 12
    t0, t1, t2, t3, t4 = 16, 17, 18, 19, 20
    Lnz = a.newlabel('L_nozero')
    a(f's_or_b32 {T[1]}, {sW}, {sWave}')
    a(f's_cmp_eq_u32 {T[1]}, 0')
    a(f's_cbranch_scc0 {Lnz}')
    a(f'v_lshlrev_b32 v{t0}, 8, v0')
    a(f'v_mov_b32 v{t1}, 0')
    a(f's_mov_b32 {T[1]}, {CNT2}')
    a(f'buffer_store_dword v{t1}, v{t0}, {SWS}, {T[1]} offen sc1')
    a(f'v_and_b32 v{t0}, 15, v0')
    a(f'v_lshlrev_b32 v{t0}, 8, v{t0}')
    a(f's_mov_b32 {T[1]}, {CNTW}')
    a(f'buffer_store_dword v{t1}, v{t0}, {SWS}, {T[1]} offen sc1')
    a.label(Lnz)
    srd(a, SA, P_X, 2048 * 1024)
    a(f's_lshl_b32 {T[1]}, {sW}, 2')
    a(f's_add_u32 {T[1]}, {T[1]}, {sWave}')
    a(f's_lshl_b32 {T[1]}, {T[1]}, 11')
    a(f'v_lshlrev_b32 v{t0}, 4, v0')
    a(f'buffer_load_dwordx4 {vr(XR[0], 4)}, v{t0}, {SA}, {T[1]} offen')
    a(f'buffer_load_dwordx4 {vr(XR[1], 4)}, v{t0}, {SA}, {T[1]} offen offset:1024')
    a(f's_lshr_b32 {T[2]}, {sWave}, 1')
    a(f's_lshl_b32 {T[3]}, {sCP}, 1')
    a(f's_add_u32 {T[3]}, {T[3]}, {T[2]}')
    a(f's_lshl_b32 {T[3]}, {T[3]}, 8')
    a(f's_and_b32 {T[4]}, {sWave}, 1')
    a(f's_lshl_b32 {T[4]}, {T[4]}, 7')
    a(f's_add_u32 {T[3]}, {T[3]}, {T[4]}')
    a(f'v_lshlrev_b32 v{t1}, 1, v0')
    for i, p in enumerate((P_LA, P_AI, P_CR, P_CI)):
        srd(a, SB, p, 512 * 128 * 2)
        a(f'buffer_load_ushort v{PR + i}, v{t1}, {SB}, {T[3]} offen')
    a(f'v_mov_b32 v{t2}, {PAIRC}')
    a(f'v_mov_b32 v{t3}, 0')
    a(f'v_mov_b32 v{t4}, 0')
    for o in (0, 4, 8, 12, 16, 20, 24, 28, 32):
        a(f'ds_write_b32 v{t2}, v{t3} offset:{o}')
    a('s_waitcnt lgkmcnt(0)')
    a('s_barrier')
    a(f's_and_b32 {T[19]}, {sW}, 15')
    a(f's_mul_i32 {T[19]}, {T[19]}, {32 * 3584}')
    a(f's_lshr_b32 {T[17]}, {sW}, 4')
    a(f's_mul_i32 {T[17]}, {T[17]}, 224')
    a(f's_add_u32 {T[19]}, {T[19]}, {T[17]}')
    Lq2 = a.newlabel('L_q2')
    for qq in range(2):
        if qq == 1:
            a(f's_cmp_eq_u32 {sWave}, 3')
            a(f's_cbranch_scc1 {Lq2}')
        a(f's_lshl_b32 {T[16]}, {sWave}, 6')
        if qq:
            a(f's_add_u32 {T[16]}, {T[16]}, 256')
        a(f'v_add_u32 v30, {T[16]}, v0')
        a(f's_mov_b32 {T[18]}, 4682')
        a(f'v_mul_lo_u32 v31, v30, {T[18]}')
        a(f'v_lshrrev_b32 v31, 16, v31')
        a(f'v_mul_u32_u24 v32, 14, v31')
        a(f'v_sub_u32 v32, v30, v32')
        a(f's_mov_b32 {T[18]}, 3584')
        a(f'v_mul_lo_u32 v31, v31, {T[18]}')
        a(f'v_lshl_add_u32 v31, v32, 4, v31')
        a(f's_lshl_b32 {T[17]}, {T[16]}, 4')
        srd(a, SB, P_WG, 512 * 3584)
        a(f's_add_u32 m0, {T[17]}, {STG_G}')
        a('s_nop 0')
        a(f'buffer_load_dwordx4 v31, {SB}, {T[19]} offen lds')
        srd(a, SB, P_WU, 512 * 3584)
        a(f's_add_u32 m0, {T[17]}, {STG_U}')
        a('s_nop 0')
        a(f'buffer_load_dwordx4 v31, {SB}, {T[19]} offen lds')
    a.label(Lq2)

    a(f's_mul_i32 {sTAG}, {sTAG}, 1664525')
    a(f's_add_u32 {sTAG}, {sTAG}, 1013904223')
    Lw_ = a.newlabel('L_w3')
    Lwd_ = a.newlabel('L_w3d')
    a(f's_cmp_eq_u32 {sWave}, 3')
    a(f's_cbranch_scc1 {Lw_}')
    a('s_waitcnt vmcnt(8)')
    a(f's_branch {Lwd_}')
    a.label(Lw_)
    a('s_waitcnt vmcnt(6)')
    a.label(Lwd_)
    stamp(a, 'xrow')
    S, Q, ONE = [16, 18], [17, 19], 20
    a(f'v_mov_b32 v{ONE}, 0x3f803f80')
    for r in range(2):
        a(f'v_mov_b32 v{S[r]}, 0')
        a(f'v_mov_b32 v{Q[r]}, 0')
    for i in range(4):
        for r in range(2):
            a(f'v_dot2_f32_bf16 v{S[r]}, v{XR[r] + i}, v{ONE}, v{S[r]}')
            a(f'v_dot2_f32_bf16 v{Q[r]}, v{XR[r] + i}, v{XR[r] + i}, v{Q[r]}')
    for m in ('row_shr:1 row_mask:0xf', 'row_shr:2 row_mask:0xf', 'row_shr:4 row_mask:0xf', 'row_shr:8 row_mask:0xf',
              'row_bcast:15 row_mask:0xa', 'row_bcast:31 row_mask:0xc'):
        for r in range(2):
            a(f'v_add_f32_dpp v{S[r]}, v{S[r]}, v{S[r]} {m} bank_mask:0xf')
            a(f'v_add_f32_dpp v{Q[r]}, v{Q[r]}, v{Q[r]} {m} bank_mask:0xf')
    ln_finish2(a, S, Q, [21, 22])
    GRN = 24
    a(f'v_cvt_pk_bf16_f32 v{GRN}, v{S[0]}, v{Q[0]}')
    a(f'v_cvt_pk_bf16_f32 v{GRN + 2}, v{S[1]}, v{Q[1]}')
    a(f'v_mov_b32 v{GRN + 1}, {sTAG}')
    a(f'v_mov_b32 v{GRN + 3}, {sTAG}')
    a(f's_lshl_b32 {T[1]}, {sW}, 2')
    a(f's_add_u32 {T[1]}, {T[1]}, {sWave}')
    a(f's_lshl_b32 {T[1]}, {T[1]}, 4')
    a(f's_add_u32 {T[1]}, {T[1]}, {STATS}')
    a(f'v_mov_b32 v21, 0')
    a(f's_mov_b64 {sEX}, exec')
    a(f's_mov_b32 exec_lo, 0')
    a(f's_mov_b32 exec_hi, 0x80000000')
    a(f'buffer_store_dwordx4 {vr(GRN, 4)}, v21, {SWS}, {T[1]} offen sc1')
    a(f's_mov_b64 exec, {sEX}')
    a(f'v_mov_b32 v30, {PAIRC + 12}')
    a('v_mov_b32 v31, 1')
    a(f's_mov_b64 {sEX}, exec')
    a('s_mov_b64 exec, 1')
    a('ds_add_u32 v30, v31')
    a(f's_mov_b64 exec, {sEX}')
    stamp(a, 'pub')
    Lw_ = a.newlabel('L_w3')
    Lwd_ = a.newlabel('L_w3d')
    a(f's_cmp_eq_u32 {sWave}, 3')
    a(f's_cbranch_scc1 {Lw_}')
    a('s_waitcnt vmcnt(5)')
    a(f's_branch {Lwd_}')
    a.label(Lw_)
    a('s_waitcnt vmcnt(3)')
    a.label(Lwd_)
    stamp(a, 'par')

    LAR, AIM, CR, CI = PR, PR + 1, PR + 2, PR + 3
    DT, AL, TH = 16, 17, 18
    for i in range(4):
        a(f'v_lshlrev_b32 v{PR + i}, 16, v{PR + i}')
    a(f's_lshl_b32 {T[3]}, {sLDT}, 16')
    a(f's_and_b32 {T[4]}, {sLDT}, 0xffff0000')
    a(f's_cmp_eq_u32 {T[2]}, 0')
    a(f's_cselect_b32 {T[3]}, {T[3]}, {T[4]}')
    a(f'v_mov_b32 v{DT}, {LOG2E}')
    a(f'v_mul_f32 v{LAR}, v{LAR}, v{DT}')
    a(f'v_mul_f32 v{DT}, {T[3]}, v{DT}')
    a(f'v_exp_f32 v{LAR}, v{LAR}')
    a(f'v_exp_f32 v{DT}, v{DT}')
    a(f'v_cvt_pk_bf16_f32 v{19}, v{LAR}, v{DT}')
    a(f'v_lshlrev_b32 v{LAR}, 16, v19')
    a(f'v_and_b32 v{DT}, 0xffff0000, v19')
    a(f'v_mul_f32 v{AL}, v{LAR}, v{DT}')
    a(f'v_mul_f32 v{TH}, v{AIM}, v{DT}')
    a(f'v_mul_f32 v{AL}, {hex(LOG2E | 0x80000000)}, v{AL}')
    a(f'v_mul_f32 v{TH}, {hex(INV2PI)}, v{TH}')
    a(f'v_add_f32 v{DT}, v{DT}, v{DT}')
    a(f'v_mul_f32 v{CR}, v{CR}, v{DT}')
    a(f'v_mul_f32 v{CI}, v{CI}, v{DT}')
    WG, WGN, WE, WEN = 20, 22, 24, 26
    ZG0, ZG1 = [28, 30], [32, 34]
    ZE0, ZE1 = [36, 38], [40, 42]
    MM = [44, 45, 46, 47]
    AA = [48, 49, 50, 51]
    spec = [(WG, '0x42000000', True), (WE, '1.0', False), (ZE1[0], '0x41800000', False), (ZG1[1], '0x44800000', True)]
    for k, (d, p, neg) in enumerate(spec):
        a(f'v_mul_f32 v{MM[k]}, {p}, v{AL}')
        a(f'v_mul_f32 v{AA[k]}, {p}, v{TH}')
    for k, (d, p, neg) in enumerate(spec):
        a(f'v_exp_f32 v{MM[k]}, v{MM[k]}')
        a(f'v_fract_f32 v{AA[k]}, v{AA[k]}')
    for k, (d, p, neg) in enumerate(spec):
        a(f'v_cos_f32 v{d}, v{AA[k]}')
        a(f'v_sin_f32 v{d + 1}, v{AA[k]}')
    for k, (d, p, neg) in enumerate(spec):
        a(f'v_mul_f32 v{d}, v{d}, v{MM[k]}')
        if neg:
            a(f'v_mul_f32_e64 v{d + 1}, -v{d + 1}, v{MM[k]}')
        else:
            a(f'v_mul_f32 v{d + 1}, v{d + 1}, v{MM[k]}')
    for (w, wn) in ((WG, WGN), (WE, WEN)):
        a(f'v_sub_f32 v{wn}, 0, v{w + 1}')
        a(f'v_mov_b32 v{wn + 1}, v{w}')
    a(f'v_mul_f32 v{ZG1[0]}, v{CR}, v{ZG1[1]}')
    a(f'v_mul_f32 v{ZG1[0] + 1}, v{CR}, v{ZG1[1] + 1}')
    a(f'v_fmac_f32 v{ZG1[0]}, v{CI}, v{ZG1[1] + 1}')
    a(f'v_fma_f32 v{ZG1[0] + 1}, -v{CI}, v{ZG1[1]}, v{ZG1[0] + 1}')
    a(f'v_mov_b32 v{ZG0[0]}, v{CR}')
    a(f'v_sub_f32 v{ZG0[0] + 1}, 0, v{CI}')
    a(f'v_mov_b32 v{ZE0[0]}, 1.0')
    a(f'v_mov_b32 v{ZE0[0] + 1}, 0')
    AE, AG = 52, 53
    a(f's_mul_i32 {T[8]}, {T[2]}, {TAB_CH}')
    a(f's_and_b32 {T[9]}, {sWave}, 1')
    a(f's_lshl_b32 {T[9]}, {T[9]}, 8')
    a(f's_add_u32 {T[9]}, {T[8]}, {T[9]}')
    PK = [54, 55, 56, 57]
    TM = [58, 60, 62, 64]

    def cs_a(z, wn, k):
        return [f'v_pk_mul_f32 {vr(TM[k], 2)}, {vr(z, 2)}, {vr(wn, 2)} op_sel:[1,0] op_sel_hi:[1,1]',
                f'v_cvt_pk_bf16_f32 v{PK[k]}, v{z}, v{z + 1}']

    def cs_b(z, zn, w, off, k):
        return [f'v_pk_fma_f32 {vr(zn, 2)}, {vr(z, 2)}, {vr(w, 2)}, {vr(TM[k], 2)} op_sel:[0,0,0] op_sel_hi:[0,1,1]',
                f'ds_write_addtid_b32 v{PK[k]} offset:{off}']
    a(f's_mov_b32 m0, {T[9]}')
    for it in range(4):
        for i in range(8):
            ga = TAB_G + (8 * it + i) * TROW
            chains = [(ZG0[i & 1], ZG0[(i + 1) & 1], WG, WGN, ga),
                      (ZG1[i & 1], ZG1[(i + 1) & 1], WG, WGN, ga + 32 * TROW)]
            e = i >> 1
            if i & 1 == 0:
                chains.append((ZE0[e & 1], ZE0[(e + 1) & 1], WE, WEN, eoff(4 * it + e)))
            else:
                chains.append((ZE1[e & 1], ZE1[(e + 1) & 1], WE, WEN, eoff(16 + 4 * it + e)))
            pa = [cs_a(z, wn, k) for k, (z, zn, w, wn, off) in enumerate(chains)]
            pb = [cs_b(z, zn, w, off, k) for k, (z, zn, w, wn, off) in enumerate(chains)]
            for grp in (pa, pb):
                for n_ in range(2):
                    for c_ in grp:
                        a(c_[n_])
    a(f'v_cvt_pk_bf16_f32 v{PK[0]}, v{ZE1[0]}, v{ZE1[0] + 1}')
    a(f'ds_write_addtid_b32 v{PK[0]} offset:{eoff(32)}')
    stamp(a, 'tabdone')
    a('s_waitcnt vmcnt(1)')
    a(f's_lshl_b32 {T[9]}, {T[2]}, 2')
    a(f's_add_u32 {T[9]}, {T[9]}, {PAIRC}')
    a(f'v_mov_b32 v16, {T[9]}')
    a(f'v_mov_b32 v17, 1')
    a('s_waitcnt lgkmcnt(0)')
    a(f's_mov_b64 {sEX}, exec')
    a('s_mov_b64 exec, 1')
    a('ds_add_u32 v16, v17')
    a(f's_mov_b64 exec, {sEX}')
    Lsp = a.newlabel('L_pair')
    Lspd = a.newlabel('L_paird')
    a(f's_mov_b32 {sSpin}, 0')
    a.label(Lsp)
    a('ds_read_b32 v17, v16')
    a(f's_add_u32 {sSpin}, {sSpin}, 1')
    a('s_waitcnt lgkmcnt(0)')
    a('v_cmp_gt_u32 vcc, 2, v17')
    a(f's_cmp_ge_u32 {sSpin}, {SPIN_MAX * 8}')
    a(f's_cbranch_scc1 {Lspd}')
    a(f's_cbranch_vccnz {Lsp}')
    a.label(Lspd)
    stamp(a, 'S1')

    AL15, GG_ = 16, 17
    a(f'v_and_b32 v{AL15}, 15, v0')
    a(f'v_lshrrev_b32 v{GG_}, 4, v0')
    BG = 18
    a(f'v_mul_u32_u24 v{BG}, {TROW}, v{AL15}')
    a(f'v_lshl_add_u32 v{BG}, v{GG_}, 4, v{BG}')
    a(f's_add_u32 {T[9]}, {T[8]}, {TAB_G}')
    a(f'v_add_u32 v{BG}, {T[9]}, v{BG}')
    KA = 19
    a(f's_mul_i32 {T[9]}, {T[2]}, {4 * KCS}')
    a(f's_add_u32 {T[9]}, {T[9]}, {KC + 4088 - 32}')
    a(f'v_lshlrev_b32 v{KA}, 6, v{AL15}')
    a(f'v_lshl_add_u32 v{KA}, v{GG_}, 3, v{KA}')
    a(f'v_sub_u32 v{KA}, {T[9]}, v{KA}')
    GF = [32, 64]
    EF0, EF1 = 96, 128
    ACC = 160
    EA0, EA1 = 20, 21

    def rho_addr(j):
        base = 128 << j
        seq = []
        for rt, dst in enumerate((EA0, EA1)):
            tmp = 22 + rt
            seq.append([
                f'v_add_u32 v{dst}, {base + 16 * rt}, v{AL15}',
                f'v_cvt_f32_u32 v{dst}, v{dst}',
                f'v_cvt_pk_bf16_f32 v{dst}, v{dst}, v{dst}',
                f'v_lshlrev_b32 v{dst}, 16, v{dst}',
                f'v_cvt_u32_f32 v{dst}, v{dst}',
                f'v_subrev_u32 v{dst}, {base}, v{dst}',
                f'v_lshrrev_b32 v{tmp}, 2, v{dst}',
                f'v_lshrrev_b32 v{tmp + 2}, 4, v{dst}',
                f'v_mul_u32_u24 v{dst}, 576, v{dst}',
                f'v_add_u32 v{tmp}, v{tmp}, v{tmp + 2}',
                f'v_lshl_add_u32 v{dst}, v{tmp}, 5, v{dst}',
                f'v_lshl_add_u32 v{dst}, v{GG_}, 4, v{dst}',
                f'v_add_u32 v{dst}, {T[8]}, v{dst}'])
        for x, y in zip(*seq):
            a(x)
            a(y)

    def load_g(slot, vv):
        for s in range(8):
            a(f'ds_read_b128 {vr(GF[slot] + 4 * s, 4)}, v{BG} offset:{vv * 16 * TROW + 64 * s}')

    def kchain(tiles):
        def mm(k):
            for (gs, acc) in tiles:
                c0 = '0' if k == 0 else vr(acc, 4)
                c1 = '0' if k == 0 else vr(acc + 4, 4)
                a(f'v_mfma_f32_16x16x32_bf16 {vr(acc, 4)}, {vr(EF0 + 4 * k, 4)}, {vr(GF[gs] + 4 * k, 4)}, {c0}')
                a(f'v_mfma_f32_16x16x32_bf16 {vr(acc + 4, 4)}, {vr(EF1 + 4 * k, 4)}, {vr(GF[gs] + 4 * k, 4)}, {c1}')
        for s in range(8):
            a(f'ds_read_b128 {vr(EF0 + 4 * s, 4)}, v{EA0} offset:{64 * s}')
            a(f'ds_read_b128 {vr(EF1 + 4 * s, 4)}, v{EA1} offset:{64 * s}')
            if s >= 3:
                a(f's_waitcnt lgkmcnt(6)')
                mm(s - 3)
        for k in (5, 6, 7):
            a(f's_waitcnt lgkmcnt({2 * (7 - k)})')
            mm(k)

    def kr_write(acc, vv):
        for rt in range(2):
            b = acc + 4 * rt
            a(f'v_cvt_pk_bf16_f32 v{24 + 2 * rt}, v{b + 3}, v{b + 2}')
            a(f'v_cvt_pk_bf16_f32 v{25 + 2 * rt}, v{b + 1}, v{b}')
        if vv:
            a(f'v_subrev_u32 v28, {1024 * vv}, v{KA}')
            ka = 28
        else:
            ka = KA
        a(f'ds_write_b64 v{ka}, v[24:25] offset:32')
        a(f'ds_write_b64 v{ka}, v[26:27]')
    Lp1 = a.newlabel('L_kpart1')
    Lpe = a.newlabel('L_kparte')
    a(f's_and_b32 {T[5]}, {sWave}, 1')
    a(f's_cmp_eq_u32 {T[5]}, 0')
    a(f's_cbranch_scc0 {Lp1}')
    load_g(0, 0)
    rho_addr(0)
    kchain([(0, ACC)])
    rho_addr(1)
    kchain([(0, ACC + 8)])
    a(f'v_cmp_gt_u32 vcc, 8, v{AL15}')
    for i in range(8):
        a(f'v_cndmask_b32 v{ACC + i}, v{ACC + 8 + i}, v{ACC + i}, vcc')
    kr_write(ACC, 0)
    a(f's_branch {Lpe}')
    a.label(Lp1)
    load_g(0, 1)
    rho_addr(2)
    kchain([(0, ACC)])
    load_g(0, 2)
    load_g(1, 3)
    rho_addr(3)
    kr_write(ACC, 1)
    kchain([(0, ACC + 8), (1, ACC + 16)])
    kr_write(ACC + 8, 2)
    kr_write(ACC + 16, 3)
    a.label(Lpe)
    a(f's_mul_i32 {T[9]}, {T[2]}, {4 * KCS}')
    a(f's_mul_i32 {T[11]}, {T[5]}, {2 * KCS}')
    a(f's_add_u32 {T[9]}, {T[9]}, {T[11]}')
    a(f's_add_u32 {T[9]}, {T[9]}, {KC + 4096}')
    a(f'v_lshl_add_u32 v28, v{AL15}, 2, {T[9]}')
    a(f'v_mov_b32 v29, 0')
    a(f'ds_write_b32 v28, v29')
    a(f'ds_write_b32 v28, v29 offset:{KCS}')
    stamp(a, 'C2')
    a(f'v_mov_b32 v16, {PAIRC + 28}')
    a(f's_lshl_b32 {T[9]}, {T[2]}, 2')
    a(f's_add_u32 {T[9]}, {T[9]}, {PAIRC}')
    a(f'v_mov_b32 v18, {T[9]}')
    a(f'v_mov_b32 v17, 1')
    a('s_waitcnt lgkmcnt(0)')
    a(f's_mov_b64 {sEX}, exec')
    a('s_mov_b64 exec, 1')
    a('ds_add_u32 v16, v17')
    a('ds_add_u32 v18, v17')
    a(f's_mov_b64 exec, {sEX}')
    lds_spin(a, 'v18', 'v17', 'v_cmp_gt_u32 vcc, 4', 'L_krpair', sleep=False)
    a(f's_mul_i32 {T[9]}, {T[2]}, {4 * KCS}')
    a(f's_add_u32 {T[9]}, {T[9]}, {KC}')
    a(f's_and_b32 {T[11]}, {sWave}, 1')
    a(f's_lshl_b32 {T[11]}, {T[11]}, 10')
    a(f's_add_u32 {T[9]}, {T[9]}, {T[11]}')
    a(f'v_lshl_add_u32 v16, v0, 4, {T[9]}')
    D = [20, 28]
    for r in range(2):
        a(f'ds_read_b128 {vr(D[r], 4)}, v16 offset:{2048 * r}')
        a(f'ds_read_b64 {vr(D[r] + 4, 2)}, v16 offset:{2048 * r + 16}')
    for r in range(2):
        a(f's_waitcnt lgkmcnt({2 if r == 0 else 3})')
        C1, C2, C3 = 36 + 12 * r, 40 + 12 * r, 44 + 12 * r
        for k in range(4):
            a(f'v_alignbit_b32 v{C1 + k}, v{D[r] + k + 1}, v{D[r] + k}, 16')
            a(f'v_mov_b32 v{C2 + k}, v{D[r] + k + 1}')
            a(f'v_alignbit_b32 v{C3 + k}, v{D[r] + k + 2}, v{D[r] + k + 1}, 16')
        a(f'ds_write_b128 v16, {vr(C1, 4)} offset:{KCS + 2048 * r}')
        a(f'ds_write_b128 v16, {vr(C2, 4)} offset:{2 * KCS + 2048 * r}')
        a(f'ds_write_b128 v16, {vr(C3, 4)} offset:{3 * KCS + 2048 * r}')
    if dbg == 'K':
        a('s_waitcnt lgkmcnt(0)')
        a(f's_lshl_b32 {T[9]}, {sCP}, 13')
        a(f's_lshl_b32 {T[11]}, {T[2]}, 12')
        a(f's_add_u32 {T[9]}, {T[9]}, {T[11]}')
        a(f's_add_u32 {T[9]}, {T[9]}, {DBGK}')
        a(f's_and_b32 {T[11]}, {sWave}, 1')
        a(f's_lshl_b32 {T[11]}, {T[11]}, 10')
        a(f's_add_u32 {T[9]}, {T[9]}, {T[11]}')
        a(f'v_lshlrev_b32 v17, 4, v0')
        a(f'buffer_store_dwordx4 {vr(D[0], 4)}, v17, {SWS}, {T[9]} offen')
        a(f'buffer_store_dwordx4 {vr(D[1], 4)}, v17, {SWS}, {T[9]} offen offset:2048')
    stamp(a, 'C3')


XG = [12, 16]
UP = [68, 76]


def lds_spin(a, vaddr, vtmp, cmp_, label, sleep=True):
    L = a.newlabel(label)
    Ld = a.newlabel(label + 'd')
    a(f's_mov_b32 {sSpin}, 0')
    a.label(L)
    a(f'ds_read_b32 {vtmp}, {vaddr}')
    a(f's_add_u32 {sSpin}, {sSpin}, 1')
    a('s_waitcnt lgkmcnt(0)')
    a(f'{cmp_}, {vtmp}')
    a(f's_cmp_ge_u32 {sSpin}, {SPIN_MAX * 64}')
    a(f's_cbranch_scc1 {Ld}')
    a(f's_cbranch_vccz {Ld}')
    if sleep:
        a('s_sleep 1')
    a(f's_branch {L}')
    a.label(Ld)


def upath(a, dbg):
    t0, t1, t2, t3, t4 = 4, 5, 6, 7, 8
    sUV = T[15]
    a('s_setprio 1')
    a(f's_sub_u32 {sUV}, {sWave}, 4')
    srd(a, SA, P_X, 2048 * 1024)
    a('s_barrier')
    Ln4 = a.newlabel('L_nowarm')
    a(f's_cmp_eq_u32 {sUV}, 0')
    a(f's_cbranch_scc0 {Ln4}')
    a(f'v_lshlrev_b32 v30, 10, v0')
    a(f's_lshl_b32 {T[7]}, {sY}, 16')
    a(f's_lshl_b32 {T[8]}, {sX}, 7')
    a(f's_add_u32 {T[7]}, {T[7]}, {T[8]}')
    a(f'buffer_load_dword v31, v30, {SA}, {T[7]} offen')
    a.label(Ln4)
    Lnc_ = a.newlabel('L_nocode')
    a(f's_cmp_eq_u32 {sUV}, 1')
    a(f's_cbranch_scc0 {Lnc_}')
    a('s_getpc_b64 s[16:17]')
    a.label('L_pcref')
    a(f's_sub_u32 s16, s16, L_pcref-{KNAME}')
    a('s_subb_u32 s17, s17, 0')
    a(f's_mov_b32 s18, L_end-{KNAME}')
    a('s_mov_b32 s19, 0x20000')
    a(f's_and_b32 {T[8]}, {sY}, 3')
    a(f's_mul_i32 {T[8]}, {T[8]}, {CODE_QUARTER}')
    a('v_lshlrev_b32 v30, 7, v0')
    for i_ in range(2):
        a(f'buffer_load_dword v31, v30, {SC}, {T[8]} offen')
        if i_ == 0:
            a(f's_add_u32 {T[8]}, {T[8]}, 8192')
    a.label(Lnc_)
    Lnto = a.newlabel('L_notouch0')
    a(f's_cmp_eq_u32 {sUV}, 3')
    a(f's_cbranch_scc0 {Lnto}')
    a('v_mov_b32 v30, 0')
    a(f's_lshl_b32 {T[8]}, {sW}, 6')
    a(f's_add_u32 {T[8]}, {T[8]}, {STATS}')
    a(f'buffer_load_dword v31, v30, {SWS}, {T[8]} offen sc1')
    a.label(Lnto)
    sR = [T[13], T[14]]
    a(f'v_lshlrev_b32 v{t2}, 12, v0')
    for k in range(2):
        a(f's_lshl_b32 {sR[k]}, {sUV}, 1')
        a(f's_add_u32 {sR[k]}, {sR[k]}, {sY}')
        if k:
            a(f's_add_u32 {sR[k]}, {sR[k]}, 1')
        a(f's_and_b32 {sR[k]}, {sR[k]}, 7')
    for k in range(2):
        a(f's_lshl_b32 {T[8 + k]}, {sR[k]}, 18')
        a(f's_lshl_b32 {T[10]}, {sCP}, 2')
        a(f's_add_u32 {T[8 + k]}, {T[8 + k]}, {T[10]}')
    GR = [20, 28]
    sGA = [T[11], T[12]]
    for k in range(2):
        a(f's_lshl_b32 {sGA[k]}, {sR[k]}, 11')
        a(f's_add_u32 {sGA[k]}, {sGA[k]}, {STATS}')
    a(f'v_lshlrev_b32 v9, 5, v0')
    a('s_waitcnt lgkmcnt(0)')
    a(f's_mul_i32 {sTAG}, {sTAG}, 1664525')
    a(f's_add_u32 {sTAG}, {sTAG}, 1013904223')
    a(f'v_mov_b32 v22, {PAIRC + 12}')
    lds_spin(a, 'v22', 'v23', 'v_cmp_gt_u32 vcc, 4', 'L_pubwait')
    stamp(a, 'gstart')

    def gran_loads(pol=' sc1'):
        for k in range(2):
            a(f'buffer_load_dwordx4 {vr(GR[k], 4)}, v9, {SWS}, {sGA[k]} offen{pol}')
            a(f'buffer_load_dwordx4 {vr(GR[k] + 4, 4)}, v9, {SWS}, {sGA[k]} offen offset:16{pol}')
    for k in range(2):
        for r in range(4):
            a(f'buffer_load_dword v{XG[k] + r}, v{t2}, {SA}, {T[8 + k]} offen offset:{1024 * r}')
    gran_loads('')
    stamp(a, 'gissue')
    a('s_waitcnt vmcnt(4)')
    stamp(a, 'gdone')
    a(f's_mov_b32 {T[4]}, 0x05040100')
    a(f's_mov_b32 {T[5]}, 0x07060302')
    for k in range(2):
        X_, XP = XG[k], UP[k] + 4
        a(f'v_perm_b32 v{XP}, v{X_ + 1}, v{X_}, {T[4]}')
        a(f'v_perm_b32 v{XP + 1}, v{X_ + 3}, v{X_ + 2}, {T[4]}')
        a(f'v_perm_b32 v{XP + 2}, v{X_ + 1}, v{X_}, {T[5]}')
        a(f'v_perm_b32 v{XP + 3}, v{X_ + 3}, v{X_ + 2}, {T[5]}')
    Lchk = a.newlabel('L_gchk')
    Lok = a.newlabel('L_gok')
    a(f's_mov_b32 {sSpin}, 0')
    a.label(Lchk)
    a('s_waitcnt vmcnt(0)')
    for k in range(2):
        for r in range(4):
            a(f'v_xor_b32 v{36 + 4 * k + r}, {sTAG}, v{GR[k] + 2 * r + 1}')
    a('v_or3_b32 v36, v36, v37, v38')
    a('v_or3_b32 v39, v39, v40, v41')
    a('v_or3_b32 v42, v42, v43, v36')
    a('v_or_b32 v36, v39, v42')
    a('v_cmp_ne_u32 vcc, 0, v36')
    a(f's_add_u32 {sSpin}, {sSpin}, 1')
    a(f's_cmp_ge_u32 {sSpin}, {SPIN_MAX}')
    a(f's_cbranch_scc1 {Lok}')
    a(f's_cbranch_vccz {Lok}')
    gran_loads()
    a(f's_branch {Lchk}')
    a.label(Lok)
    stampval(a, '#gspin', sSpin)
    stamp(a, 'gran')
    for k in range(2):
        Mv, Rv = 36, 40
        for r in range(4):
            a(f'v_and_b32 v{Rv + r}, 0xffff0000, v{GR[k] + 2 * r}')
            a(f'v_lshlrev_b32 v{Mv + r}, 16, v{GR[k] + 2 * r}')
            a(f'v_rcp_f32 v{Rv + r}, v{Rv + r}')
        E0, E1 = 52, 60
        for r in range(4):
            a(f'v_lshlrev_b32 v{E0 + r}, 16, v{XG[k] + r}')
            a(f'v_and_b32 v{E1 + r}, 0xffff0000, v{XG[k] + r}')
        for r in range(4):
            a(f'v_sub_f32 v{E0 + r}, v{E0 + r}, v{Mv + r}')
            a(f'v_sub_f32 v{E1 + r}, v{E1 + r}, v{Mv + r}')
        for E in (E0, E1):
            a(f'v_cvt_pk_bf16_f32 v{E + 4}, v{E}, v{E + 1}')
            a(f'v_cvt_pk_bf16_f32 v{E + 5}, v{E + 2}, v{E + 3}')
        for E in (E0, E1):
            a(f'v_lshlrev_b32 v{E}, 16, v{E + 4}')
            a(f'v_and_b32 v{E + 1}, 0xffff0000, v{E + 4}')
            a(f'v_lshlrev_b32 v{E + 2}, 16, v{E + 5}')
            a(f'v_and_b32 v{E + 3}, 0xffff0000, v{E + 5}')
        for r in range(4):
            a(f'v_mul_f32 v{E0 + r}, v{E0 + r}, v{Rv + r}')
            a(f'v_mul_f32 v{E1 + r}, v{E1 + r}, v{Rv + r}')
        for ch, E in enumerate((E0, E1)):
            a(f'v_cvt_pk_bf16_f32 v{UP[k] + 2 * ch}, v{E}, v{E + 1}')
            a(f'v_cvt_pk_bf16_f32 v{UP[k] + 2 * ch + 1}, v{E + 2}, v{E + 3}')
    stamp(a, 'udone')
    a(f'v_mov_b32 v22, {PAIRC + 28}')
    lds_spin(a, 'v22', 'v23', 'v_cmp_gt_u32 vcc, 4', 'L_c2wait', sleep=False)
    for k in range(2):
        a(f's_lshl_b32 {T[6]}, {T[13 + k]}, 9')
        a(f'v_lshl_add_u32 v9, v0, 3, {T[6]}')
        a(f'ds_write_b64 v9, {vr(UP[k], 2)} offset:{UB + 512}')
        a(f'ds_write_b64 v9, {vr(UP[k] + 2, 2)} offset:{UB + UBS + 512}')
        a(f'ds_write_b64 v9, {vr(UP[k] + 4, 2)} offset:{XB}')
        a(f'ds_write_b64 v9, {vr(UP[k] + 6, 2)} offset:{XB + 4096}')
    a(f's_and_b32 {T[7]}, {sWave}, 1')
    a(f's_mul_i32 {T[7]}, {T[7]}, {UBS}')
    a(f'v_lshl_add_u32 v10, v0, 3, {T[7]}')
    a(f'v_mov_b32 v4, 0')
    a(f'v_mov_b32 v5, 0')
    a(f'ds_write_b64 v10, v[4:5] offset:{UB}')
    a('s_setprio 0')


def p12_rest(a, dbg):
    a.comment('---- stage E: causal convolution on waves 0..3, weight prep on waves 4..7')
    Lnc = a.newlabel('L_noconv')
    Lce = a.newlabel('L_convend')
    a(f's_cmp_ge_u32 {sWave}, 4')
    a(f's_cbranch_scc1 {Lnc}')
    VA, VB = 2, 3
    ACC = 4
    AF = [36, 100]
    BF = [68, 132]
    a(f's_lshr_b32 {T[2]}, {sWave}, 1')
    a(f's_and_b32 {T[3]}, {sWave}, 1')
    a(f'v_and_b32 v164, 15, v0')
    a(f'v_lshrrev_b32 v165, 4, v0')
    a(f's_lshl_b32 {T[5]}, {T[3]}, 8')
    a(f'v_lshlrev_b32 v166, 5, v164')
    a(f'v_lshl_add_u32 v166, v165, 4, v166')
    a(f's_mul_i32 {T[4]}, {T[2]}, {UBS}')
    a(f's_sub_u32 {T[4]}, {T[4]}, {T[5]}')
    a(f's_add_u32 {T[4]}, {T[4]}, {UB + 480 - 192}')
    a(f'v_add_u32 v{VB}, {T[4]}, v166')
    a(f'v_and_b32 v166, 3, v164')
    a(f'v_sub_u32 v166, 3, v166')
    a(f'v_mul_u32_u24 v166, {KCS}, v166')
    a(f'v_lshrrev_b32 v167, 2, v164')
    a(f'v_lshlrev_b32 v167, 3, v167')
    a(f'v_sub_u32 v166, v166, v167')
    a(f'v_lshl_add_u32 v166, v165, 4, v166')
    a(f's_mul_i32 {T[4]}, {T[2]}, {4 * KCS}')
    a(f's_sub_u32 {T[4]}, {T[4]}, {T[5]}')
    a(f's_add_u32 {T[4]}, {T[4]}, {KC + 280}')
    a(f'v_add_u32 v{VA}, {T[4]}, v166')

    def conv_loads(q0i):
        s = q0i & 1
        out = []
        for k in range(8):
            offa = 512 * (7 - k) + 64 * (3 - q0i)
            offb = 512 * k + 64 * (3 - q0i)
            out.append(f'ds_read_b128 {vr(BF[s] + 4 * k, 4)}, v{VB} offset:{offb}')
            out.append(f'ds_read_b64 {vr(AF[s] + 4 * k, 2)}, v{VA} offset:{offa}')
            out.append(f'ds_read_b64 {vr(AF[s] + 4 * k + 2, 2)}, v{VA} offset:{offa + 8}')
        return out
    mf = []
    for ct in range(8):
        for q1 in range(ct + 1):
            mf.append((max(q1, ct - q1), ct, q1))
    mf.sort()
    loads = [(q, x) for q in range(4) for x in conv_loads(q)]
    issued = 0
    known = 0
    for q in range(4):
        s = q & 1
        for idx, (lvl, ct, q1) in enumerate(mf):
            need = 24 * q + 3 * (lvl + 1)
            if q == 0 and idx == 0:
                while issued < 15:
                    a(loads[issued][1]); issued += 1
            while issued < need:
                a(loads[issued][1]); issued += 1
            if known < need:
                assert issued - need <= 15
                a(f's_waitcnt lgkmcnt({issued - need})')
                known = need
            first = (q == 0 and (lvl, ct, q1) == min(m for m in mf if m[1] == ct))
            c = '0' if first else vr(ACC + 4 * ct, 4)
            a(f'v_mfma_f32_16x16x32_bf16 {vr(ACC + 4 * ct, 4)}, {vr(AF[s] + 4 * q1, 4)}, {vr(BF[s] + 4 * (ct - q1), 4)}, {c}')
            if issued < len(loads) and issued - known < 15 and loads[issued][0] <= q + 1:
                a(loads[issued][1]); issued += 1
    stamp(a, 'convd')
    a(f's_lshl_b32 {T[4]}, {sWave}, 13')
    a(f's_add_u32 {T[4]}, {T[4]}, {PART}')
    a(f'v_lshl_add_u32 v{VA}, v0, 4, {T[4]}')
    for ct in range(8):
        a(f'ds_write_b128 v{VA}, {vr(ACC + 4 * ct, 4)} offset:{1024 * ct}')
    a(f's_branch {Lce}')
    a.label(Lnc)
    a('s_setprio 2')
    wprep(a)
    a('s_setprio 0')
    stamp(a, 'prepd')
    a(f'v_mov_b32 v40, {PAIRC + 8}')
    a(f'v_mov_b32 v41, 1')
    a('s_waitcnt vmcnt(0)')
    a(f's_mov_b64 {sEX}, exec')
    a('s_mov_b64 exec, 1')
    a('ds_add_rtn_u32 v42, v40, v41')
    a('s_waitcnt lgkmcnt(0)')
    a(f'v_readfirstlane_b32 {T[1]}, v42')
    a(f's_cmp_eq_u32 {T[1]}, 3')
    Lnl2 = a.newlabel('L_notlast')
    a(f's_cbranch_scc0 {Lnl2}')
    a(f's_and_b32 {T[1]}, {sW}, 15')
    a(f's_lshl_b32 {T[1]}, {T[1]}, 8')
    a(f's_add_u32 {T[1]}, {T[1]}, {CNTW}')
    a(f'v_mov_b32 v40, 1')
    a(f'v_mov_b32 v41, 0')
    a(f'buffer_atomic_add v40, v41, {SWS}, {T[1]} offen')
    a.label(Lnl2)
    a(f's_mov_b64 exec, {sEX}')
    Lnt = a.newlabel('L_notouch')
    a(f's_cmp_eq_u32 {sWave}, 7')
    a(f's_cbranch_scc0 {Lnt}')
    srd(a, SB, P_WD, 1792 * 1024)
    a(f's_mul_i32 {T[5]}, {sW}, 7168')
    a(f'v_lshlrev_b32 v10, 4, v0')
    for i in range(7):
        if i == 4:
            a(f's_add_u32 {T[5]}, {T[5]}, 4096')
        a(f'buffer_load_dwordx4 v[200:203], v10, {SB}, {T[5]} offen offset:{1024 * (i & 3)}')
    a.label(Lnt)
    a.label(Lce)
    a('s_waitcnt lgkmcnt(0)')
    a('s_barrier')
    stamp(a, 'S4')

    a(f's_lshr_b32 {T[2]}, {sWave}, 2')
    a(f's_and_b32 {T[3]}, {sWave}, 3')
    a(f's_lshl_b32 {T[4]}, {T[2]}, 14')
    a(f's_lshl_b32 {T[5]}, {T[3]}, 11')
    a(f's_add_u32 {T[4]}, {T[4]}, {T[5]}')
    a(f's_add_u32 {T[4]}, {T[4]}, {PART}')
    a(f'v_lshl_add_u32 v2, v0, 4, {T[4]}')
    for i in range(2):
        a(f'ds_read_b128 {vr(4 + 8 * i, 4)}, v2 offset:{1024 * i}')
        a(f'ds_read_b128 {vr(8 + 8 * i, 4)}, v2 offset:{1024 * i + 8192}')
    a(f'v_and_b32 v20, 15, v0')
    a(f'v_lshrrev_b32 v21, 4, v0')
    a(f'v_lshlrev_b32 v20, 5, v20')
    a(f'v_lshl_add_u32 v20, v21, 3, v20')
    a(f's_lshl_b32 {T[5]}, {T[3]}, 10')
    a(f'v_add_u32 v20, {T[5]}, v20')
    a(f's_mul_i32 {T[6]}, {T[2]}, {UBS}')
    a(f's_add_u32 {T[6]}, {T[6]}, {UB + 512}')
    a(f'v_add_u32 v21, {T[6]}, v20')
    a(f's_lshl_b32 {T[6]}, {T[2]}, 12')
    a(f's_add_u32 {T[6]}, {T[6]}, {XB}')
    a(f'v_add_u32 v22, {T[6]}, v20')
    for i in range(2):
        a(f'ds_read_b64 {vr(24 + 4 * i, 2)}, v21 offset:{512 * i}')
        a(f'ds_read_b64 {vr(26 + 4 * i, 2)}, v22 offset:{512 * i}')
    a(f's_lshl_b32 {T[7]}, {sDSK}, 16')
    a(f's_and_b32 {T[8]}, {sDSK}, 0xffff0000')
    a(f's_cmp_eq_u32 {T[2]}, 0')
    a(f's_cselect_b32 {T[7]}, {T[7]}, {T[8]}')
    a(f's_lshl_b32 {T[8]}, {sCP}, 1')
    a(f's_add_u32 {T[8]}, {T[8]}, {T[2]}')
    a(f's_lshl_b32 {T[8]}, {T[8]}, 12')
    a(f's_add_u32 {T[8]}, {T[8]}, {HT}')
    a('s_waitcnt lgkmcnt(0)')
    Es = [32, 44]
    for i in range(2):
        Y, Y2 = 4 + 8 * i, 8 + 8 * i
        for k in range(4):
            a(f'v_add_f32 v{Y + k}, v{Y + k}, v{Y2 + k}')
    for i in range(2):
        Uu, Xx, E = 24 + 4 * i, 26 + 4 * i, Es[i]
        for k in range(2):
            a(f'v_lshlrev_b32 v{E + 2 * k}, 16, v{Xx + k}')
            a(f'v_and_b32 v{E + 2 * k + 1}, 0xffff0000, v{Xx + k}')
            a(f'v_lshlrev_b32 v{E + 4 + 2 * k}, 16, v{Uu + k}')
            a(f'v_and_b32 v{E + 4 + 2 * k + 1}, 0xffff0000, v{Uu + k}')
    for i in range(2):
        Y, E = 4 + 8 * i, Es[i]
        for k in range(4):
            a(f'v_fmac_f32 v{Y + k}, {T[7]}, v{E + 4 + k}')
    for i in range(2):
        Y, E = 4 + 8 * i, Es[i]
        for k in range(4):
            a(f'v_add_f32 v{Y + k}, v{Y + k}, v{E + k}')
    for i in range(2):
        Y = 4 + 8 * i
        a(f'v_cvt_pk_bf16_f32 v{56 + 2 * i}, v{Y}, v{Y + 1}')
        a(f'v_cvt_pk_bf16_f32 v{57 + 2 * i}, v{Y + 2}, v{Y + 3}')
    a(f'v_permlane16_swap_b32 v56, v58')
    a(f'v_permlane16_swap_b32 v57, v59')
    a(f'v_and_b32 v20, 15, v0')
    a(f'v_lshlrev_b32 v20, 5, v20')
    a(f'v_lshrrev_b32 v21, 5, v0')
    a(f'v_lshl_add_u32 v20, v21, 4, v20')
    a(f'v_bfe_u32 v21, v0, 4, 1')
    a(f'v_lshl_add_u32 v20, v21, 9, v20')
    a(f'v_add_u32 v20, {T[5]}, v20')
    store_h(a, T[8])
    Lw4 = a.newlabel('L_wlook')
    a(f's_cmp_eq_u32 {sWave}, 4')
    a(f's_cbranch_scc0 {Lw4}')
    poll_ge(a, CNTW, 16, 256, 16, 'v16', 'v17', 'w', sleep=4)
    stampval(a, '#wspin', sSpin)
    a.label(Lw4)
    a('s_waitcnt vmcnt(0)')
    a('s_barrier')
    stamp(a, 'S5')


def wprefetch(a):
    Lo = a.newlabel('L_pfo')
    a(f's_cmp_eq_u32 {sWave}, 4')
    a(f's_cbranch_scc0 {Lo}')
    poll_ge(a, CNTW, 16, 256, 16, 'v16', 'v17', 'w', sleep=6)
    stampval(a, '#wspin', sSpin)
    a.label(Lo)
    stamp(a, 'pfok')


def store_h(a, soff):
    a(f'buffer_store_dwordx4 v[56:59], v20, {SWS}, {soff} offen sc1')


def wprep(a):
    AL15, GG_ = 84, 85
    a(f'v_and_b32 v{AL15}, 15, v0')
    a(f'v_lshrrev_b32 v{GG_}, 4, v0')
    a(f'v_lshrrev_b32 v99, 2, v{AL15}')
    a(f'v_lshrrev_b32 v100, 1, v{GG_}')
    a(f'v_lshl_add_u32 v99, v100, 3, v99')
    a(f'v_mul_u32_u24 v99, 224, v99')
    a(f'v_and_b32 v100, 3, v0')
    a(f'v_lshl_add_u32 v99, v100, 3, v99')
    a(f'v_and_b32 v100, 1, v{GG_}')
    a(f'v_mul_u32_u24 v100, {STG_U - STG_G}, v100')
    a(f'v_add_u32 v99, v99, v100')
    sJ0 = T[16]
    a(f's_sub_u32 {sJ0}, {sWave}, 4')
    a(f's_lshl_b32 {sJ0}, {sJ0}, 1')
    a(f's_lshl_b32 {T[17]}, {sJ0}, 5')
    a(f's_add_u32 {T[17]}, {T[17]}, {STG_G}')
    a(f'v_add_u32 v98, {T[17]}, v99')
    a(f'v_lshlrev_b32 v108, 4, v0')
    a(f'v_lshlrev_b32 v112, 2, v0')
    a(f'v_mov_b32 v152, 0x3f803f80')
    a(f'v_mov_b32 v153, 0x3f803f80')
    a(f's_lshr_b32 {T[17]}, {sW}, 4')
    a(f's_mul_i32 {T[17]}, {T[17]}, 7')
    a(f's_add_u32 {T[17]}, {T[17]}, {sJ0}')
    a(f's_lshl_b32 {T[17]}, {T[17]}, 5')
    a(f's_and_b32 {T[18]}, {sW}, 15')
    a(f's_lshl_b32 {T[18]}, {T[18]}, 1')
    a(f's_add_u32 {T[17]}, {T[17]}, {T[18]}')
    a(f's_lshl_b32 {T[17]}, {T[17]}, 10')
    a(f's_add_u32 {T[17]}, {T[17]}, {WP}')
    a(f's_mul_i32 {T[19]}, {sW}, 896')
    a(f's_lshl_b32 {T[18]}, {sJ0}, 7')
    a(f's_add_u32 {T[19]}, {T[19]}, {T[18]}')
    a(f's_add_u32 {T[19]}, {T[19]}, {CSP}')
    Ld = a.newlabel('L_prepdone')
    for jj in range(2):
        PF = 116 + 8 * jj
        if jj == 1:
            a(f's_cmp_eq_u32 {sWave}, 7')
            a(f's_cbranch_scc1 {Ld}_r')
        for kk in range(2):
            for rd in range(2):
                a(f'ds_read_b64_tr_b16 {vr(PF + 4 * kk + 2 * rd, 2)}, v98 offset:{(16 * kk + 4 * rd) * 224 + 32 * jj}')
    a.label(Ld + '_r')
    a('s_waitcnt lgkmcnt(0)')
    for jj in range(2):
        PF = 116 + 8 * jj
        if jj == 1:
            a(f's_cmp_eq_u32 {sWave}, 7')
            a(f's_cbranch_scc1 {Ld}')
        a(f's_add_u32 {T[18]}, {T[17]}, {32 * 1024 * jj}')
        a(f'buffer_store_dwordx4 {vr(PF, 4)}, v108, {SWS}, {T[18]} offen sc1')
        a(f'buffer_store_dwordx4 {vr(PF + 4, 4)}, v108, {SWS}, {T[18]} offen offset:1024 sc1')
        SM = 140 + 4 * jj
        for i in range(4):
            a(f'v_mfma_f32_4x4x4_16b_bf16 {vr(SM, 4)}, v[152:153], {vr(PF + 2 * i, 2)}, {"0" if i == 0 else vr(SM, 4)}')
        a(f'v_mov_b32 v110, v{SM}')
        a(f'v_mov_b32 v111, v{SM}')
        a(f'v_permlane32_swap_b32 v110, v111')
        a(f'v_add_f32 v110, v110, v111')
        a(f's_add_u32 {T[18]}, {T[19]}, {128 * jj}')
        a(f's_mov_b64 {sEX}, exec')
        a('s_mov_b32 exec_hi, 0')
        a(f'buffer_store_dword v110, v112, {SWS}, {T[18]} offen sc1')
        a(f's_mov_b64 exec, {sEX}')
    a.label(Ld)


def ln_finish2(a, S, Q, t):
    def each(fmt):
        for r in range(2):
            a(fmt.format(S=S[r], Q=Q[r], t=t[r]))
    each('v_mul_f32 v{S}, 0x3b000000, v{S}')
    each('v_mul_f32 v{Q}, 0x3b000000, v{Q}')
    each('v_fma_f32 v{Q}, -v{S}, v{S}, v{Q}')
    each('v_max_f32 v{Q}, 0, v{Q}')
    each('v_cvt_pk_bf16_f32 v{t}, v{Q}, v{Q}')
    each('v_lshlrev_b32 v{t}, 16, v{t}')
    each('v_add_f32 v{t}, 0x3727c5ac, v{t}')
    each('v_cvt_pk_bf16_f32 v{t}, v{t}, v{t}')
    each('v_lshlrev_b32 v{t}, 16, v{t}')
    each('v_sqrt_f32 v{t}, v{t}')
    each('v_cvt_pk_bf16_f32 v{t}, v{t}, v{t}')
    each('v_lshlrev_b32 v{Q}, 16, v{t}')


def ln_finish(a, S, Q, t3, t4):
    a(f'v_mul_f32 v{S}, 0x3b000000, v{S}')
    a(f'v_mul_f32 v{Q}, 0x3b000000, v{Q}')
    a(f'v_fma_f32 v{Q}, -v{S}, v{S}, v{Q}')
    a(f'v_max_f32 v{Q}, 0, v{Q}')
    a(f'v_cvt_pk_bf16_f32 v{t3}, v{Q}, v{Q}')
    a(f'v_lshlrev_b32 v{t3}, 16, v{t3}')
    a(f'v_add_f32 v{t3}, 0x3727c5ac, v{t3}')
    a(f'v_cvt_pk_bf16_f32 v{t3}, v{t3}, v{t3}')
    a(f'v_lshlrev_b32 v{t3}, 16, v{t3}')
    a(f'v_sqrt_f32 v{t3}, v{t3}')
    a(f'v_cvt_pk_bf16_f32 v{t4}, v{t3}, v{t3}')
    a(f'v_lshlrev_b32 v{Q}, 16, v{t4}')


HEADER = """; Fused pre-LN S4D convolution + pre-LN GEGLU FFN, one persistent launch (256 workgroups x 512 threads).
; d_in order: A_u, log_A_real, A_imag, C_real, C_imag, log_dt, D_skip, B_x, w_gate, w_up, w_down ; d_out, d_debug, d_ws
; @launch grid=(256,1,1) block=(512,1,1) lds=%d
.amdgcn_target "amdgcn-amd-amdhsa--gfx950"
.text
.globl %s
.p2align 8
.type %s,@function
""" % (LDS_SIZE, KNAME, KNAME)

FOOTER = """.section .rodata,"a"
.p2align 6
.amdhsa_kernel %s
  .amdhsa_next_free_vgpr 256
  .amdhsa_next_free_sgpr 102
  .amdhsa_accum_offset 256
  .amdhsa_group_segment_fixed_size 0
  .amdhsa_kernarg_size 112
  .amdhsa_user_sgpr_count 2
  .amdhsa_user_sgpr_kernarg_segment_ptr 1
  .amdhsa_system_sgpr_workgroup_id_x 1
.end_amdhsa_kernel
""" % KNAME


def build(upto='all', dbg=None):
    a = Asm()
    STAMPS['on'] = (dbg is not None and dbg[0] in 'TD')
    STAMPS['debug'] = (dbg is not None and dbg[0] == 'D')
    STAMPS['only'] = set(dbg[2:].split(',')) if (dbg and len(dbg) > 2) else None
    STAMPS['names'] = []
    a.label(KNAME)
    entry(a)
    p12(a, dbg)
    if upto in ('p3', 'all'):
        import gen34
        gen34.p3(a, dbg)
        if upto == 'all':
            gen34.p4(a, dbg)
    dump_stamps(a)
    a.label('L_end')
    a('s_endpgm')
    n = a.fix_hazards()
    return HEADER + a.text() + FOOTER, n


if __name__ == '__main__':
    upto = sys.argv[1] if len(sys.argv) > 1 else 'all'
    dbg = sys.argv[2] if len(sys.argv) > 2 and sys.argv[2] != '-' else None
    out = sys.argv[3] if len(sys.argv) > 3 else 'out.s'
    txt, n = build(upto, dbg)
    open(out, 'w').write(txt)
    if dbg and dbg.startswith('T'):
        open(out + '.stamps', 'w').write(' '.join(STAMPS['names']))
    print(f'wrote {out}: {len(txt)} bytes, {txt.count(chr(10))} lines, {n} nops inserted')
```
